```python
import torch

def _softmax(x, axis=-1):
    return torch.softmax(x, dim=axis)
def _gelu(x):
    return torch.nn.functional.gelu(x, approximate="tanh")
def _silu(x):
    return torch.nn.functional.silu(x)
def _sigmoid(x):
    return torch.sigmoid(x)
def _layernorm(x, axis=-1, eps=1e-5):
    m = x.mean(dim=axis, keepdim=True)
    v = x.var(dim=axis, keepdim=True, unbiased=False)
    return (x - m) / torch.sqrt(v + eps)
def _scatter_add(tgt, idx, src, axis=0):
    return tgt.clone().index_add_(axis, idx, src)
def _segment_sum(src, seg, n):
    out = torch.zeros((n,) + src.shape[1:], dtype=src.dtype)
    return out.index_add_(0, seg, src)
def _pad(x, pw):
    flat = tuple(v for pair in reversed(pw) for v in pair)
    return torch.nn.functional.pad(x, flat)

kernel_name = 'recurrent_scan__sliding_block_cached__glu_gated_swiglu__decode'

def setup_inputs():

    _w = (lambda a: (lambda t: t.to(torch.bfloat16) if t.is_floating_point() else t)(torch.as_tensor(a)))
    def _A_setup():
        B, Sq, D = 1, 1, 640
        Hq, Hkv, Sk, Dh = 32, 32, 32768, 192
        assert Hq % Hkv == 0, (Hq, Hkv)
        return {
            "x": _w((lambda *s: torch.randn(*s, dtype=torch.bfloat16) * 0.05)(B, Sq, D)),
            "k_cache": _w((lambda *s: torch.randn(*s, dtype=torch.bfloat16) * 3.2)(B, Hkv, Sk, Dh)),
            "v_cache": _w((lambda *s: torch.randn(*s, dtype=torch.bfloat16) * 3.2)(B, Hkv, Sk, Dh)),
            "wq": _w((lambda *s: torch.randn(*s, dtype=torch.bfloat16) * 3.2)(D, Hq * Dh) * (D ** -0.5)),
            "wo": _w((lambda *s: torch.randn(*s, dtype=torch.bfloat16) * 3.2)(Hq * Dh, D) * ((Hq * Dh) ** -0.5)),
        }
    _A_in = _A_setup()

    def _B_setup():
        B, S, D, F = 1, 1, 640, 1536
        return {
            "x": _w((lambda *s: torch.randn(*s, dtype=torch.bfloat16) * 0.05)(B, S, D)),
            "w1": _w((lambda *s: torch.randn(*s, dtype=torch.bfloat16) * 0.4)(D, F) * (2.0 / D) ** 0.5),
            "w3": _w((lambda *s: torch.randn(*s, dtype=torch.bfloat16) * 0.4)(D, F) * (2.0 / D) ** 0.5),
            "w2": _w((lambda *s: torch.randn(*s, dtype=torch.bfloat16) * 0.4)(F, D) * (2.0 / F) ** 0.5),
        }
    _B_in = _B_setup()

    return {
        "A_x": _A_in["x"],
        "A_k_cache": _A_in["k_cache"],
        "A_v_cache": _A_in["v_cache"],
        "A_wq": _A_in["wq"],
        "A_wo": _A_in["wo"],
        "B_x": _B_in["x"],
        "B_w1": _B_in["w1"],
        "B_w3": _B_in["w3"],
        "B_w2": _B_in["w2"],
    }

def reference(A_x, A_k_cache, A_v_cache, A_wq, A_wo, B_x, B_w1, B_w3, B_w2):
    def _A_ref(x, k_cache, v_cache, wq, wo):
        B, Sq, D = x.shape
        Hq, Dh = 32, 192
        Hkv, Sk = k_cache.shape[1], k_cache.shape[2]
        W = min(4096, max(256, Sk // 4))
        rep = Hq // Hkv
        q = (lambda x, *d: x.permute(*d))((x @ wq).reshape(B, Sq, Hq, Dh), 0, 2, 1, 3)
        k = (lambda x, n, axis: torch.repeat_interleave(x, n, dim=axis))(k_cache[:, :, Sk - W:, :], rep, axis=1)
        v = (lambda x, n, axis: torch.repeat_interleave(x, n, dim=axis))(v_cache[:, :, Sk - W:, :], rep, axis=1)
        scores = torch.einsum("bhqd,bhkd->bhqk", q, k) * (Dh ** -0.5)
        p = _softmax(scores, axis=-1)
        o = torch.einsum("bhqk,bhkd->bhqd", p, v)
        return (lambda x, *d: x.permute(*d))(o, 0, 2, 1, 3).reshape(B, Sq, Hq * Dh) @ wo

    def _B_ref(x, w1, w3, w2):
        gate = torch.einsum("bsd,df->bsf", x, w1)
        up = torch.einsum("bsd,df->bsf", x, w3)
        h = _silu(gate) * up
        out = torch.einsum("bsf,fd->bsd", h, w2)
        return out

    x = A_x
    xn = _layernorm(x, axis=-1)
    s = _A_ref(xn, A_k_cache, A_v_cache, A_wq, A_wo)
    g = _silu(_B_ref(xn, B_w1, B_w3, B_w2))
    return x + s * g
```

```python
import re
def regs(tok):
    tok = tok.strip()
    m = re.fullmatch(r"-?v\[(\d+):(\d+)\]", tok)
    if m: return {("v", i) for i in range(int(m.group(1)), int(m.group(2)) + 1)}
    m = re.fullmatch(r"-?\|?v(\d+)\|?", tok)
    if m: return {("v", int(m.group(1)))}
    m = re.fullmatch(r"s\[(\d+):(\d+)\]", tok)
    if m: return {("s", i) for i in range(int(m.group(1)), int(m.group(2)) + 1)}
    m = re.fullmatch(r"-?s(\d+)", tok)
    if m: return {("s", int(m.group(1)))}
    if tok == "vcc": return {("s", "vcc")}
    return set()
TRANS = ("v_exp_f32", "v_log_f32", "v_rcp_f32", "v_rsq_f32", "v_sqrt_f32")
def parse(line):
    line = line.split(";")[0].strip()
    if not line or line.endswith(":") or line.startswith("."): return None
    p = line.split(None, 1)
    op = p[0]; rest = p[1] if len(p) > 1 else ""
    ops = []
    depth = 0; cur = ""
    for ch in rest:
        if ch == "[": depth += 1
        if ch == "]": depth -= 1
        if ch == "," and depth == 0: ops.append(cur); cur = ""
        else: cur += ch
    if cur.strip():
        ops.append(cur)
    if ops:
        last = ops[-1].strip().split()
        ops[-1] = last[0] if last else ""
    ops = [o.strip() for o in ops]
    d = dict(op=op, line=line, w=set(), r=set(), kind="other", srcc=set(), data=set())
    R = [regs(o) for o in ops]
    if op.startswith("v_mfma"):
        d["kind"] = "mfma"; d["w"] = R[0]; d["r"] = R[1] | R[2] | R[3]; d["srcc"] = R[3]; d["ab"] = R[1] | R[2]
    elif op.startswith("v_permlane"):
        d["kind"] = "perm"; d["w"] = R[0] | R[1]; d["r"] = R[0] | R[1]
    elif op.startswith("v_cmp"):
        d["kind"] = "valu"; d["w"] = R[0]; d["r"] = set().union(*R[1:])
    elif op.startswith("v_readfirstlane") or op.startswith("v_readlane"):
        d["kind"] = "rdlane"; d["w"] = R[0]; d["r"] = set().union(*R[1:])
    elif op.startswith("v_"):
        d["kind"] = "valu"; d["w"] = R[0]; d["r"] = set().union(*R[1:]) if len(R) > 1 else set()
        if op.startswith("v_dot2c") or op.startswith("v_fmac") or ("bank_mask" in line and "bank_mask:0xf" not in line): d["r"] |= R[0]
        if "_dpp" in op: d["dpp"] = R[1]
        if op.startswith("v_dot2"): d["kind"] = "dot"
        if op.startswith(TRANS): d["trans"] = True
        if op.startswith("v_cndmask") and len(R) == 4: d["mask"] = R[3]
    elif op.startswith("buffer_load") or op.startswith("global_load"):
        d["kind"] = "vmem"; d["w"] = R[0]; d["r"] = set().union(*R[1:])
    elif op.startswith("buffer_atomic"):
        d["kind"] = "vmem"; d["w"] = R[0]; d["r"] = set().union(*R)
    elif op.startswith("buffer_store"):
        d["kind"] = "vmem"; d["r"] = set().union(*R);
        if "x4" in op or "x3" in op: d["data"] = R[0]
    elif op.startswith("global_store"):
        d["kind"] = "vmem"; d["r"] = set().union(*R)
        if "x4" in op or "x3" in op: d["data"] = R[1]
    elif op.startswith("ds_read") or "rtn" in op or op.startswith("ds_bpermute"):
        d["kind"] = "ds"; d["w"] = R[0]; d["r"] = set().union(*R[1:])
    elif op.startswith("ds_"):
        d["kind"] = "ds"; d["r"] = set().union(*R)
    elif op.startswith("s_"):
        d["kind"] = "salu"
        if op == "s_nop": d["n"] = int(ops[0]) + 1
    return d
def check(text):
    ins = [x for x in (parse(l) for l in text.split("\n")) if x]
    errs = []
    isvalu = lambda k: k in ("valu", "dot", "perm", "rdlane")
    for i, c in enumerate(ins):
        dist = 0
        for j in range(i - 1, max(-1, i - 24), -1):
            p = ins[j]
            need = 0
            pw = p["w"]; pv = {x for x in pw if x[0] == "v"}; ps = {x for x in pw if x[0] == "s"}
            if isvalu(p["kind"]):
                if "dpp" in c and pv & c["dpp"]: need = max(need, 2)
                if c["kind"] == "perm" and pv & c["r"]: need = max(need, 2)
                if c["kind"] == "mfma" and pv & c["r"]: need = max(need, 2)
                if c["kind"] == "rdlane" and pv & c["r"]: need = max(need, 1)
                if c["kind"] == "vmem" and ps & c["r"]: need = max(need, 5)
                if isvalu(c["kind"]) and ps & c["r"]: need = max(need, 2)
                if p.get("trans") and isvalu(c["kind"]) and not c.get("trans") and pv & c["r"]: need = max(need, 1)
                if p["kind"] == "dot" and (pv & (c["r"] | c["w"])) and c["kind"] != "salu":
                    if c["op"] != p["op"]: need = max(need, 3)
            if p["kind"] == "mfma":
                if c["kind"] == "mfma":
                    if pv & c["ab"]: need = max(need, 8)
                    if pv & c["srcc"] and c["srcc"] != pv: need = max(need, 6)
                elif c["kind"] != "salu" and pv & (c["r"] | c["w"]): need = max(need, 8)
                if isvalu(c["kind"]) and p["srcc"] & c["w"]: need = max(need, 3)
            if p["data"] and p["data"] & c["w"]: need = max(need, 2)
            if need > dist:
                errs.append(f"need {need} have {dist}: [{p['line']}] -> [{c['line']}]")
            dist += p.get("n", 1)
            if p["op"] in ("s_branch", "s_endpgm"): break
    return errs
if __name__ == "__main__":
    import sys
    for f in sys.argv[1:]:
        e = check(open(f).read())
        print(f, "hazards:", len(e))
        for x in e[:20]: print("  ", x)
```

```python
import sys, struct
NAME = "recurrent_scan__sliding_block_cached__glu_gated_swiglu__decode"
HDR = open("cdna_kernels/" + NAME + ".s.ref").read().split("; Override launch")[0] if __name__ == "__main__" else ""

def f32(x): return "0x%08x" % struct.unpack("<I", struct.pack("<f", x))[0]

E0, E1, E2, E4, E5 = 0x1000, 0x10000, 0x70000, 0xB0000, 0x110000
WS_BYTES = 0x1A6000
TAGK = 0x9E3779B9
L_OACC, L_Q, L_QCNT, L_OCNT, L_SFLAG, L_M = 0, 768, 1152, 1156, 1160, 1168
DPPF = "row_mask:0xf bank_mask:0xf"
LOG2E = 1.4426950408889634

def gen(stamps=False, wstride=8*3072, wgstride=3072, gstride=64*3072, vpre=0, w2late=False, prefetch=True,
        gsleep=1, pol="nt", mapping="h32", wo_prio=0):
    L = []
    A = L.append
    sW, sTAG, sHEAD, sSPLIT = 28, 29, 30, 31
    WS, SA, SB, SC = "s[32:35]", "s[36:39]", "s[40:43]", "s[44:47]"
    sRB, sC10, sSPIN = 48, 49, 50
    sT = 51
    sG = 56
    sST = 68
    nst = [0]
    stl = []
    def stamp(idx):
        if not stamps: return
        r = sST + 2 * len(stl)
        stl.append(idx)
        A(f"s_memrealtime s[{r}:{r+1}]")
    def dump_stamps(cond_wave=None):
        if not stamps:
            return
        lab = f"L_nost{nst[0]}"; nst[0] += 1
        A("s_waitcnt lgkmcnt(0)")
        A(f"s_lshl_b32 s{sT}, s2, 7"); A(f"s_add_u32 s{sT}, s{sT}, {64<<20}")
        A(f"s_add_u32 s{sT+1}, s26, s{sT}"); A(f"s_addc_u32 s{sT+2}, s27, 0")
        A("s_mov_b64 exec, 1")
        A("v_mov_b32 v0, 0")
        for k, idx in enumerate(stl):
            r = sST + 2 * k
            pairs = idx if isinstance(idx, list) else [idx]
            for (wv, slot) in pairs:
                lab2 = f"L_nost{nst[0]}"; nst[0] += 1
                if wv is not None:
                    A(f"s_cmp_lg_u32 s{sW}, {wv}"); A(f"s_cbranch_scc1 {lab2}")
                else:
                    A(f"s_cmp_eq_u32 s{r}, 0"); A(f"s_cbranch_scc1 {lab2}")
                A(f"v_mov_b32 v2, s{r}"); A(f"v_mov_b32 v3, s{r+1}")
                A(f"global_store_dwordx2 v0, v[2:3], s[{sT+1}:{sT+2}] offset:{8*slot}")
                A(f"{lab2}:")
        A("s_mov_b64 exec, -1")
    def srd(name, lo, off_sreg, size):
        b = int(name[2:name.index(":")])
        if off_sreg is None:
            A(f"s_mov_b32 s{b}, s{lo}"); A(f"s_mov_b32 s{b+1}, s{lo+1}")
        else:
            A(f"s_add_u32 s{b}, s{lo}, s{off_sreg}"); A(f"s_addc_u32 s{b+1}, s{lo+1}, 0")
        A(f"s_mov_b32 s{b+2}, {size}"); A(f"s_mov_b32 s{b+3}, 0x20000")
    def masks():
        A("v_and_b32 v3, 1, v1"); A("v_lshlrev_b32 v3, 4, v3"); A("v_mov_b32 v7, 0xffff"); A("v_lshlrev_b32 v3, v3, v7")
        A("v_bfe_u32 v7, v1, 1, 2")
        A("v_cmp_eq_u32 vcc, 0, v7"); A(f"v_cmp_eq_u32 s[{sT+1}:{sT+2}], 1, v7"); A(f"v_cmp_eq_u32 s[{sT+3}:{sT+4}], 2, v7")
        A("v_cndmask_b32 v4, 0, v3, vcc")
        A("v_cmp_eq_u32 vcc, 3, v7")
        A(f"v_cndmask_b32 v5, 0, v3, s[{sT+1}:{sT+2}]"); A(f"v_cndmask_b32 v6, 0, v3, s[{sT+3}:{sT+4}]")
        A("v_cndmask_b32 v7, 0, v3, vcc")
    def allred(op, x, t, steps):
        dp = {1: "quad_perm:[1,0,3,2]", 2: "quad_perm:[2,3,0,1]", 4: "row_ror:4", 8: "row_ror:8"}
        for s in steps:
            if s in dp:
                A("s_nop 1"); A(f"{op}_dpp v{x}, v{x}, v{x} {dp[s]} {DPPF}")
            else:
                A(f"v_mov_b32 v{t}, v{x}"); A("s_nop 1"); A(f"v_permlane{s}_swap_b32 v{x}, v{t}"); A(f"{op} v{x}, v{x}, v{t}")
    def unpack(lo, hi, src):
        A(f"v_lshlrev_b32 v{lo}, 16, v{src}"); A(f"v_and_b32 v{hi}, 0xffff0000, v{src}")
    def gettag():
        A(f"s_add_u32 s{sTAG}, s{sTAG}, {TAGK:#x}")
    def poll(label, loads, regs, sleep=gsleep, tmp=None):
        A(f"s_mov_b32 s{sSPIN}, 0x8000")
        A(f"{label}:")
        for l in loads: A(l)
        A("s_waitcnt vmcnt(0)")
        ts = []
        for k, r in enumerate(regs):
            A(f"v_bitop3_b32 v{r+1}, s{sTAG}, v{r+1}, v{r+3} bitop3:0x7e")
            ts.append(r + 1)
        while len(ts) > 1:
            if len(ts) >= 3:
                A(f"v_or3_b32 v{ts[0]}, v{ts[0]}, v{ts[1]}, v{ts[2]}"); ts = ts[3:] + [ts[0]]
            else:
                A(f"v_or_b32 v{ts[0]}, v{ts[0]}, v{ts[1]}"); ts = [ts[0]]
        A(f"v_cmp_ne_u32 vcc, 0, v{ts[0]}")
        A(f"s_cbranch_vccz {label}_ok")
        if sleep: A(f"s_sleep {sleep}")
        A(f"s_sub_u32 s{sSPIN}, s{sSPIN}, 1")
        A(f"s_cbranch_scc0 {label}")
        A(f"{label}_ok:")
    def ldspoll(label, flag_off, want, reads, vz, vflag):
        A(f"s_mov_b32 s{sSPIN}, 0x200000")
        A(f"{label}:")
        A(f"ds_read_b32 v{vflag}, v{vz} offset:{flag_off}")
        for l in reads: A(l)
        A("s_waitcnt lgkmcnt(0)")
        A(f"v_cmp_ne_u32 vcc, {want}, v{vflag}")
        A(f"s_cbranch_vccz {label}_ok")
        A("s_sleep 1")
        A(f"s_sub_u32 s{sSPIN}, s{sSPIN}, 1")
        A(f"s_cbranch_scc0 {label}")
        A(f"{label}_ok:")
    def fold_store(acc, y, vaddr, soff, imm=0):
        A(f"v_permlane32_swap_b32 v{acc}, v{acc+2}")
        A(f"v_permlane32_swap_b32 v{acc+1}, v{acc+3}")
        A(f"v_mov_b32 v{y+1}, s{sTAG}"); A(f"v_mov_b32 v{y+3}, s{sTAG}")
        A(f"v_add_f32_dpp v{y}, v{acc+2}, v{acc} row_ror:8 {DPPF}")
        A(f"v_add_f32_dpp v{y+2}, v{acc+3}, v{acc+1} row_ror:8 {DPPF}")
        A("s_mov_b32 exec_lo, 0x00ff00ff"); A("s_mov_b32 exec_hi, 0x00ff00ff")
        A(f"buffer_store_dwordx4 v[{y}:{y+3}], v{vaddr}, {WS}, s{soff} offen offset:{imm} sc1")
        A("s_mov_b64 exec, -1")
    def layernorm(nown):
        for k in range(5): unpack(30 + 2 * k, 31 + 2 * k, 20 + k)
        A("v_add_f32 v40, v30, v31"); A("v_add_f32 v41, v32, v33"); A("v_add_f32 v42, v34, v35"); A("v_add_f32 v43, v36, v37")
        A("v_add_f32 v44, v38, v39"); A("v_add_f32 v40, v40, v41"); A("v_add_f32 v42, v42, v43"); A("v_add_f32 v40, v40, v44")
        A("v_add_f32 v40, v40, v42")
        allred("v_add_f32", 40, 41, [1, 2, 8, 4, 16, 32])
        A(f"v_mul_f32 v40, {f32(1/640)}, v40")
        for k in range(10): A(f"v_sub_f32 v{30+k}, v{30+k}, v40")
        A("v_mul_f32 v42, v30, v30"); A("v_mul_f32 v43, v31, v31")
        for k in range(2, 10): A(f"v_fmac_f32 v{42 + k % 2}, v{30+k}, v{30+k}")
        A("v_add_f32 v42, v42, v43")
        allred("v_add_f32", 42, 41, [1, 2, 8, 4, 16, 32])
        A(f"v_mul_f32 v42, {f32(1/640)}, v42")
        A("v_cvt_pk_bf16_f32 v41, v40, v42")
        unpack(40, 42, 41)
        A(f"v_add_f32 v42, {f32(1e-5)}, v42")
        A("v_cvt_pk_bf16_f32 v42, v42, v42"); A("v_lshlrev_b32 v42, 16, v42")
        A("v_sqrt_f32 v42, v42")
        for k in range(nown // 2): unpack(30 + 2 * k, 31 + 2 * k, 25 + k)
        A("v_cvt_pk_bf16_f32 v42, v42, v42"); A("v_lshlrev_b32 v42, 16, v42")
        A("v_rcp_f32 v42, v42")
        for k in range(nown): A(f"v_sub_f32 v{30+k}, v{30+k}, v40")
        for k in range(nown // 2): A(f"v_cvt_pk_bf16_f32 v{25+k}, v{30+2*k}, v{31+2*k}")
        for k in range(nown // 2): unpack(30 + 2 * k, 31 + 2 * k, 25 + k)
        for k in range(nown): A(f"v_mul_f32 v{30+k}, v{30+k}, v42")
        for k in range(nown): A(f"v_cvt_pk_bf16_f32 v{8+k}, v{30+k}, v{30+k}")
    def silu(x, t):
        A(f"v_mul_f32 v{t}, {f32(-LOG2E)}, v{x}"); A(f"v_exp_f32 v{t}, v{t}"); A("s_nop 0")
        A(f"v_add_f32 v{t}, 1.0, v{t}"); A(f"v_rcp_f32 v{t}, v{t}"); A("s_nop 0")
        A(f"v_mul_f32 v{x}, v{x}, v{t}")
    def unit_mfma(d0, dupe, dupo, acc, at):
        for G in range(8):
            a = at + 4 * (G & 1)
            src = dupo if G & 1 else dupe
            k = G >> 1
            for j in range(4):
                A(f"v_and_b32_dpp v{a+j}, v{src}, v{4+j} quad_perm:[{k},{k},{k},{k}] {DPPF}")
            if G > 0:
                pa = at + 4 * ((G - 1) & 1); pd = d0 + 4 * (G - 1)
                c = "0" if G == 1 else f"v[{acc}:{acc+3}]"
                A(f"v_mfma_f32_16x16x32_bf16 v[{acc}:{acc+3}], v[{pa}:{pa+3}], v[{pd}:{pd+3}], {c}")
        A("s_nop 0")
        pa = at + 4; pd = d0 + 28
        A(f"v_mfma_f32_16x16x32_bf16 v[{acc}:{acc+3}], v[{pa}:{pa+3}], v[{pd}:{pd+3}], v[{acc}:{acc+3}]")
        A("s_nop 7")

    A(f"; @launch grid=(256,1,1) block=(768,1,1) lds=3072")
    A('.amdgcn_target "amdgcn-amd-amdhsa--gfx950"')
    A(".text"); A(f".globl {NAME}_kernel"); A(".p2align 8"); A(f".type {NAME}_kernel,@function")
    A(f"{NAME}_kernel:")
    A("s_cmp_ge_u32 s2, 256"); A("s_cbranch_scc1 L_end")
    A("s_load_dwordx16 s[4:19], s[0:1], 0")
    A("s_load_dwordx8 s[20:27], s[0:1], 64")
    if stamps:
        for k in range(8): A(f"s_mov_b64 s[{sST+2*k}:{sST+2*k+1}], 0")
    stamp((0, 0))
    A("v_lshrrev_b32 v2, 6, v0")
    A("v_and_b32 v1, 63, v0")
    A(f"v_readfirstlane_b32 s{sW}, v2")
    A("v_lshlrev_b32 v2, 2, v0"); A("v_mov_b32 v3, 0")
    A("ds_write_b32 v2, v3")
    if prefetch:
        A(f"s_cmp_lg_u32 s{sW}, 11"); A("s_cbranch_scc1 L_nopf")
        A(f"s_getpc_b64 s[{sT+1}:{sT+2}]")
        A("v_lshlrev_b32 v2, 7, v1")
        A(f"v_min_u32 v2, L_code_end-L_pfbase-4, v2")
        A("L_pfbase_ref:")
        A(f"global_load_dword v47, v2, s[{sT+1}:{sT+2}]")
        A("v_lshlrev_b32 v2, 7, v1"); A("v_add_u32 v2, 8192, v2")
        A(f"v_min_u32 v2, L_code_end-L_pfbase-4, v2")
        A(f"global_load_dword v47, v2, s[{sT+1}:{sT+2}]")
        A("L_nopf:")
    if mapping == "h32":
        A(f"s_and_b32 s{sHEAD}, s2, 31"); A(f"s_lshr_b32 s{sSPLIT}, s2, 5")
    else:
        A(f"s_lshr_b32 s{sHEAD}, s2, 3"); A(f"s_and_b32 s{sSPLIT}, s2, 7")
    A(f"s_mul_i32 s{sRB}, s2, 6554"); A(f"s_lshr_b32 s{sRB}, s{sRB}, 16")
    A(f"s_mul_i32 s{sT}, s{sRB}, 10"); A(f"s_sub_u32 s{sC10}, s2, s{sT}")
    A("v_lshrrev_b32 v45, 3, v1")
    A("v_and_b32 v46, 7, v1")
    A("s_waitcnt lgkmcnt(0)")
    A("s_barrier")
    A(f"s_load_dword s{sTAG}, s[26:27], 0")
    srd(WS, 26, None, WS_BYTES)
    A(f"s_cmp_lt_u32 s{sW}, 4"); A("s_cbranch_scc1 L_helper")
    base_st = list(stl)

    D = 48
    A("s_setprio 2")
    A(f"s_mul_i32 s{sT}, s{sHEAD}, 12582912"); A(f"s_add_u32 s{sT}, s{sT}, 11010048")
    srd(SA, 6, sT, 4096 * 384); srd(SB, 8, sT, 4096 * 384)
    A(f"s_sub_u32 s{sT}, s{sW}, 4"); A(f"s_mul_i32 s{sT}, s{sT}, {wstride}")
    A(f"s_mul_i32 s{sT+1}, s{sSPLIT}, {wgstride}"); A(f"s_add_u32 s{sG}, s{sT}, s{sT+1}")
    for g in range(1, 8): A(f"s_add_u32 s{sG+g}, s{sG+g-1}, {gstride}")
    A("v_mul_u32_u24 v2, 384, v45"); A("v_lshl_add_u32 v2, v46, 4, v2")
    for g in range(8):
        for j in range(3):
            r = D + 12 * g + 4 * j
            A(f"buffer_load_dwordx4 v[{r}:{r+3}], v2, {SA}, s{sG+g} offen offset:{128*j} {pol}")
    vreg = [D + 12 * g for g in range(8)]
    if vpre:
        A("s_setprio 1")
        vreg = [144 + 12 * g for g in range(vpre)] + [D + 12 * g for g in range(8 - vpre)]
        for g in range(vpre):
            for j in range(3):
                r = vreg[g] + 4 * j
                A(f"buffer_load_dwordx4 v[{r}:{r+3}], v2, {SB}, s{sG+g} offen offset:{128*j} {pol}")
    A("s_setprio 3")
    masks()
    A("v_mov_b32 v36, 0"); A("v_lshlrev_b32 v37, 4, v46")
    for g in range(8): A(f"v_mov_b32 v{8+g}, 0")
    ldspoll("L_mq", L_QCNT, 3, [f"ds_read_b128 v[{16+4*j}:{19+4*j}], v37 offset:{L_Q+128*j}" for j in range(3)], 36, 38)
    gettag()
    for g in range(0, 8, 2):
        A(f"s_waitcnt vmcnt({18 - 3*g + 3*vpre})")
        for k in range(12):
            for gg in (g, g + 1):
                A(f"v_dot2c_f32_bf16 v{8+gg}, v{D+12*gg+k}, v{16+k}")
    A("s_nop 0")
    for dp in ("quad_perm:[1,0,3,2]", "quad_perm:[2,3,0,1]", "row_half_mirror"):
        for g in range(8): A(f"v_add_f32_dpp v{8+g}, v{8+g}, v{8+g} {dp} {DPPF}")
    for k in range(4): A(f"v_cvt_pk_bf16_f32 v{28+k}, v{8+2*k}, v{9+2*k}")
    for k in range(4): unpack(8 + 2 * k, 9 + 2 * k, 28 + k)
    for g in range(8): A(f"v_mul_f32 v{8+g}, {f32(192 ** -0.5)}, v{8+g}")
    for k in range(4): A(f"v_cvt_pk_bf16_f32 v{28+k}, v{8+2*k}, v{9+2*k}")
    for k in range(4): unpack(8 + 2 * k, 9 + 2 * k, 28 + k)
    A("v_max3_f32 v40, v8, v9, v10"); A("v_max3_f32 v41, v11, v12, v13"); A("v_max3_f32 v40, v40, v14, v15"); A("v_max_f32 v40, v40, v41")
    allred("v_max_f32", 40, 41, [8, 16, 32])
    for g in range(8): A(f"v_sub_f32 v{28+g}, v{8+g}, v40")
    for g in range(8): A(f"v_mul_f32 v{28+g}, {f32(LOG2E)}, v{28+g}")
    for g in range(8): A(f"v_exp_f32 v{28+g}, v{28+g}")
    A("s_nop 0")
    for k in range(4): A(f"v_add_f32 v{28+k}, v{28+k}, v{32+k}")
    A("v_add_f32 v28, v28, v29"); A("v_add_f32 v30, v30, v31"); A("v_add_f32 v42, v28, v30")
    allred("v_add_f32", 42, 41, [8, 16, 32])
    A(f"v_mov_b32 v41, s{sTAG}"); A(f"v_mov_b32 v43, s{sTAG}")
    A(f"s_lshl_b32 s{sT}, s{sHEAD}, 6"); A(f"s_lshl_b32 s{sT+1}, s{sSPLIT}, 3"); A(f"s_add_u32 s{sT}, s{sT}, s{sT+1}")
    A(f"s_add_u32 s{sT}, s{sT}, s{sW}"); A(f"s_lshl_b32 s{sT}, s{sT}, 4"); A(f"s_add_u32 s{sT}, s{sT}, {E0 - 64}")
    A("s_mov_b64 exec, 1")
    A(f"buffer_store_dwordx4 v[40:43], v36, {WS}, s{sT} offen sc1")
    A("s_mov_b64 exec, -1")
    stamp([(4, 3), (11, 4)])
    A("s_setprio 1")
    for g in range(vpre, 8):
        for j in range(3):
            r = vreg[g] + 4 * j
            A(f"buffer_load_dwordx4 v[{r}:{r+3}], v2, {SB}, s{sG+g} offen offset:{128*j} {pol}")
    A("s_setprio 3")
    stamp([(11, 7)])
    A("v_bfe_u32 v39, v1, 4, 1"); A("v_lshlrev_b32 v39, 4, v39"); A("v_lshl_add_u32 v39, v46, 5, v39")
    A("v_lshrrev_b32 v3, 5, v1"); A("v_lshlrev_b32 v3, 12, v3"); A("v_and_b32 v37, 31, v1"); A("v_lshl_add_u32 v3, v37, 4, v3")
    A("v_lshlrev_b32 v37, 3, v1")
    A(f"s_mul_i32 s{sT}, s{sHEAD}, {3*4096}"); A(f"s_lshl_b32 s{sT+1}, s{sSPLIT}, 9"); A(f"s_add_u32 s{sT}, s{sT}, s{sT+1}")
    A(f"s_add_u32 s{sT}, s{sT}, {E4}"); A(f"s_add_u32 s{sT+1}, s{sT}, 8192")
    ldspoll("L_ms", L_SFLAG, 1, [f"ds_read_b64 v[40:41], v36 offset:{L_M}"], 36, 38)
    for g in range(8): A(f"v_sub_f32 v{8+g}, v{8+g}, v40")
    for g in range(8): A(f"v_mul_f32 v{8+g}, {f32(LOG2E)}, v{8+g}")
    for g in range(8): A(f"v_exp_f32 v{8+g}, v{8+g}")
    A("s_nop 0")
    for g in range(8): A(f"v_mul_f32 v{8+g}, v{8+g}, v41")
    for g in range(8): A(f"v_cvt_pk_bf16_f32 v{8+g}, v{8+g}, v{8+g}")
    A(f"v_mov_b32 v41, s{sTAG}"); A(f"v_mov_b32 v43, s{sTAG}"); A(f"v_mov_b32 v45, s{sTAG}"); A(f"v_mov_b32 v47, s{sTAG}")
    A("v_mov_b32 v38, 1")
    for g in range(8):
        a = 28 + 4 * (g & 1)
        for j in range(4): A(f"v_and_b32 v{a+j}, v{8+g}, v{4+j}")
        for j in range(3):
            if g >= vpre or (g == vpre - 1 and j == 2) or True:
                if g >= vpre: n = 3 * (7 - g) + (2 - j)
                else: n = 3 * (8 - vpre) + 1 + 3 * (vpre - 1 - g) + (2 - j)
                A(f"s_waitcnt vmcnt({n})")
            if j == 0: A("s_nop 0")
            r = vreg[g] + 4 * j
            c = "0" if g == 0 else f"v[{16+4*j}:{19+4*j}]"
            A(f"v_mfma_f32_16x16x32_bf16 v[{16+4*j}:{19+4*j}], v[{a}:{a+3}], v[{r}:{r+3}], {c}")
    A("s_mov_b32 exec_lo, 0x00ff00ff"); A("s_mov_b32 exec_hi, 0xff00ff00")
    A("s_nop 3")
    for j in range(3):
        for v in range(4):
            A(f"ds_add_f32 v39, v{16+4*j+v} offset:{L_OACC + 256*j + 4*v}")
    A("s_mov_b64 exec, 1")
    A(f"ds_add_rtn_u32 v38, v36, v38 offset:{L_OCNT}")
    A("s_mov_b64 exec, -1")
    A(f"ds_read_b32 v40, v37 offset:{L_OACC}"); A(f"ds_read_b32 v42, v37 offset:{L_OACC+4}")
    A(f"ds_read_b32 v44, v37 offset:{L_OACC+512}"); A(f"ds_read_b32 v46, v37 offset:{L_OACC+516}")
    A("s_waitcnt lgkmcnt(0)")
    A(f"v_readfirstlane_b32 s{sT+2}, v38")
    A("s_nop 0")
    A(f"s_cmp_lg_u32 s{sT+2}, 7"); A("s_cbranch_scc1 L_notlast")
    A(f"buffer_store_dwordx4 v[40:43], v3, {WS}, s{sT} offen sc1")
    A("s_mov_b32 exec_hi, 0")
    A(f"buffer_store_dwordx4 v[44:47], v3, {WS}, s{sT+1} offen sc1")
    A("s_mov_b64 exec, -1")
    stamp([(None, 8)])
    A("L_notlast:")
    stamp([(4, 6)])
    A(f"s_cmp_lg_u32 s{sW}, 4"); A("s_cbranch_scc1 L_main_end")
    A("s_cmp_ge_u32 s2, 160"); A("s_cbranch_scc1 L_main_end")
    srd(SA, 4, None, 1280); srd(SB, 22, None, 1280)
    A("v_and_b32 v8, 1, v1"); A("v_lshrrev_b32 v9, 5, v1"); A("v_lshl_add_u32 v9, v8, 1, v9"); A("v_lshlrev_b32 v9, 1, v9")
    A(f"s_lshl_b32 s{sT+3}, s2, 3")
    A(f"buffer_load_ushort v10, v9, {SA}, s{sT+3} offen")
    A("v_lshrrev_b32 v11, 1, v1"); A("v_lshlrev_b32 v11, 9, v11"); A("v_lshl_add_u32 v11, v8, 4, v11")
    A(f"s_lshr_b32 s{sT}, s2, 4"); A(f"s_mul_i32 s{sT}, s{sT}, 61440"); A(f"s_and_b32 s{sT+1}, s2, 15"); A(f"s_lshl_b32 s{sT+1}, s{sT+1}, 5")
    A(f"s_add_u32 s{sT}, s{sT}, s{sT+1}"); A(f"s_add_u32 s{sG}, s{sT}, {E5}")
    for k in range(1, 4): A(f"s_add_u32 s{sG+k}, s{sG+k-1}, 16384")
    A("v_mov_b32 v48, 0"); A("v_mov_b32 v50, 0")
    A("s_mov_b32 exec_hi, 0x0000ffff")
    poll("L_p3", [f"buffer_load_dwordx4 v[48:51], v11, {WS}, s{sG+3} offen sc1"], [48], sleep=4)
    A("s_mov_b64 exec, -1")
    stamp([(4, 12)])
    def finred(a, b):
        A("s_nop 1"); A(f"v_permlane32_swap_b32 v{a}, v{b}"); A(f"v_add_f32 v{a}, v{a}, v{b}")
        allred("v_add_f32", a, b, [16, 8, 4, 2])
        A(f"v_cvt_pk_bf16_f32 v{a}, v{a}, v{a}"); A(f"v_lshlrev_b32 v{a}, 16, v{a}")
    finred(48, 50)
    silu(48, 50)
    A("v_cvt_pk_bf16_f32 v12, v48, v48"); A("v_lshlrev_b32 v12, 16, v12")
    A("v_lshlrev_b32 v10, 16, v10")
    ldspoll("L_mo", L_OCNT, 8, [], 36, 38)
    poll("L_p5", [f"buffer_load_dwordx4 v[{48+4*k}:{51+4*k}], v11, {WS}, s{sG+k} offen sc1" for k in range(3)], [48, 52, 56], sleep=0)
    stamp([(4, 13)])
    A("v_add_f32 v48, v48, v52"); A("v_add_f32 v50, v50, v54"); A("v_add_f32 v48, v48, v56"); A("v_add_f32 v50, v50, v58")
    finred(48, 50)
    A("v_mul_f32 v48, v48, v12"); A("v_cvt_pk_bf16_f32 v48, v48, v48"); A("v_lshlrev_b32 v48, 16, v48")
    A("v_add_f32 v48, v48, v10"); A("v_cvt_pk_bf16_f32 v48, v48, v48")
    A("s_mov_b32 exec_lo, 3"); A("s_mov_b32 exec_hi, 3")
    A(f"buffer_store_short v48, v9, {SB}, s{sT+3} offen")
    A("s_cmp_lg_u32 s2, 0"); A("s_cbranch_scc1 L_noepoch")
    A("s_mov_b64 exec, 1")
    A(f"v_mov_b32 v49, s{sTAG}")
    A(f"buffer_store_dword v49, v36, {WS}, 0 offen sc1")
    A("L_noepoch:")
    A("s_mov_b64 exec, -1")
    if stamps:
        A("s_waitcnt vmcnt(0)")
    stamp([(4, 14)])
    A("L_main_end:")
    dump_stamps()
    A("s_endpgm")

    stl[:] = base_st
    A("L_helper:")
    A("s_setprio 3")
    srd(SA, 4, None, 1280)
    A("v_mul_u32_u24 v2, 20, v1")
    A(f"s_cmp_eq_u32 s{sW}, 3"); A("s_cbranch_scc1 L_h3")
    A(f"buffer_load_dwordx4 v[20:23], v2, {SA}, 0 offen"); A(f"buffer_load_dword v24, v2, {SA}, 0 offen offset:16")
    A("v_mul_u32_u24 v2, 20, v45"); A(f"s_mul_i32 s{sT}, s{sSPLIT}, 160")
    A(f"buffer_load_dword v25, v2, {SA}, s{sT} offen"); A(f"buffer_load_dwordx4 v[26:29], v2, {SA}, s{sT} offen offset:4")
    A(f"s_mul_i32 s{sT}, s{sSPLIT}, {80*12288}"); A(f"s_mul_i32 s{sT+1}, s{sHEAD}, 384"); A(f"s_add_u32 s{sT}, s{sT}, s{sT+1}")
    A(f"s_lshl_b32 s{sT+1}, s{sW}, 7"); A(f"s_add_u32 s{sG}, s{sT}, s{sT+1}")
    srd(SB, 10, None, 640 * 12288)
    for G in range(1, 10): A(f"s_add_u32 s{sG+G}, s{sG+G-1}, 12288")
    A(f"v_mul_u32_u24 v2, {10*12288}, v45"); A("v_lshl_add_u32 v2, v46, 4, v2")
    for G in range(10):
        A(f"buffer_load_dwordx4 v[{48+4*G}:{51+4*G}], v2, {SB}, s{sG+G} offen {pol}")
    masks()
    def helper_addrs():
        A("v_bfe_u32 v18, v1, 4, 1"); A("v_lshlrev_b32 v18, 5, v18"); A("v_lshl_add_u32 v18, v46, 6, v18")
        A("v_lshrrev_b32 v3, 5, v1"); A("v_lshl_add_u32 v18, v3, 4, v18")
        A("v_lshrrev_b32 v19, 2, v46"); A("v_lshlrev_b32 v19, 9, v19"); A("v_lshl_add_u32 v19, v45, 6, v19")
        A("v_and_b32 v3, 3, v1"); A("v_lshl_add_u32 v19, v3, 4, v19")
    helper_addrs()
    A("s_waitcnt vmcnt(10) lgkmcnt(0)")
    gettag()
    layernorm(10)
    for G in range(10):
        a = 20 + 4 * (G & 1)
        for j in range(4): A(f"v_and_b32 v{a+j}, v{8+G}, v{4+j}")
        A(f"s_waitcnt vmcnt({9-G})"); A("s_nop 0")
        c = "0" if G == 0 else "v[28:31]"
        A(f"v_mfma_f32_16x16x32_bf16 v[28:31], v[{a}:{a+3}], v[{48+4*G}:{51+4*G}], {c}")
    A(f"s_mul_i32 s{sT}, s{sHEAD}, 3"); A(f"s_add_u32 s{sT}, s{sT}, s{sW}"); A(f"s_lshl_b32 s{sT}, s{sT}, 12"); A(f"s_add_u32 s{sT}, s{sT}, {E1}")
    A(f"s_lshl_b32 s{sT+1}, s{sSPLIT}, 9"); A(f"s_add_u32 s{sT+1}, s{sT+1}, s{sT}")
    A("s_nop 1")
    fold_store(28, 32, 18, sT + 1)
    stamp([(0, 1)])
    def gather8(label, soff, sleep):
        poll(label, [f"buffer_load_dwordx4 v[{96+4*i}:{99+4*i}], v19, {WS}, s{soff} offen offset:{1024*i} sc1" for i in range(4)], [96, 100, 104, 108], sleep=sleep)
        A("v_add_f32 v96, v96, v100"); A("v_add_f32 v98, v98, v102"); A("v_add_f32 v104, v104, v108"); A("v_add_f32 v106, v106, v110")
        A("v_add_f32 v96, v96, v104"); A("v_add_f32 v98, v98, v106")
        A("s_nop 0")
        A("v_add_f32_dpp v97, v96, v96 row_shl:4 row_mask:0xf bank_mask:0x5"); A("v_add_f32_dpp v99, v98, v98 row_shl:4 row_mask:0xf bank_mask:0x5")
        A("v_add_f32_dpp v97, v96, v96 row_shr:4 row_mask:0xf bank_mask:0xa"); A("v_add_f32_dpp v99, v98, v98 row_shr:4 row_mask:0xf bank_mask:0xa")
    gather8("L_p1", sT, gsleep)
    A("v_cvt_pk_bf16_f32 v96, v97, v99")
    A("v_and_b32 v3, 3, v1"); A("v_lshlrev_b32 v3, 2, v3"); A("v_lshl_add_u32 v3, v45, 4, v3")
    A(f"s_lshl_b32 s{sT}, s{sW}, 7"); A(f"v_add_u32 v3, s{sT}, v3")
    A(f"ds_write_b32 v3, v96 offset:{L_Q}")
    A("v_mov_b32 v36, 0"); A("v_mov_b32 v38, 1")
    A("s_mov_b64 exec, 1")
    A(f"ds_add_u32 v36, v38 offset:{L_QCNT}")
    A("s_mov_b64 exec, -1")
    stamp([(0, 2)])
    A(f"s_cmp_lg_u32 s{sW}, 2"); A("s_cbranch_scc1 L_wo")
    A("v_lshlrev_b32 v3, 4, v1"); A(f"s_lshl_b32 s{sT}, s{sHEAD}, 10"); A(f"s_add_u32 s{sT}, s{sT}, {E0}")
    poll("L_p0", [f"buffer_load_dwordx4 v[96:99], v3, {WS}, s{sT} offen sc1"], [96], sleep=8)
    A("v_mov_b32 v40, v96")
    allred("v_max_f32", 40, 41, [1, 2, 8, 4, 16, 32])
    A("v_sub_f32 v96, v96, v40"); A(f"v_mul_f32 v96, {f32(LOG2E)}, v96"); A("v_exp_f32 v96, v96"); A("s_nop 0")
    A("v_mul_f32 v42, v96, v98")
    allred("v_add_f32", 42, 41, [1, 2, 8, 4, 16, 32])
    A("v_rcp_f32 v41, v42")
    A("s_mov_b64 exec, 1")
    A(f"ds_write_b64 v36, v[40:41] offset:{L_M}")
    A(f"ds_write_b32 v36, v38 offset:{L_SFLAG}")
    A("s_mov_b64 exec, -1")
    stamp([(2, 5)])
    A("s_branch L_wo")
    st_a = list(stl)
    A("L_h3:")
    A("s_cmp_ge_u32 s2, 240"); A("s_cbranch_scc1 L_help_end")
    A(f"buffer_load_dwordx4 v[20:23], v2, {SA}, 0 offen"); A(f"buffer_load_dword v24, v2, {SA}, 0 offen offset:16")
    A("v_lshlrev_b32 v2, 4, v45"); A(f"s_lshl_b32 s{sT}, s{sC10}, 7")
    A(f"buffer_load_dword v25, v2, {SA}, s{sT} offen"); A(f"buffer_load_dwordx3 v[26:28], v2, {SA}, s{sT} offen offset:4")
    A(f"s_mul_i32 s{sT}, s{sC10}, {64*3072}"); A(f"s_lshl_b32 s{sT+1}, s{sRB}, 7"); A(f"s_add_u32 s{sG}, s{sT}, s{sT+1}")
    srd(SB, 16, None, 640 * 3072); srd(SC, 18, None, 640 * 3072)
    for G in range(1, 8): A(f"s_add_u32 s{sG+G}, s{sG+G-1}, 3072")
    A(f"v_mul_u32_u24 v2, {8*3072}, v45"); A("v_lshl_add_u32 v2, v46, 4, v2")
    for G in range(8):
        A(f"buffer_load_dwordx4 v[{48+8*G}:{51+8*G}], v2, {SB}, s{sG+G} offen {pol}")
        A(f"buffer_load_dwordx4 v[{52+8*G}:{55+8*G}], v2, {SC}, s{sG+G} offen {pol}")
    masks()
    helper_addrs()
    A("s_waitcnt vmcnt(16) lgkmcnt(0)")
    gettag()
    layernorm(8)
    for G in range(8):
        a = 20 + 4 * (G & 1)
        for j in range(4): A(f"v_and_b32 v{a+j}, v{8+G}, v{4+j}")
        A(f"s_waitcnt vmcnt({14-2*G})"); A("s_nop 0")
        for m in range(2):
            c = "0" if G == 0 else f"v[{28+4*m}:{31+4*m}]"
            A(f"v_mfma_f32_16x16x32_bf16 v[{28+4*m}:{31+4*m}], v[{a}:{a+3}], v[{48+8*G+4*m}:{51+8*G+4*m}], {c}")
    A(f"s_mul_i32 s{sG}, s{sRB}, 10240"); A(f"s_add_u32 s{sG}, s{sG}, {E2}")
    A(f"s_add_u32 s{sG+1}, s{sG}, 4096"); A(f"s_add_u32 s{sG+2}, s{sG}, 8192")
    A(f"s_lshl_b32 s{sT}, s{sC10}, 10"); A(f"s_add_u32 s{sT}, s{sT}, s{sG}")
    A("s_nop 1")
    fold_store(28, 36, 18, sT, 0)
    fold_store(32, 40, 18, sT, 512)
    A(f"s_mul_i32 s{sT}, s{sRB}, {64*1280}"); A(f"s_lshl_b32 s{sT+1}, s{sC10}, 7"); A(f"s_add_u32 s{sT}, s{sT}, s{sT+1}")
    A(f"s_add_u32 s{sT+1}, s{sT}, 5120")
    srd(SB, 20, None, 1536 * 1280)
    A(f"v_mul_u32_u24 v2, {8*1280}, v45"); A("v_lshl_add_u32 v2, v46, 4, v2")
    def w2loads():
        for G in range(8):
            A(f"buffer_load_dwordx4 v[{48+4*G}:{51+4*G}], v2, {SB}, s{sT + (G>>2)} offen offset:{1280*(G&3)} {pol}")
    if not w2late: w2loads()
    poll("L_p2", [f"buffer_load_dwordx4 v[{96+4*i}:{99+4*i}], v19, {WS}, s{sG + (i>>2)} offen offset:{1024*(i&3)} sc1" for i in range(10)],
         [96 + 4 * i for i in range(10)], sleep=4)
    for (x, y) in ((0, 1), (2, 3), (4, 5), (6, 7), (8, 9), (0, 2), (4, 6), (0, 8), (0, 4)):
        A(f"v_add_f32 v{96+4*x}, v{96+4*x}, v{96+4*y}"); A(f"v_add_f32 v{98+4*x}, v{98+4*x}, v{98+4*y}")
    A("v_cvt_pk_bf16_f32 v96, v96, v98")
    A("v_mov_b32 v97, v96"); A("v_mov_b32 v98, v96"); A("s_nop 0")
    A("v_mov_b32_dpp v97, v96 row_shr:4 row_mask:0xf bank_mask:0xa")
    A("v_mov_b32_dpp v98, v96 row_shl:4 row_mask:0xf bank_mask:0x5")
    unpack(100, 101, 97); unpack(102, 103, 98)
    silu(100, 104); silu(101, 104)
    A("v_cvt_pk_bf16_f32 v97, v100, v101"); unpack(100, 101, 97)
    A("v_mul_f32 v100, v100, v102"); A("v_mul_f32 v101, v101, v103")
    A("v_cvt_pk_bf16_f32 v8, v100, v100"); A("v_cvt_pk_bf16_f32 v9, v101, v101")
    if w2late:
        A(f"s_setprio {wo_prio}")
        w2loads()
        A("s_setprio 3")
        A("s_waitcnt vmcnt(0)")
    A(f"s_mul_i32 s{sT}, s{sC10}, 61440"); A(f"s_lshl_b32 s{sT+1}, s{sRB}, 9"); A(f"s_add_u32 s{sT}, s{sT}, s{sT+1}")
    A(f"s_add_u32 s{sT}, s{sT}, {E5 + 96*512}")
    unit_mfma(48, 8, 9, 28, 20)
    fold_store(28, 36, 18, sT)
    stamp([(3, 15)])
    A("L_wo:")
    A("s_cmp_ge_u32 s2, 240"); A("s_cbranch_scc1 L_help_end")
    A(f"s_lshl_b32 s{sT+2}, s{sRB}, 2"); A(f"s_add_u32 s{sT+2}, s{sT+2}, s{sW}")
    A(f"s_mul_i32 s{sT}, s{sT+2}, {64*1280}"); A(f"s_lshl_b32 s{sT+1}, s{sC10}, 7"); A(f"s_add_u32 s{sT}, s{sT}, s{sT+1}")
    A(f"s_add_u32 s{sT+1}, s{sT}, 5120")
    srd(SB, 12, None, 6144 * 1280)
    A(f"v_mul_u32_u24 v2, {8*1280}, v45"); A("v_lshl_add_u32 v2, v46, 4, v2")
    A(f"s_lshl_b32 s{sG}, s{sT+2}, 12"); A(f"s_add_u32 s{sG}, s{sG}, {E4}")
    A(f"s_mul_i32 s{sG+1}, s{sC10}, 61440"); A(f"s_lshl_b32 s{sT+2}, s{sT+2}, 9"); A(f"s_add_u32 s{sG+1}, s{sG+1}, s{sT+2}")
    A(f"s_add_u32 s{sG+1}, s{sG+1}, {E5}")
    A(f"s_setprio {wo_prio}")
    for G in range(8):
        A(f"buffer_load_dwordx4 v[{48+4*G}:{51+4*G}], v2, {SB}, s{sT + (G>>2)} offen offset:{1280*(G&3)} {pol}")
    A("s_setprio 3")
    stamp([(0, 9)])
    gather8("L_p4", sG, 0)
    stamp([(0, 10)])
    A("v_cvt_pk_bf16_f32 v8, v97, v97"); A("v_cvt_pk_bf16_f32 v9, v99, v99")
    A("s_nop 0")
    unit_mfma(48, 8, 9, 28, 20)
    fold_store(28, 36, 18, sG + 1)
    stamp([(0, 11)])
    A("L_help_end:")
    dump_stamps()
    A("L_end:")
    A("s_endpgm")
    A("L_code_end:")
    if prefetch:
        A(".set L_pfbase, L_pfbase_ref - 12")
    A('.section .rodata,"a"'); A(".p2align 6")
    A(f".amdhsa_kernel {NAME}_kernel")
    A("  .amdhsa_next_free_vgpr 168"); A("  .amdhsa_next_free_sgpr 96"); A("  .amdhsa_accum_offset 168")
    A("  .amdhsa_group_segment_fixed_size 0"); A("  .amdhsa_kernarg_size 96"); A("  .amdhsa_user_sgpr_count 2")
    A("  .amdhsa_user_sgpr_kernarg_segment_ptr 1"); A("  .amdhsa_system_sgpr_workgroup_id_x 1")
    A("  .amdhsa_float_denorm_mode_32 3")
    A(".end_amdhsa_kernel")
    return "\n".join(L) + "\n"

if __name__ == "__main__":
    import hazard, ast
    out = sys.argv[1]
    kw = {}
    for a in sys.argv[2:]:
        k, v = a.split("=", 1)
        try: kw[k] = ast.literal_eval(v)
        except Exception: kw[k] = v
    t = gen(**kw)
    e = hazard.check(t)
    for x in e[:30]: print("HAZARD", x)
    open(out, "w").write(HDR + t)
```

```python
import sys, struct
NAME = "recurrent_scan__sliding_block_cached__glu_gated_swiglu__decode"

def f32(x): return "0x%08x" % struct.unpack("<I", struct.pack("<f", x))[0]

E0, E1, E2, E4, E5 = 0x1000, 0x10000, 0x70000, 0xB0000, 0x110000
WS_BYTES = 0x1A6000
TAGK = 0x9E3779B0
L_Q, L_QCNT, L_OCNT, L_SFLAG, L_M, L_LOC, L_KCNT, L_VCNT, L_WCNT, L_ST, L_OACC = 0, 384, 388, 392, 400, 408, 412, 416, 420, 448, 3072
LDS_BYTES = 3072 + 8 * 768
DPPF = "row_mask:0xf bank_mask:0xf"
LOG2E = 1.4426950408889634

def gen(stamps=None, wstride=8*3072, wgstride=3072, gstride=64*3072, vpre=0, prefetch=True, pol="nt",
        wo_prio=0, wo_early=0, hold=0, e1pre=8, e1sleep=4, e0pre=8, e0sleep=8, vgate=8, p4gate=True, bar3=5, ffn_gate="k",
        brk=1, p4sleep=0, p5sleep=0, p5gate="w", masked=True, n1=24, forceslow=False):
    L = []
    A = L.append
    sW, sTAG, sHEAD, sSPLIT = 28, 29, 30, 31
    WS, SA, SB, SC = "s[32:35]", "s[36:39]", "s[40:43]", "s[44:47]"
    sRB, sC10, sSPIN = 48, 49, 50
    sT = 51
    sG = 56
    sRBL, sTAGX = 66, 67
    sST = 68
    sTHR, sLOC = 88, 89
    sP = 92
    nst = [0]
    stl = []
    def stamp(name):
        if not stamps or name not in stamps: return
        r = sST + 2 * len(stl)
        assert len(stl) < 10
        stl.append(stamps[name])
        A(f"s_memrealtime s[{r}:{r+1}]")
    def dump_stamps():
        if not stamps: return
        A("s_waitcnt lgkmcnt(0)")
        A(f"s_lshl_b32 s{sT}, s2, 7"); A(f"s_add_u32 s{sT}, s{sT}, {64<<20}")
        A(f"s_add_u32 s{sT+1}, s26, s{sT}"); A(f"s_addc_u32 s{sT+2}, s27, 0")
        A("s_mov_b64 exec, 1")
        A("v_mov_b32 v0, 0")
        for k, pairs in enumerate(stl):
            r = sST + 2 * k
            for (wv, slot) in pairs:
                lab2 = f"L_nost{nst[0]}"; nst[0] += 1
                if wv is not None:
                    A(f"s_cmp_lg_u32 s{sW}, {wv}"); A(f"s_cbranch_scc1 {lab2}")
                else:
                    A(f"s_cmp_eq_u32 s{r}, 0"); A(f"s_cbranch_scc1 {lab2}")
                A(f"v_mov_b32 v2, s{r}"); A(f"v_mov_b32 v3, s{r+1}")
                A(f"global_store_dwordx2 v0, v[2:3], s[{sT+1}:{sT+2}] offset:{8*slot}")
                A(f"{lab2}:")
        A("s_mov_b64 exec, -1")
    def srd(name, lo, off_sreg, size):
        b = int(name[2:name.index(":")])
        if off_sreg is None:
            A(f"s_mov_b64 s[{b}:{b+1}], s[{lo}:{lo+1}]")
        else:
            A(f"s_add_u32 s{b}, s{lo}, s{off_sreg}"); A(f"s_addc_u32 s{b+1}, s{lo+1}, 0")
        A(f"s_mov_b32 s{b+2}, {size}"); A(f"s_mov_b32 s{b+3}, 0x20000")
    def masks():
        A("v_and_b32 v3, 1, v1"); A("v_lshlrev_b32 v3, 4, v3"); A("v_mov_b32 v7, 0xffff"); A("v_lshlrev_b32 v3, v3, v7")
        A("v_bfe_u32 v7, v1, 1, 2")
        A("v_cmp_eq_u32 vcc, 0, v7"); A(f"v_cmp_eq_u32 s[{sT+1}:{sT+2}], 1, v7"); A(f"v_cmp_eq_u32 s[{sT+3}:{sT+4}], 2, v7")
        A("v_cndmask_b32 v4, 0, v3, vcc")
        A("v_cmp_eq_u32 vcc, 3, v7")
        A(f"v_cndmask_b32 v5, 0, v3, s[{sT+1}:{sT+2}]"); A(f"v_cndmask_b32 v6, 0, v3, s[{sT+3}:{sT+4}]")
        A("v_cndmask_b32 v7, 0, v3, vcc")
    def allred(op, x, t, steps):
        dp = {1: "quad_perm:[1,0,3,2]", 2: "quad_perm:[2,3,0,1]", 4: "row_ror:4", 8: "row_ror:8"}
        for s in steps:
            if s in dp:
                A("s_nop 1"); A(f"{op}_dpp v{x}, v{x}, v{x} {dp[s]} {DPPF}")
            else:
                A(f"v_mov_b32 v{t}, v{x}"); A("s_nop 1"); A(f"v_permlane{s}_swap_b32 v{x}, v{t}"); A(f"{op} v{x}, v{x}, v{t}")
    ALL = [1, 2, 8, 4, 16, 32]
    def unpack(lo, hi, src):
        A(f"v_lshlrev_b32 v{lo}, 16, v{src}"); A(f"v_and_b32 v{hi}, 0xffff0000, v{src}")
    def gettag(x=False):
        A(f"s_and_b32 s{sTAG}, s{sTAG}, -16"); A(f"s_add_u32 s{sTAG}, s{sTAG}, {TAGK:#x}")
        if x:
            A(f"s_getreg_b32 s{sTAGX}, hwreg(HW_REG_XCC_ID, 0, 4)")
            if forceslow: A(f"s_lshr_b32 s{sTAGX}, s2, 4")
            A(f"s_or_b32 s{sTAGX}, s{sTAGX}, s{sTAG}")
    def poll(label, loads, regs, sleep, tag=None, tries=0x8000, onfail=None):
        tag = sTAG if tag is None else tag
        A(f"s_mov_b32 s{sSPIN}, {tries}")
        A(f"{label}:")
        for l in loads: A(l)
        A("s_waitcnt vmcnt(0)")
        ts = []
        for r in regs:
            A(f"v_bitop3_b32 v{r+1}, s{tag}, v{r+1}, v{r+3} bitop3:0x7e"); ts.append(r + 1)
        while len(ts) > 1:
            if len(ts) >= 3:
                A(f"v_or3_b32 v{ts[0]}, v{ts[0]}, v{ts[1]}, v{ts[2]}"); ts = ts[3:] + [ts[0]]
            else:
                A(f"v_or_b32 v{ts[0]}, v{ts[0]}, v{ts[1]}"); ts = [ts[0]]
        A(f"v_cmp_ne_u32 vcc, 0, v{ts[0]}")
        A(f"s_cbranch_vccz {label}_ok")
        if sleep: A(f"s_sleep {sleep}")
        A(f"s_sub_u32 s{sSPIN}, s{sSPIN}, 1")
        A(f"s_cbranch_scc0 {label}")
        if onfail: onfail()
        A(f"{label}_ok:")
    def mpoll(label, loads, regs, tmp, sleep, tag=None, thr=None, tries=0x8000, onfail=None):
        tag = sTAG if tag is None else tag
        n = len(loads)
        A(f"s_mov_b32 s{sSPIN}, {tries}")
        for l in loads: A(l)
        A(f"{label}:")
        A("s_waitcnt vmcnt(0)")
        for k, r in enumerate(regs): A(f"v_bitop3_b32 v{tmp+k}, s{tag}, v{r+1}, v{r+3} bitop3:0x7e")
        for k in range(n):
            A(f"v_cmp_lt_u32 s[{sP+2*k}:{sP+2*k+1}], {'0' if thr is None else 's%d' % thr}, v{tmp+k}")
        A(f"s_or_b64 vcc, s[{sP}:{sP+1}], s[{sP+2}:{sP+3}]")
        for k in range(2, n): A(f"s_or_b64 vcc, vcc, s[{sP+2*k}:{sP+2*k+1}]")
        A(f"s_cbranch_scc0 {label}_ok")
        if sleep: A(f"s_sleep {sleep}")
        for k, l in enumerate(loads):
            if masked:
                A(f"s_mov_b64 exec, s[{sP+2*k}:{sP+2*k+1}]"); A(f"s_cbranch_execz {label}_s{k}")
            A(l)
            if masked: A(f"{label}_s{k}:")
        if masked: A("s_mov_b64 exec, -1")
        A(f"s_sub_u32 s{sSPIN}, s{sSPIN}, 1")
        A(f"s_cbranch_scc0 {label}")
        if onfail: onfail()
        A("s_waitcnt vmcnt(0)")
        A(f"{label}_ok:")
    def ldspoll(label, flag_off, want, reads, vz, vflag, cmp="ne"):
        A(f"s_mov_b32 s{sSPIN}, 0x200000")
        A(f"{label}:")
        A(f"ds_read_b32 v{vflag}, v{vz} offset:{flag_off}")
        for l in reads: A(l)
        A("s_waitcnt lgkmcnt(0)")
        A(f"v_cmp_{cmp}_u32 vcc, {want}, v{vflag}")
        A(f"s_cbranch_vccz {label}_ok")
        A("s_sleep 1")
        A(f"s_sub_u32 s{sSPIN}, s{sSPIN}, 1")
        A(f"s_cbranch_scc0 {label}")
        A(f"{label}_ok:")
    def fold(acc, y, tag=None, settag=True):
        tag = sTAG if tag is None else tag
        A(f"v_permlane32_swap_b32 v{acc}, v{acc+2}")
        A(f"v_permlane32_swap_b32 v{acc+1}, v{acc+3}")
        if settag:
            A(f"v_mov_b32 v{y+1}, s{tag}"); A(f"v_mov_b32 v{y+3}, s{tag}")
        else:
            A("s_nop 0")
        A(f"v_add_f32_dpp v{y}, v{acc+2}, v{acc} row_ror:8 {DPPF}")
        A(f"v_add_f32_dpp v{y+2}, v{acc+3}, v{acc+1} row_ror:8 {DPPF}")
    def exec_pub():
        A("s_mov_b32 exec_lo, 0x00ff00ff"); A("s_mov_b32 exec_hi, 0x00ff00ff")
    nfl = [0]
    def flavoured(lines):
        lab = f"L_fl{nfl[0]}"; nfl[0] += 1
        A(f"s_cmp_eq_u32 s{sLOC}, 1"); A(f"s_cbranch_scc1 {lab}_p")
        for l in lines: A(l + " sc1")
        A(f"s_branch {lab}_e")
        A(f"{lab}_p:")
        for l in lines: A(l)
        A(f"{lab}_e:")
    def layernorm(nown):
        for k in range(5): unpack(30 + 2 * k, 31 + 2 * k, 20 + k)
        A("v_add_f32 v40, v30, v31"); A("v_add_f32 v41, v32, v33"); A("v_add_f32 v42, v34, v35"); A("v_add_f32 v43, v36, v37")
        A("v_add_f32 v44, v38, v39"); A("v_add_f32 v40, v40, v41"); A("v_add_f32 v42, v42, v43"); A("v_add_f32 v40, v40, v44")
        A("v_add_f32 v40, v40, v42")
        allred("v_add_f32", 40, 41, ALL)
        A(f"v_mul_f32 v40, {f32(1/640)}, v40")
        for k in range(10): A(f"v_sub_f32 v{30+k}, v{30+k}, v40")
        A("v_mul_f32 v42, v30, v30"); A("v_mul_f32 v43, v31, v31")
        for k in range(2, 10): A(f"v_fmac_f32 v{42 + k % 2}, v{30+k}, v{30+k}")
        A("v_add_f32 v42, v42, v43")
        allred("v_add_f32", 42, 41, ALL)
        A(f"v_mul_f32 v42, {f32(1/640)}, v42")
        A("v_cvt_pk_bf16_f32 v41, v40, v42")
        unpack(40, 42, 41)
        A(f"v_add_f32 v42, {f32(1e-5)}, v42")
        A("v_cvt_pk_bf16_f32 v42, v42, v42"); A("v_lshlrev_b32 v42, 16, v42")
        A("v_sqrt_f32 v42, v42")
        for k in range(nown // 2): unpack(30 + 2 * k, 31 + 2 * k, 25 + k)
        A("v_cvt_pk_bf16_f32 v42, v42, v42"); A("v_lshlrev_b32 v42, 16, v42")
        A("v_rcp_f32 v42, v42")
        for k in range(nown): A(f"v_sub_f32 v{30+k}, v{30+k}, v40")
        for k in range(nown // 2): A(f"v_cvt_pk_bf16_f32 v{25+k}, v{30+2*k}, v{31+2*k}")
        for k in range(nown // 2): unpack(30 + 2 * k, 31 + 2 * k, 25 + k)
        for k in range(nown): A(f"v_mul_f32 v{30+k}, v{30+k}, v42")
        for k in range(nown): A(f"v_cvt_pk_bf16_f32 v{8+k}, v{30+k}, v{30+k}")
    def silu(x, t):
        A(f"v_mul_f32 v{t}, {f32(-LOG2E)}, v{x}"); A(f"v_exp_f32 v{t}, v{t}"); A("s_nop 0")
        A(f"v_add_f32 v{t}, 1.0, v{t}"); A(f"v_rcp_f32 v{t}, v{t}"); A("s_nop 0")
        A(f"v_mul_f32 v{x}, v{x}, v{t}")
    def unit_mfma(d0, dupe, dupo, acc, at):
        for G in range(8):
            a = at + 4 * (G & 1)
            src = dupo if G & 1 else dupe
            k = G >> 1
            for j in range(4):
                A(f"v_and_b32_dpp v{a+j}, v{src}, v{4+j} quad_perm:[{k},{k},{k},{k}] {DPPF}")
            if G > 0:
                pa = at + 4 * ((G - 1) & 1); pd = d0 + 4 * (G - 1)
                c = "0" if G == 1 else f"v[{acc}:{acc+3}]"
                A(f"v_mfma_f32_16x16x32_bf16 v[{acc}:{acc+3}], v[{pa}:{pa+3}], v[{pd}:{pd+3}], {c}")
        A("s_nop 0")
        pa = at + 4; pd = d0 + 28
        A(f"v_mfma_f32_16x16x32_bf16 v[{acc}:{acc+3}], v[{pa}:{pa+3}], v[{pd}:{pd+3}], v[{acc}:{acc+3}]")
        A("s_nop 7")
    def nb():
        if brk: A("s_nop 0")

    A(f"; @launch grid=(256,1,1) block=(768,1,1) lds={LDS_BYTES}")
    A('.amdgcn_target "amdgcn-amd-amdhsa--gfx950"')
    A(".text"); A(f".globl {NAME}_kernel"); A(".p2align 8"); A(f".type {NAME}_kernel,@function")
    A(f"{NAME}_kernel:")
    A("s_cmp_ge_u32 s2, 256"); A("s_cbranch_scc1 L_end")
    A("s_load_dwordx16 s[4:19], s[0:1], 0")
    A("s_load_dwordx8 s[20:27], s[0:1], 64")
    if stamps:
        for k in range(10): A(f"s_mov_b64 s[{sST+2*k}:{sST+2*k+1}], 0")
    stamp("start")
    if hold: A("s_memrealtime s[90:91]")
    A("v_lshrrev_b32 v2, 6, v0")
    A("v_and_b32 v1, 63, v0")
    A(f"v_readfirstlane_b32 s{sW}, v2")
    A("v_lshlrev_b32 v2, 2, v0"); A("v_mov_b32 v3, 0")
    A("ds_write_b32 v2, v3")
    if prefetch:
        A(f"s_cmp_lg_u32 s{sW}, 11"); A("s_cbranch_scc1 L_nopf")
        A(f"s_getpc_b64 s[{sT+1}:{sT+2}]")
        A("L_pfbase:")
        A("v_lshlrev_b32 v2, 7, v1")
        A(f"v_min_u32 v2, L_code_end-L_pfbase-4, v2")
        A(f"global_load_dword v47, v2, s[{sT+1}:{sT+2}]")
        A("v_lshlrev_b32 v2, 7, v1"); A("v_add_u32 v2, 8192, v2")
        A(f"v_min_u32 v2, L_code_end-L_pfbase-4, v2")
        A(f"global_load_dword v47, v2, s[{sT+1}:{sT+2}]")
        A("L_nopf:")
    A(f"s_and_b32 s{sHEAD}, s2, 31"); A(f"s_lshr_b32 s{sSPLIT}, s2, 5")
    A("v_lshrrev_b32 v45, 3, v1")
    A("v_and_b32 v46, 7, v1")
    D = 48
    A(f"s_cmp_ge_u32 s{sW}, 4"); A("s_cbranch_scc1 L_main")
    A("s_setprio 3")
    A(f"s_lshr_b32 s{sC10}, s2, 3"); A(f"s_mul_i32 s{sRBL}, s{sC10}, 26"); A(f"s_lshr_b32 s{sRBL}, s{sRBL}, 8")
    A(f"s_mul_i32 s{sT}, s{sRBL}, 10"); A(f"s_sub_u32 s{sC10}, s{sC10}, s{sT}")
    A(f"s_and_b32 s{sT}, s2, 7"); A(f"s_mul_i32 s{sT}, s{sT}, 3"); A(f"s_add_u32 s{sRB}, s{sT}, s{sRBL}")
    A("v_mul_u32_u24 v2, 20, v1")
    A(f"s_cmp_eq_u32 s{sW}, 3"); A("s_cbranch_scc1 L_h3")
    A("v_mul_u32_u24 v3, 20, v45"); A(f"s_mul_i32 s{sT+2}, s{sSPLIT}, 160")
    A(f"s_mul_i32 s{sT}, s{sSPLIT}, {80*12288}"); A(f"s_mul_i32 s{sT+1}, s{sHEAD}, 384"); A(f"s_add_u32 s{sT}, s{sT}, s{sT+1}")
    A(f"s_lshl_b32 s{sT+1}, s{sW}, 7"); A(f"s_add_u32 s{sG}, s{sT}, s{sT+1}")
    A(f"s_movk_i32 s{sT+1}, 12288")
    for G in range(1, 10): A(f"s_add_u32 s{sG+G}, s{sG+G-1}, s{sT+1}")
    A(f"v_mul_u32_u24 v8, {10*12288}, v45"); A("v_lshl_add_u32 v8, v46, 4, v8")
    A("s_waitcnt lgkmcnt(0)")
    srd(SA, 4, None, 1280)
    A(f"s_load_dword s{sTAG}, s[26:27], 0")
    srd(SB, 10, None, 640 * 12288)
    A(f"buffer_load_dwordx4 v[20:23], v2, {SA}, 0 offen"); A(f"buffer_load_dword v24, v2, {SA}, 0 offen offset:16")
    A(f"buffer_load_dword v25, v3, {SA}, s{sT+2} offen"); A(f"buffer_load_dwordx4 v[26:29], v3, {SA}, s{sT+2} offen offset:4")
    for G in range(10):
        A(f"buffer_load_dwordx4 v[{48+4*G}:{51+4*G}], v8, {SB}, s{sG+G} offen {pol}")
    A("s_barrier")
    A("s_branch L_h012b")
    A("L_h3:")
    A("v_lshlrev_b32 v3, 4, v45"); A(f"s_lshl_b32 s{sT+2}, s{sC10}, 7")
    A(f"s_mul_i32 s{sT}, s{sC10}, {64*3072}"); A(f"s_lshl_b32 s{sT+1}, s{sRB}, 7"); A(f"s_add_u32 s{sG}, s{sT}, s{sT+1}")
    A(f"s_movk_i32 s{sT+1}, 6144")
    for G in range(1, 4): A(f"s_add_u32 s{sG+G}, s{sG+G-1}, s{sT+1}")
    A(f"v_mul_u32_u24 v8, {8*3072}, v45"); A("v_lshl_add_u32 v8, v46, 4, v8")
    A("s_waitcnt lgkmcnt(0)")
    A(f"s_load_dword s{sTAG}, s[26:27], 0")
    A("s_cmp_ge_u32 s2, 240"); A("s_cbranch_scc1 L_h3skip")
    srd(SA, 4, None, 1280)
    srd(SB, 16, None, 640 * 3072); srd(SC, 18, None, 640 * 3072)
    A(f"buffer_load_dwordx4 v[20:23], v2, {SA}, 0 offen"); A(f"buffer_load_dword v24, v2, {SA}, 0 offen offset:16")
    A(f"buffer_load_dword v25, v3, {SA}, s{sT+2} offen"); A(f"buffer_load_dwordx3 v[26:28], v3, {SA}, s{sT+2} offen offset:4")
    for G in range(8):
        A(f"buffer_load_dwordx4 v[{48+8*G}:{51+8*G}], v8, {SB}, s{sG+(G>>1)} offen offset:{3072*(G&1)} {pol}")
        A(f"buffer_load_dwordx4 v[{52+8*G}:{55+8*G}], v8, {SC}, s{sG+(G>>1)} offen offset:{3072*(G&1)} {pol}")
        if G == bar3 - 1: A("s_barrier")
    A("s_branch L_h3b")
    A("L_h3skip:")
    A("s_barrier")
    A("s_branch L_h3c")
    base_st = list(stl)

    A("L_main:")
    A("s_setprio 2")
    A(f"s_sub_u32 s{sT}, s{sW}, 4"); A(f"s_mul_i32 s{sT}, s{sT}, {wstride}")
    A(f"s_mul_i32 s{sT+1}, s{sSPLIT}, {wgstride}"); A(f"s_add_u32 s{sG}, s{sT}, s{sT+1}")
    A(f"s_mov_b32 s{sT+1}, {gstride}")
    for g in range(1, 8): A(f"s_add_u32 s{sG+g}, s{sG+g-1}, s{sT+1}")
    A(f"s_mul_i32 s{sT}, s{sHEAD}, 12582912"); A(f"s_add_u32 s{sT}, s{sT}, 11010048")
    A("v_mul_u32_u24 v2, 384, v45"); A("v_lshl_add_u32 v2, v46, 4, v2")
    A("s_waitcnt lgkmcnt(0)")
    srd(SA, 6, sT, 4096 * 384); srd(SB, 8, sT, 4096 * 384)
    A(f"s_load_dword s{sTAG}, s[26:27], 0")
    A("s_barrier")
    for g in range(8):
        for j in range(3):
            r = D + 12 * g + 4 * j
            A(f"buffer_load_dwordx4 v[{r}:{r+3}], v2, {SA}, s{sG+g} offen offset:{128*j} {pol}"); nb()
    vreg = [144 + 12 * g for g in range(vpre)] + [D + 12 * g for g in range(8 - vpre)]
    for g in range(vpre):
        for j in range(3):
            r = vreg[g] + 4 * j
            A(f"buffer_load_dwordx4 v[{r}:{r+3}], v2, {SB}, s{sG+g} offen offset:{128*j} {pol}"); nb()
    A("s_setprio 3")
    stamp("kissued")
    srd(WS, 26, None, WS_BYTES)
    masks()
    A("v_mov_b32 v36, 0"); A("v_lshlrev_b32 v37, 4, v46")
    for g in range(8): A(f"v_mov_b32 v{8+g}, 0")
    ldspoll("L_mq", L_QCNT, 3, [f"ds_read_b128 v[{16+4*j}:{19+4*j}], v37 offset:{L_Q+128*j}" for j in range(3)], 36, 38)
    gettag()
    stamp("qseen")
    for g in range(0, 8, 2):
        A(f"s_waitcnt vmcnt({18 - 3*g + 3*vpre})")
        for k in range(12):
            for gg in (g, g + 1):
                A(f"v_dot2c_f32_bf16 v{8+gg}, v{D+12*gg+k}, v{16+k}")
    stamp("kdone")
    A("s_nop 0")
    for dp in ("quad_perm:[1,0,3,2]", "quad_perm:[2,3,0,1]", "row_half_mirror"):
        for g in range(8): A(f"v_add_f32_dpp v{8+g}, v{8+g}, v{8+g} {dp} {DPPF}")
    for k in range(4): A(f"v_cvt_pk_bf16_f32 v{28+k}, v{8+2*k}, v{9+2*k}")
    for k in range(4): unpack(8 + 2 * k, 9 + 2 * k, 28 + k)
    for g in range(8): A(f"v_mul_f32 v{8+g}, {f32(192 ** -0.5)}, v{8+g}")
    for k in range(4): A(f"v_cvt_pk_bf16_f32 v{28+k}, v{8+2*k}, v{9+2*k}")
    for k in range(4): unpack(8 + 2 * k, 9 + 2 * k, 28 + k)
    A("v_max3_f32 v40, v8, v9, v10"); A("v_max3_f32 v41, v11, v12, v13"); A("v_max3_f32 v40, v40, v14, v15"); A("v_max_f32 v40, v40, v41")
    allred("v_max_f32", 40, 41, [8, 16, 32])
    for g in range(8): A(f"v_sub_f32 v{28+g}, v{8+g}, v40")
    for g in range(8): A(f"v_mul_f32 v{28+g}, {f32(LOG2E)}, v{28+g}")
    for g in range(8): A(f"v_exp_f32 v{28+g}, v{28+g}")
    A("s_nop 0")
    for k in range(4): A(f"v_add_f32 v{28+k}, v{28+k}, v{32+k}")
    A("v_add_f32 v28, v28, v29"); A("v_add_f32 v30, v30, v31"); A("v_add_f32 v41, v28, v30")
    allred("v_add_f32", 41, 42, [8, 16, 32])
    A(f"s_lshl_b32 s{sT}, s{sW}, 3"); A(f"v_mov_b32 v3, s{sT}"); A("v_mov_b32 v38, 1")
    A("s_mov_b64 exec, 1")
    A(f"ds_write_b64 v3, v[40:41] offset:{L_ST - 32}")
    A(f"ds_add_u32 v36, v38 offset:{L_KCNT}")
    A("s_mov_b64 exec, -1")
    stamp("e0pub")
    A("s_setprio 1")
    for g in range(vpre, 8):
        for j in range(3):
            r = vreg[g] + 4 * j
            A(f"buffer_load_dwordx4 v[{r}:{r+3}], v2, {SB}, s{sG+g} offen offset:{128*j} {pol}"); nb()
        if g == vgate - 1:
            A("s_mov_b64 exec, 1"); A(f"ds_add_u32 v36, v38 offset:{L_VCNT}"); A("s_mov_b64 exec, -1")
    A("s_setprio 3")
    stamp("vissued")
    A("v_bfe_u32 v39, v1, 4, 1"); A("v_lshlrev_b32 v39, 4, v39"); A("v_lshl_add_u32 v39, v46, 5, v39")
    A("v_lshrrev_b32 v3, 5, v1"); A("v_lshl_add_u32 v39, v3, 3, v39")
    A(f"s_mul_i32 s{sT}, s{sW}, 768"); A(f"v_add_u32 v39, s{sT}, v39")
    A("v_mul_u32_u24 v0, 3072, v3"); A("v_and_b32 v37, 31, v1"); A("v_lshl_add_u32 v0, v37, 3, v0")
    A("v_lshlrev_b32 v3, 12, v3"); A("v_lshl_add_u32 v3, v37, 4, v3")
    A("v_lshlrev_b32 v37, 3, v1")
    A(f"s_mul_i32 s{sT}, s{sHEAD}, {3*4096}"); A(f"s_lshl_b32 s{sT+1}, s{sSPLIT}, 9"); A(f"s_add_u32 s{sT}, s{sT}, s{sT+1}")
    A(f"s_add_u32 s{sT}, s{sT}, {E4}"); A(f"s_add_u32 s{sT+1}, s{sT}, 8192")
    ldspoll("L_ms", L_SFLAG, 1, [f"ds_read_b96 v[40:42], v36 offset:{L_M}"], 36, 38)
    stamp("sseen")
    A(f"v_readfirstlane_b32 s{sLOC}, v42")
    for g in range(8): A(f"v_sub_f32 v{8+g}, v{8+g}, v40")
    for g in range(8): A(f"v_mul_f32 v{8+g}, {f32(LOG2E)}, v{8+g}")
    for g in range(8): A(f"v_exp_f32 v{8+g}, v{8+g}")
    A("s_nop 0")
    for g in range(8): A(f"v_mul_f32 v{8+g}, v{8+g}, v41")
    for g in range(8): A(f"v_cvt_pk_bf16_f32 v{8+g}, v{8+g}, v{8+g}")
    A(f"v_mov_b32 v41, s{sTAG}"); A(f"v_mov_b32 v43, s{sTAG}"); A(f"v_mov_b32 v45, s{sTAG}"); A(f"v_mov_b32 v47, s{sTAG}")
    A("v_mov_b32 v38, 1")
    for g in range(8):
        a = 28 + 4 * (g & 1)
        for j in range(4): A(f"v_and_b32 v{a+j}, v{8+g}, v{4+j}")
        for j in range(3):
            A(f"s_waitcnt vmcnt({3 * (7 - g) + (2 - j)})")
            if j == 0: A("s_nop 0")
            r = vreg[g] + 4 * j
            c = "0" if g == 0 else f"v[{16+4*j}:{19+4*j}]"
            A(f"v_mfma_f32_16x16x32_bf16 v[{16+4*j}:{19+4*j}], v[{a}:{a+3}], v[{r}:{r+3}], {c}")
    stamp("mfmadone")
    A("s_nop 3")
    for j in range(3):
        a = 16 + 4 * j
        A(f"v_permlane32_swap_b32 v{a}, v{a+2}"); A(f"v_permlane32_swap_b32 v{a+1}, v{a+3}")
    for j in range(3):
        a = 16 + 4 * j
        A(f"v_add_f32_dpp v{a}, v{a+2}, v{a} row_ror:8 {DPPF}"); A(f"v_add_f32_dpp v{a+1}, v{a+3}, v{a+1} row_ror:8 {DPPF}")
    exec_pub()
    for j in range(3):
        A(f"ds_write_b64 v39, v[{16+4*j}:{17+4*j}] offset:{L_OACC - 4*768 + 256*j}")
    A("s_mov_b64 exec, 1")
    A(f"ds_add_rtn_u32 v38, v36, v38 offset:{L_OCNT}")
    A("s_mov_b64 exec, -1")
    for w in range(8): A(f"ds_read_b64 v[{48+2*w}:{49+2*w}], v37 offset:{L_OACC + 768*w}")
    for w in range(4): A(f"ds_read_b64 v[{64+2*w}:{65+2*w}], v0 offset:{L_OACC + 768*w + 512}")
    A("s_waitcnt lgkmcnt(12)" if not stamps else "s_waitcnt lgkmcnt(0)")
    A(f"v_readfirstlane_b32 s{sT+2}, v38")
    A("s_nop 0")
    A(f"s_cmp_lg_u32 s{sT+2}, 7"); A("s_cbranch_scc1 L_notlast")
    A("s_waitcnt lgkmcnt(4)")
    for (x, y) in ((48, 50), (52, 54), (56, 58), (60, 62), (48, 52), (56, 60)):
        A(f"v_pk_add_f32 v[{x}:{x+1}], v[{x}:{x+1}], v[{y}:{y+1}]")
    A("v_add_f32 v40, v48, v56"); A("v_add_f32 v42, v49, v57")
    flavoured([f"buffer_store_dwordx4 v[40:43], v3, {WS}, s{sT} offen"])
    A("s_waitcnt lgkmcnt(0)")
    A("v_pk_add_f32 v[64:65], v[64:65], v[66:67]"); A("v_pk_add_f32 v[68:69], v[68:69], v[70:71]")
    A("v_pk_add_f32 v[64:65], v[64:65], v[68:69]")
    A("s_nop 1")
    A("v_permlane32_swap_b32 v64, v66"); A("v_permlane32_swap_b32 v65, v67")
    A("v_add_f32 v44, v64, v66"); A("v_add_f32 v46, v65, v67")
    A("s_mov_b32 exec_hi, 0")
    flavoured([f"buffer_store_dwordx4 v[44:47], v3, {WS}, s{sT+1} offen"])
    A("s_mov_b64 exec, -1")
    stamp("e4pub")
    A("L_notlast:")
    A("s_waitcnt lgkmcnt(0)")
    stamp("pvdone")
    A(f"s_cmp_lg_u32 s{sW}, 4"); A("s_cbranch_scc1 L_main_end")
    A("s_cmp_ge_u32 s2, 160"); A("s_cbranch_scc1 L_main_end")
    srd(SA, 4, None, 1280); srd(SB, 22, None, 1280)
    A("v_and_b32 v8, 1, v1"); A("v_lshrrev_b32 v9, 5, v1"); A("v_lshl_add_u32 v9, v8, 3, v9"); A("v_lshlrev_b32 v9, 1, v9")
    A(f"s_lshr_b32 s{sT+3}, s2, 4"); A(f"s_lshl_b32 s{sT+3}, s{sT+3}, 7")
    A(f"s_and_b32 s{sT}, s2, 3"); A(f"s_lshl_b32 s{sT}, s{sT}, 5"); A(f"s_add_u32 s{sT+3}, s{sT+3}, s{sT}")
    A(f"s_and_b32 s{sT}, s2, 4"); A(f"s_lshl_b32 s{sT}, s{sT}, 1"); A(f"s_add_u32 s{sT+3}, s{sT+3}, s{sT}")
    A(f"s_and_b32 s{sT}, s2, 8"); A(f"s_lshr_b32 s{sT}, s{sT}, 1"); A(f"s_add_u32 s{sT+3}, s{sT+3}, s{sT}")
    A("v_lshrrev_b32 v11, 1, v1"); A("v_lshlrev_b32 v11, 9, v11"); A("v_lshl_add_u32 v11, v8, 4, v11")
    A(f"s_lshr_b32 s{sT}, s2, 4"); A(f"s_mul_i32 s{sT}, s{sT}, 61440"); A(f"s_and_b32 s{sT+1}, s2, 15"); A(f"s_lshl_b32 s{sT+1}, s{sT+1}, 5")
    A(f"s_add_u32 s{sT}, s{sT}, s{sT+1}"); A(f"s_add_u32 s{sG}, s{sT}, {E5}")
    for k in range(1, 4): A(f"s_add_u32 s{sG+k}, s{sG+k-1}, 16384")
    A("v_mov_b32 v48, 0"); A("v_mov_b32 v50, 0")
    ldspoll("L_mo", L_OCNT, 8, [], 36, 38)
    A(f"buffer_load_ushort v10, v9, {SA}, s{sT+3} offen")
    A("s_mov_b32 exec_hi, 0x0000ffff")
    poll("L_p3", [f"buffer_load_dwordx4 v[48:51], v11, {WS}, s{sG+3} offen sc1"], [48], 4)
    A("s_mov_b64 exec, -1")
    stamp("e3seen")
    def finred(a, b):
        A("s_nop 1"); A(f"v_permlane32_swap_b32 v{a}, v{b}"); A(f"v_add_f32 v{a}, v{a}, v{b}")
        allred("v_add_f32", a, b, [16, 8, 4, 2])
        A(f"v_cvt_pk_bf16_f32 v{a}, v{a}, v{a}"); A(f"v_lshlrev_b32 v{a}, 16, v{a}")
    finred(48, 50)
    silu(48, 50)
    A("v_cvt_pk_bf16_f32 v12, v48, v48"); A("v_lshlrev_b32 v12, 16, v12")
    A("v_lshlrev_b32 v10, 16, v10")
    if p5gate == "w": ldspoll("L_mw", L_WCNT, 4, [], 36, 38)
    mpoll("L_p5", [f"buffer_load_dwordx4 v[{48+4*k}:{51+4*k}], v11, {WS}, s{sG+k} offen sc1" for k in range(3)], [48, 52, 56], 60, p5sleep)
    stamp("e5seen")
    A("v_add_f32 v48, v48, v52"); A("v_add_f32 v50, v50, v54"); A("v_add_f32 v48, v48, v56"); A("v_add_f32 v50, v50, v58")
    finred(48, 50)
    A("v_mul_f32 v48, v48, v12"); A("v_cvt_pk_bf16_f32 v48, v48, v48"); A("v_lshlrev_b32 v48, 16, v48")
    A("v_add_f32 v48, v48, v10"); A("v_cvt_pk_bf16_f32 v48, v48, v48")
    if hold:
        A("L_hold:"); A("s_memrealtime s[92:93]"); A("s_waitcnt lgkmcnt(0)"); A("s_sub_u32 s92, s92, s90")
        A(f"s_cmp_lt_u32 s92, {hold}"); A("s_cbranch_scc1 L_hold")
    A("s_mov_b32 exec_lo, 3"); A("s_mov_b32 exec_hi, 3")
    A(f"buffer_store_short v48, v9, {SB}, s{sT+3} offen")
    A("s_cmp_lg_u32 s2, 0"); A("s_cbranch_scc1 L_noepoch")
    A("s_mov_b64 exec, 1")
    A(f"v_mov_b32 v49, s{sTAG}")
    A(f"buffer_store_dword v49, v36, {WS}, 0 offen")
    A("L_noepoch:")
    if stamps:
        A("s_mov_b64 exec, -1")
        A("s_waitcnt vmcnt(0)")
    stamp("end")
    A("L_main_end:")
    dump_stamps()
    A("s_endpgm")

    stl[:] = base_st
    A("L_h012b:")
    srd(WS, 26, None, WS_BYTES)
    masks()
    def helper_addrs():
        A("v_lshrrev_b32 v18, 4, v1"); A("v_lshlrev_b32 v18, 7, v18"); A("v_lshl_add_u32 v18, v46, 4, v18")
        A("v_bfe_u32 v0, v1, 3, 1"); A("v_lshlrev_b32 v0, 5, v0"); A("v_bfe_u32 v3, v1, 4, 1"); A("v_lshl_add_u32 v0, v3, 2, v0")
        A("v_lshrrev_b32 v3, 5, v1"); A("v_lshl_add_u32 v0, v3, 1, v0")
        A("v_lshrrev_b32 v19, 2, v46"); A("v_lshlrev_b32 v19, 9, v19"); A("v_lshl_add_u32 v19, v45, 6, v19")
        A("v_and_b32 v3, 3, v1"); A("v_lshl_add_u32 v19, v3, 4, v19")
    helper_addrs()
    stamp("hissued")
    A("s_waitcnt vmcnt(10)")
    stamp("xready")
    layernorm(10)
    A("s_waitcnt lgkmcnt(0)")
    gettag(True)
    stamp("lndone")
    for G in range(10):
        a = 20 + 4 * (G & 1)
        for j in range(4): A(f"v_and_b32 v{a+j}, v{8+G}, v{4+j}")
        A(f"s_waitcnt vmcnt({9-G})"); A("s_nop 0")
        c = "0" if G == 0 else "v[28:31]"
        A(f"v_mfma_f32_16x16x32_bf16 v[28:31], v[{a}:{a+3}], v[{48+4*G}:{51+4*G}], {c}")
    A(f"s_mul_i32 s{sT}, s{sHEAD}, 3"); A(f"s_add_u32 s{sT}, s{sT}, s{sW}"); A(f"s_lshl_b32 s{sT}, s{sT}, 12"); A(f"s_add_u32 s{sT}, s{sT}, {E1}")
    A(f"s_lshl_b32 s{sT+1}, s{sSPLIT}, 9"); A(f"s_add_u32 s{sT+1}, s{sT+1}, s{sT}")
    A(f"s_mov_b32 s{sTHR}, 0")
    A("s_nop 0")
    fold(28, 32, sTAGX)
    exec_pub()
    A(f"buffer_store_dwordx4 v[32:35], v18, {WS}, s{sT+1} offen")
    A("s_mov_b64 exec, -1")
    stamp("e1pub")
    def g8loads(soff): return [f"buffer_load_dwordx4 v[{96+4*i}:{99+4*i}], v19, {WS}, s{soff} offen offset:{1024*i} sc1" for i in range(4)]
    def g8sum():
        A("v_add_f32 v96, v96, v100"); A("v_add_f32 v98, v98, v102"); A("v_add_f32 v104, v104, v108"); A("v_add_f32 v106, v106, v110")
        A("v_add_f32 v96, v96, v104"); A("v_add_f32 v98, v98, v106")
        A("s_nop 0")
        A("v_add_f32_dpp v97, v96, v96 row_shl:4 row_mask:0xf bank_mask:0x5"); A("v_add_f32_dpp v99, v98, v98 row_shl:4 row_mask:0xf bank_mask:0x5")
        A("v_add_f32_dpp v97, v96, v96 row_shr:4 row_mask:0xf bank_mask:0xa"); A("v_add_f32_dpp v99, v98, v98 row_shr:4 row_mask:0xf bank_mask:0xa")
    def e1slow():
        A(f"s_cmp_lg_u32 s{sTHR}, 0"); A("s_cbranch_scc1 L_p1_giveup")
        A(f"s_mov_b32 s{sTHR}, 15"); A(f"s_mov_b32 s{sSPIN}, 0x8000")
        exec_pub()
        A(f"buffer_store_dwordx4 v[32:35], v18, {WS}, s{sT+1} offen sc1")
        A("s_mov_b64 exec, -1")
        A("s_branch L_p1")
        A("L_p1_giveup:")
    if e1pre: A(f"s_sleep {e1pre}")
    mpoll("L_p1", g8loads(sT), [96, 100, 104, 108], 112, e1sleep, tag=sTAGX, thr=sTHR, tries=n1, onfail=e1slow)
    g8sum()
    A("v_cvt_pk_bf16_f32 v96, v97, v99")
    A("v_and_b32 v3, 3, v1"); A("v_lshlrev_b32 v3, 4, v3"); A("v_lshl_add_u32 v3, v0, 1, v3")
    A(f"s_lshl_b32 s{sT}, s{sW}, 7"); A(f"v_add_u32 v3, s{sT}, v3")
    A(f"ds_write_b32 v3, v96 offset:{L_Q}")
    A("v_mov_b32 v44, 0"); A("v_mov_b32 v38, 1")
    A("s_mov_b64 exec, 1")
    A(f"ds_add_u32 v44, v38 offset:{L_QCNT}")
    A("s_mov_b64 exec, -1")
    stamp("qready")
    A(f"s_cmp_lg_u32 s{sW}, 2"); A("s_cbranch_scc1 L_wo")
    A("v_lshlrev_b32 v3, 4, v1"); A(f"s_lshl_b32 s{sT}, s{sHEAD}, 10"); A(f"s_add_u32 s{sT}, s{sT}, {E0}")
    A("v_lshlrev_b32 v39, 3, v46")
    A(f"v_mov_b32 v41, s{sTAG}"); A(f"v_mov_b32 v43, s{sTAG}")
    A(f"s_lshl_b32 s{sT+1}, s{sSPLIT}, 7"); A(f"s_add_u32 s{sT+1}, s{sT+1}, s{sT}")
    ldspoll("L_gl", L_LOC, 0, [], 44, 37, cmp="eq")
    A(f"v_readfirstlane_b32 s{sLOC}, v37")
    ldspoll("L_gk", L_KCNT, 8, [f"ds_read_b32 v40, v39 offset:{L_ST}", f"ds_read_b32 v42, v39 offset:{L_ST+4}"], 44, 37)
    A("s_mov_b64 exec, 0xff")
    flavoured([f"buffer_store_dwordx4 v[40:43], v3, {WS}, s{sT+1} offen"])
    A("s_mov_b64 exec, -1")
    if e0pre: A(f"s_sleep {e0pre}")
    poll("L_p0", [f"buffer_load_dwordx4 v[96:99], v3, {WS}, s{sT} offen sc1"], [96], e0sleep)
    A("v_mov_b32 v40, v96")
    allred("v_max_f32", 40, 41, ALL)
    A("v_sub_f32 v96, v96, v40"); A(f"v_mul_f32 v96, {f32(LOG2E)}, v96"); A("v_exp_f32 v96, v96"); A("s_nop 0")
    A("v_mul_f32 v42, v96, v98")
    allred("v_add_f32", 42, 41, ALL)
    A("v_rcp_f32 v41, v42")
    A("s_mov_b64 exec, 1")
    A(f"ds_write_b64 v44, v[40:41] offset:{L_M}")
    A(f"ds_write_b32 v44, v38 offset:{L_SFLAG}")
    A("s_mov_b64 exec, -1")
    stamp("stats")
    A("s_branch L_wo")
    A("L_h3b:")
    masks()
    A("s_waitcnt vmcnt(16)")
    layernorm(8)
    for G in range(8):
        a = 20 + 4 * (G & 1)
        for j in range(4): A(f"v_and_b32 v{a+j}, v{8+G}, v{4+j}")
        A(f"s_waitcnt vmcnt({14-2*G})"); A("s_nop 0")
        for m in range(2):
            c = "0" if G == 0 else f"v[{28+4*m}:{31+4*m}]"
            A(f"v_mfma_f32_16x16x32_bf16 v[{28+4*m}:{31+4*m}], v[{a}:{a+3}], v[{48+8*G+4*m}:{51+8*G+4*m}], {c}")
    A("L_h3c:")
    helper_addrs()
    srd(WS, 26, None, WS_BYTES)
    A("v_and_b32 v3, 3, v1"); A(f"v_mul_u32_u24 v3, {8*3*4096}, v3"); A("v_lshrrev_b32 v2, 2, v1"); A("v_lshl_add_u32 v3, v2, 9, v3")
    A(f"s_and_b32 s{sT}, s2, 7"); A(f"s_mul_i32 s{sT}, s{sT}, {3*4096}"); A(f"s_add_u32 s{sT}, s{sT}, {E1}")
    A("v_mov_b32 v44, 0")
    ldspoll("L_gq", L_QCNT, 3, [], 44, 47)
    gettag(True)
    A(f"s_mov_b32 s{sLOC}, 1")
    A("s_mov_b32 exec_hi, 0")
    poll("L_pl", [f"buffer_load_dwordx4 v[96:99], v3, {WS}, s{sT} offen sc1"], [96], 8, tag=sTAGX, tries=6, onfail=lambda: A(f"s_mov_b32 s{sLOC}, 2"))
    A("s_mov_b64 exec, 1")
    A(f"v_mov_b32 v47, s{sLOC}")
    A(f"ds_write_b32 v44, v47 offset:{L_LOC}")
    A("s_mov_b64 exec, -1")
    stamp("probe")
    A("s_cmp_ge_u32 s2, 240"); A("s_cbranch_scc1 L_help_end")
    A(f"s_mul_i32 s{sG}, s{sRB}, 10240"); A(f"s_add_u32 s{sG}, s{sG}, {E2}")
    A(f"s_add_u32 s{sG+1}, s{sG}, 4096"); A(f"s_add_u32 s{sG+2}, s{sG}, 8192")
    A(f"s_lshl_b32 s{sT}, s{sC10}, 10"); A(f"s_add_u32 s{sT}, s{sT}, s{sG}")
    fold(28, 36); fold(32, 40)
    exec_pub()
    flavoured([f"buffer_store_dwordx4 v[36:39], v18, {WS}, s{sT} offen", f"buffer_store_dwordx4 v[40:43], v18, {WS}, s{sT} offen offset:512"])
    A("s_mov_b64 exec, -1")
    A(f"s_mul_i32 s{sT}, s{sRB}, {64*1280}"); A(f"s_lshl_b32 s{sT+1}, s{sC10}, 7"); A(f"s_add_u32 s{sT}, s{sT}, s{sT+1}")
    for k in range(1, 4): A(f"s_add_u32 s{sT+k}, s{sT+k-1}, {8*1280}")
    srd(SB, 20, None, 1536 * 1280)
    A(f"v_mul_u32_u24 v2, 1280, v0"); A("v_lshl_add_u32 v2, v46, 4, v2")
    if ffn_gate == "k": ldspoll("L_gk3", L_KCNT, 8, [], 44, 47)
    elif ffn_gate == "k4": ldspoll("L_gk3", L_KCNT, 4, [], 44, 47, cmp="gt")
    for G in range(8):
        A(f"buffer_load_dwordx4 v[{48+4*G}:{51+4*G}], v2, {SB}, s{sT + (G>>1)} offen offset:{1280*(G&1)} {pol}"); nb()
    poll("L_p2", [f"buffer_load_dwordx4 v[{96+4*i}:{99+4*i}], v19, {WS}, s{sG + (i>>2)} offen offset:{1024*(i&3)} sc1" for i in range(10)],
         [96 + 4 * i for i in range(10)], 16)
    for (x, y) in ((0, 1), (2, 3), (4, 5), (6, 7), (8, 9), (0, 2), (4, 6), (0, 8), (0, 4)):
        A(f"v_add_f32 v{96+4*x}, v{96+4*x}, v{96+4*y}"); A(f"v_add_f32 v{98+4*x}, v{98+4*x}, v{98+4*y}")
    A("v_cvt_pk_bf16_f32 v96, v96, v98")
    A("v_mov_b32 v97, v96"); A("v_mov_b32 v98, v96"); A("s_nop 0")
    A("v_mov_b32_dpp v97, v96 row_shr:4 row_mask:0xf bank_mask:0xa")
    A("v_mov_b32_dpp v98, v96 row_shl:4 row_mask:0xf bank_mask:0x5")
    unpack(100, 101, 97); unpack(102, 103, 98)
    silu(100, 104); silu(101, 104)
    A("v_cvt_pk_bf16_f32 v97, v100, v101"); unpack(100, 101, 97)
    A("v_mul_f32 v100, v100, v102"); A("v_mul_f32 v101, v101, v103")
    A("v_cvt_pk_bf16_f32 v8, v100, v100"); A("v_cvt_pk_bf16_f32 v9, v101, v101")
    A(f"s_mul_i32 s{sT}, s{sC10}, 61440"); A(f"s_lshl_b32 s{sT+1}, s{sRB}, 9"); A(f"s_add_u32 s{sT}, s{sT}, s{sT+1}")
    A(f"s_add_u32 s{sT}, s{sT}, {E5 + 96*512}")
    unit_mfma(48, 8, 9, 28, 20)
    fold(28, 36)
    exec_pub()
    A(f"buffer_store_dwordx4 v[36:39], v18, {WS}, s{sT} offen sc1")
    A("s_mov_b64 exec, -1")
    stamp("e3pub")
    A("L_wo:")
    A("s_cmp_ge_u32 s2, 240"); A("s_cbranch_scc1 L_help_end")
    A(f"s_lshl_b32 s{sT+2}, s{sRBL}, 2"); A(f"s_add_u32 s{sT+2}, s{sT+2}, s{sW}")
    A(f"s_mul_i32 s{sT}, s{sT+2}, 86"); A(f"s_lshr_b32 s{sT}, s{sT}, 8")
    A(f"s_mul_i32 s{sT}, s{sT}, 21"); A(f"s_add_u32 s{sT+2}, s{sT+2}, s{sT}")
    A(f"s_and_b32 s{sT}, s2, 7"); A(f"s_mul_i32 s{sT}, s{sT}, 3"); A(f"s_add_u32 s{sT+2}, s{sT+2}, s{sT}")
    A(f"s_mul_i32 s{sT}, s{sT+2}, {64*1280}"); A(f"s_lshl_b32 s{sT+1}, s{sC10}, 7"); A(f"s_add_u32 s{sT}, s{sT}, s{sT+1}")
    A(f"s_add_u32 s{sT+1}, s{sT}, 5120")
    srd(SB, 12, None, 6144 * 1280)
    A(f"v_mul_u32_u24 v2, {8*1280}, v45"); A("v_lshl_add_u32 v2, v46, 4, v2")
    A(f"s_lshl_b32 s{sG}, s{sT+2}, 12"); A(f"s_add_u32 s{sG}, s{sG}, {E4}")
    A(f"s_mul_i32 s{sG+1}, s{sC10}, 61440"); A(f"s_lshl_b32 s{sT+2}, s{sT+2}, 9"); A(f"s_add_u32 s{sG+1}, s{sG+1}, s{sT+2}")
    A(f"s_add_u32 s{sG+1}, s{sG+1}, {E5}")
    A(f"v_mov_b32 v33, s{sTAG}"); A(f"v_mov_b32 v35, s{sTAG}")
    def woload(G): A(f"buffer_load_dwordx4 v[{48+4*G}:{51+4*G}], v2, {SB}, s{sT + (G>>2)} offen offset:{1280*(G&3)} {pol}"); nb()
    if wo_early:
        ldspoll("L_gk4", L_KCNT, 8, [], 44, 47)
        for G in range(wo_early): woload(G)
    ldspoll("L_gv", L_VCNT, 8, [], 44, 47)
    A(f"s_setprio {wo_prio}")
    for G in range(wo_early, 8): woload(G)
    A("s_setprio 3")
    stamp("woissued")
    if p4gate: ldspoll("L_go", L_OCNT, 8, [], 44, 47)
    mpoll("L_p4", g8loads(sG), [96, 100, 104, 108], 112, p4sleep)
    stamp("e4seen")
    g8sum()
    A("v_cvt_pk_bf16_f32 v8, v97, v97"); A("v_cvt_pk_bf16_f32 v9, v99, v99")
    A("v_mov_b32 v47, 1")
    unit_mfma(48, 8, 9, 28, 20)
    fold(28, 32, settag=False)
    exec_pub()
    A(f"buffer_store_dwordx4 v[32:35], v18, {WS}, s{sG+1} offen sc1")
    if p5gate == "w":
        A("s_mov_b64 exec, 1"); A(f"ds_add_u32 v44, v47 offset:{L_WCNT}")
    A("s_mov_b64 exec, -1")
    stamp("e5pub")
    A("L_help_end:")
    dump_stamps()
    A("L_end:")
    A("s_endpgm")
    A("L_code_end:")
    A('.section .rodata,"a"'); A(".p2align 6")
    A(f".amdhsa_kernel {NAME}_kernel")
    A("  .amdhsa_next_free_vgpr 168"); A("  .amdhsa_next_free_sgpr 100"); A("  .amdhsa_accum_offset 168")
    A("  .amdhsa_group_segment_fixed_size 0"); A("  .amdhsa_kernarg_size 96"); A("  .amdhsa_user_sgpr_count 2")
    A("  .amdhsa_user_sgpr_kernarg_segment_ptr 1"); A("  .amdhsa_system_sgpr_workgroup_id_x 1")
    A("  .amdhsa_float_denorm_mode_32 3")
    A(".end_amdhsa_kernel")
    return "\n".join(L) + "\n"

SETS = {
  "A": dict(start=[(0,0)], e1pub=[(0,1)], qready=[(0,2)], e0pub=[(4,3),(11,4)], stats=[(2,5)], pvdone=[(4,6)], vissued=[(11,7)], e4pub=[(None,8)],
            woissued=[(0,9)], e4seen=[(0,10)], probe=[(3,11)], e3seen=[(4,12)], e5seen=[(4,13)], end=[(4,14)], e3pub=[(3,15)]),
  "C": dict(start=[(0,0),(3,1),(4,2),(11,3)], hissued=[(0,4),(2,5)], xready=[(0,6),(2,7)], lndone=[(0,8),(2,9)], e1pub=[(0,10),(1,11),(2,12)], qready=[(0,13),(1,14),(2,15)]),
  "T": dict(start=[(0,0)], e4pub=[(None,1)], woissued=[(0,2)], e4seen=[(0,3),(1,4),(2,5),(3,6)], e5pub=[(0,7),(1,8),(2,9),(3,10)], e3seen=[(4,11)], e5seen=[(4,12)], end=[(4,13)], stats=[(2,14)], e3pub=[(3,15)]),
  "D": dict(start=[(0,0)], kissued=[(4,1),(5,2),(6,3),(7,4),(8,5),(9,6),(10,7),(11,8)], vissued=[(4,9),(5,10),(6,11),(8,12),(9,13),(10,14),(11,15)]),
}
def build(out, **kw):
    import hazard, os
    ref = "cdna_kernels/" + NAME + ".s.ref"
    hdr = open(ref).read().split("; Override launch")[0] if os.path.exists(ref) else ""
    if kw.get("stamps"): kw["stamps"] = SETS[kw["stamps"]]
    t = gen(**kw)
    for x in hazard.check(t)[:30]: print("HAZARD", x)
    open(out, "w").write(hdr + t)
if __name__ == "__main__":
    import ast
    kw = {}
    for a in sys.argv[2:]:
        k, v = a.split("=", 1)
        try: kw[k] = ast.literal_eval(v)
        except Exception: kw[k] = v
    build(sys.argv[1], **kw)
```

```python
import sys, struct
NAME = "recurrent_scan__sliding_block_cached__glu_gated_swiglu__decode"

def f32(x): return "0x%08x" % struct.unpack("<I", struct.pack("<f", x))[0]

E0, E1, E2, E4, E5 = 0x1000, 0x10000, 0x70000, 0xB0000, 0x110000
WS_BYTES = 0x110000 + 10 * 48 * 512
TAGK = 0x9E3779B0
L_Q, L_QCNT, L_OCNT, L_SFLAG, L_M, L_LOC, L_KCNT, L_VCNT, L_WCNT, L_ST, L_WACC, L_OACC = 0, 384, 388, 392, 400, 408, 412, 416, 420, 448, 512, 3072
LDS_BYTES = 3072 + 8 * 768
DPPF = "row_mask:0xf bank_mask:0xf"
LOG2E = 1.4426950408889634

def gen(stamps=None, wstride=8*3072, wgstride=3072, gstride=32*3072, vpre=0, prefetch=True, pol="nt",
        wo_prio=0, wo_early=2, hold=0, e1pre=8, e1sleep=4, e0pre=8, e0sleep=8, vgate=8, p4gate=True, bar3=5, ffn_gate="k",
        brk=1, p4sleep=0, p5sleep=2, p5gate="w", masked=True, n1=24, forceslow=False, kpre=0, hold5=0, e5pol="sc1", tries5=0x8000, hstride=None, rot=0, mul=None, outpol="", share14=True, ns5=3, tlb=0, e2pol=None, clean2=0, wbtest=0, wbm=None):
    L = []
    A = L.append
    E4 = E1 if share14 else globals()["E4"]
    sW, sTAG, sHEAD, sSPLIT = 28, 29, 30, 31
    WS, SA, SB, SC = "s[32:35]", "s[36:39]", "s[40:43]", "s[44:47]"
    sRB, sC10, sSPIN = 48, 49, 50
    sT = 51
    sG = 56
    sRBL, sTAGX = 66, 67
    sST = 68
    sTHR, sLOC = 88, 89
    sP = 92
    nst = [0]
    stl = []
    def stamp(name):
        if not stamps or name not in stamps: return
        r = sST + 2 * len(stl)
        assert len(stl) < 10
        stl.append(stamps[name])
        A(f"s_memrealtime s[{r}:{r+1}]")
    def dump_stamps():
        if not stamps: return
        A("s_waitcnt lgkmcnt(0)")
        A(f"s_lshl_b32 s{sT}, s2, 7"); A(f"s_add_u32 s{sT}, s{sT}, {64<<20}")
        A(f"s_add_u32 s{sT+1}, s26, s{sT}"); A(f"s_addc_u32 s{sT+2}, s27, 0")
        A("s_mov_b64 exec, 1")
        A("v_mov_b32 v0, 0")
        for k, pairs in enumerate(stl):
            r = sST + 2 * k
            for (wv, slot) in pairs:
                lab2 = f"L_nost{nst[0]}"; nst[0] += 1
                if wv is not None:
                    A(f"s_cmp_lg_u32 s{sW}, {wv}"); A(f"s_cbranch_scc1 {lab2}")
                else:
                    A(f"s_cmp_eq_u32 s{r}, 0"); A(f"s_cbranch_scc1 {lab2}")
                A(f"v_mov_b32 v2, s{r}"); A(f"v_mov_b32 v3, s{r+1}")
                A(f"global_store_dwordx2 v0, v[2:3], s[{sT+1}:{sT+2}] offset:{8*slot}")
                A(f"{lab2}:")
        A("s_mov_b64 exec, -1")
    def srd(name, lo, off_sreg, size):
        b = int(name[2:name.index(":")])
        if off_sreg is None:
            A(f"s_mov_b64 s[{b}:{b+1}], s[{lo}:{lo+1}]")
        else:
            A(f"s_add_u32 s{b}, s{lo}, s{off_sreg}"); A(f"s_addc_u32 s{b+1}, s{lo+1}, 0")
        A(f"s_mov_b32 s{b+2}, {size}"); A(f"s_mov_b32 s{b+3}, 0x20000")
    def masks():
        A("v_and_b32 v3, 1, v1"); A("v_lshlrev_b32 v3, 4, v3"); A("v_mov_b32 v7, 0xffff"); A("v_lshlrev_b32 v3, v3, v7")
        A("v_bfe_u32 v7, v1, 1, 2")
        A("v_cmp_eq_u32 vcc, 0, v7"); A(f"v_cmp_eq_u32 s[{sT+1}:{sT+2}], 1, v7"); A(f"v_cmp_eq_u32 s[{sT+3}:{sT+4}], 2, v7")
        A("v_cndmask_b32 v4, 0, v3, vcc")
        A("v_cmp_eq_u32 vcc, 3, v7")
        A(f"v_cndmask_b32 v5, 0, v3, s[{sT+1}:{sT+2}]"); A(f"v_cndmask_b32 v6, 0, v3, s[{sT+3}:{sT+4}]")
        A("v_cndmask_b32 v7, 0, v3, vcc")
    def allred(op, x, t, steps):
        dp = {1: "quad_perm:[1,0,3,2]", 2: "quad_perm:[2,3,0,1]", 4: "row_ror:4", 8: "row_ror:8"}
        for s in steps:
            if s in dp:
                A("s_nop 1"); A(f"{op}_dpp v{x}, v{x}, v{x} {dp[s]} {DPPF}")
            else:
                A(f"v_mov_b32 v{t}, v{x}"); A("s_nop 1"); A(f"v_permlane{s}_swap_b32 v{x}, v{t}"); A(f"{op} v{x}, v{x}, v{t}")
    ALL = [1, 2, 8, 4, 16, 32]
    def unpack(lo, hi, src):
        A(f"v_lshlrev_b32 v{lo}, 16, v{src}"); A(f"v_and_b32 v{hi}, 0xffff0000, v{src}")
    def gettag(x=False):
        A(f"s_and_b32 s{sTAG}, s{sTAG}, -16"); A(f"s_add_u32 s{sTAG}, s{sTAG}, {TAGK:#x}")
        if x:
            A(f"s_getreg_b32 s{sTAGX}, hwreg(HW_REG_XCC_ID, 0, 4)")
            if forceslow: A(f"s_lshr_b32 s{sTAGX}, s2, 4")
            A(f"s_or_b32 s{sTAGX}, s{sTAGX}, s{sTAG}")
    def poll(label, loads, regs, sleep, tag=None, tries=0x8000, onfail=None):
        tag = sTAG if tag is None else tag
        A(f"s_mov_b32 s{sSPIN}, {tries}")
        A(f"{label}:")
        for l in loads: A(l)
        A("s_waitcnt vmcnt(0)")
        ts = []
        for r in regs:
            A(f"v_bitop3_b32 v{r+1}, s{tag}, v{r+1}, v{r+3} bitop3:0x7e"); ts.append(r + 1)
        while len(ts) > 1:
            if len(ts) >= 3:
                A(f"v_or3_b32 v{ts[0]}, v{ts[0]}, v{ts[1]}, v{ts[2]}"); ts = ts[3:] + [ts[0]]
            else:
                A(f"v_or_b32 v{ts[0]}, v{ts[0]}, v{ts[1]}"); ts = [ts[0]]
        A(f"v_cmp_ne_u32 vcc, 0, v{ts[0]}")
        A(f"s_cbranch_vccz {label}_ok")
        if sleep: A(f"s_sleep {sleep}")
        A(f"s_sub_u32 s{sSPIN}, s{sSPIN}, 1")
        A(f"s_cbranch_scc0 {label}")
        if onfail: onfail()
        A(f"{label}_ok:")
    def mpoll(label, loads, regs, tmp, sleep, tag=None, thr=None, tries=0x8000, onfail=None):
        tag = sTAG if tag is None else tag
        n = len(loads)
        A(f"s_mov_b32 s{sSPIN}, {tries}")
        for l in loads: A(l)
        A(f"{label}:")
        A("s_waitcnt vmcnt(0)")
        for k, r in enumerate(regs): A(f"v_bitop3_b32 v{tmp+k}, s{tag}, v{r+1}, v{r+3} bitop3:0x7e")
        for k in range(n):
            A(f"v_cmp_lt_u32 s[{sP+2*k}:{sP+2*k+1}], {'0' if thr is None else 's%d' % thr}, v{tmp+k}")
        A(f"s_or_b64 vcc, s[{sP}:{sP+1}], s[{sP+2}:{sP+3}]")
        for k in range(2, n): A(f"s_or_b64 vcc, vcc, s[{sP+2*k}:{sP+2*k+1}]")
        A(f"s_cbranch_scc0 {label}_ok")
        if sleep: A(f"s_sleep {sleep}")
        for k, l in enumerate(loads):
            if masked:
                A(f"s_mov_b64 exec, s[{sP+2*k}:{sP+2*k+1}]"); A(f"s_cbranch_execz {label}_s{k}")
            A(l)
            if masked: A(f"{label}_s{k}:")
        if masked: A("s_mov_b64 exec, -1")
        A(f"s_sub_u32 s{sSPIN}, s{sSPIN}, 1")
        A(f"s_cbranch_scc0 {label}")
        if onfail: onfail()
        A("s_waitcnt vmcnt(0)")
        A(f"{label}_ok:")
    def ldspoll(label, flag_off, want, reads, vz, vflag, cmp="ne"):
        A(f"s_mov_b32 s{sSPIN}, 0x200000")
        A(f"{label}:")
        A(f"ds_read_b32 v{vflag}, v{vz} offset:{flag_off}")
        for l in reads: A(l)
        A("s_waitcnt lgkmcnt(0)")
        A(f"v_cmp_{cmp}_u32 vcc, {want}, v{vflag}")
        A(f"s_cbranch_vccz {label}_ok")
        A("s_sleep 1")
        A(f"s_sub_u32 s{sSPIN}, s{sSPIN}, 1")
        A(f"s_cbranch_scc0 {label}")
        A(f"{label}_ok:")
    def fold(acc, y, tag=None, settag=True):
        tag = sTAG if tag is None else tag
        A(f"v_permlane32_swap_b32 v{acc}, v{acc+2}")
        A(f"v_permlane32_swap_b32 v{acc+1}, v{acc+3}")
        if settag:
            A(f"v_mov_b32 v{y+1}, s{tag}"); A(f"v_mov_b32 v{y+3}, s{tag}")
        else:
            A("s_nop 0")
        A(f"v_add_f32_dpp v{y}, v{acc+2}, v{acc} row_ror:8 {DPPF}")
        A(f"v_add_f32_dpp v{y+2}, v{acc+3}, v{acc+1} row_ror:8 {DPPF}")
    def exec_pub():
        A("s_mov_b32 exec_lo, 0x00ff00ff"); A("s_mov_b32 exec_hi, 0x00ff00ff")
    nfl = [0]
    def flavoured(lines):
        lab = f"L_fl{nfl[0]}"; nfl[0] += 1
        A(f"s_cmp_eq_u32 s{sLOC}, 1"); A(f"s_cbranch_scc1 {lab}_p")
        for l in lines: A(l + " sc1")
        A(f"s_branch {lab}_e")
        A(f"{lab}_p:")
        for l in lines: A(l)
        A(f"{lab}_e:")
    def loc5():
        A(f"s_xor_b32 s{sT+1}, s2, s{sC10}"); A(f"s_and_b32 s{sT+1}, s{sT+1}, 7"); A(f"s_cselect_b32 s{sLOC}, 2, s{sLOC}")
    def layernorm(nown):
        for k in range(5): unpack(30 + 2 * k, 31 + 2 * k, 20 + k)
        A("v_add_f32 v40, v30, v31"); A("v_add_f32 v41, v32, v33"); A("v_add_f32 v42, v34, v35"); A("v_add_f32 v43, v36, v37")
        A("v_add_f32 v44, v38, v39"); A("v_add_f32 v40, v40, v41"); A("v_add_f32 v42, v42, v43"); A("v_add_f32 v40, v40, v44")
        A("v_add_f32 v40, v40, v42")
        allred("v_add_f32", 40, 41, ALL)
        A(f"v_mul_f32 v40, {f32(1/640)}, v40")
        for k in range(10): A(f"v_sub_f32 v{30+k}, v{30+k}, v40")
        A("v_mul_f32 v42, v30, v30"); A("v_mul_f32 v43, v31, v31")
        for k in range(2, 10): A(f"v_fmac_f32 v{42 + k % 2}, v{30+k}, v{30+k}")
        A("v_add_f32 v42, v42, v43")
        allred("v_add_f32", 42, 41, ALL)
        A(f"v_mul_f32 v42, {f32(1/640)}, v42")
        A("v_cvt_pk_bf16_f32 v41, v40, v42")
        unpack(40, 42, 41)
        A(f"v_add_f32 v42, {f32(1e-5)}, v42")
        A("v_cvt_pk_bf16_f32 v42, v42, v42"); A("v_lshlrev_b32 v42, 16, v42")
        A("v_sqrt_f32 v42, v42")
        for k in range(nown // 2): unpack(30 + 2 * k, 31 + 2 * k, 25 + k)
        A("v_cvt_pk_bf16_f32 v42, v42, v42"); A("v_lshlrev_b32 v42, 16, v42")
        A("v_rcp_f32 v42, v42")
        for k in range(nown): A(f"v_sub_f32 v{30+k}, v{30+k}, v40")
        for k in range(nown // 2): A(f"v_cvt_pk_bf16_f32 v{25+k}, v{30+2*k}, v{31+2*k}")
        for k in range(nown // 2): unpack(30 + 2 * k, 31 + 2 * k, 25 + k)
        for k in range(nown): A(f"v_mul_f32 v{30+k}, v{30+k}, v42")
        for k in range(nown): A(f"v_cvt_pk_bf16_f32 v{8+k}, v{30+k}, v{30+k}")
    def silu(x, t):
        A(f"v_mul_f32 v{t}, {f32(-LOG2E)}, v{x}"); A(f"v_exp_f32 v{t}, v{t}"); A("s_nop 0")
        A(f"v_add_f32 v{t}, 1.0, v{t}"); A(f"v_rcp_f32 v{t}, v{t}"); A("s_nop 0")
        A(f"v_mul_f32 v{x}, v{x}, v{t}")
    def unit_mfma(d0, dupe, dupo, acc, at):
        for G in range(8):
            a = at + 4 * (G & 1)
            src = dupo if G & 1 else dupe
            k = G >> 1
            for j in range(4):
                A(f"v_and_b32_dpp v{a+j}, v{src}, v{4+j} quad_perm:[{k},{k},{k},{k}] {DPPF}")
            if G > 0:
                pa = at + 4 * ((G - 1) & 1); pd = d0 + 4 * (G - 1)
                c = "0" if G == 1 else f"v[{acc}:{acc+3}]"
                A(f"v_mfma_f32_16x16x32_bf16 v[{acc}:{acc+3}], v[{pa}:{pa+3}], v[{pd}:{pd+3}], {c}")
        A("s_nop 0")
        pa = at + 4; pd = d0 + 28
        A(f"v_mfma_f32_16x16x32_bf16 v[{acc}:{acc+3}], v[{pa}:{pa+3}], v[{pd}:{pd+3}], v[{acc}:{acc+3}]")
        A("s_nop 7")
    def nb():
        if brk: A("s_nop 0")

    A(f"; @launch grid=(256,1,1) block=(768,1,1) lds={LDS_BYTES}")
    A('.amdgcn_target "amdgcn-amd-amdhsa--gfx950"')
    A(".text"); A(f".globl {NAME}_kernel"); A(".p2align 8"); A(f".type {NAME}_kernel,@function")
    A(f"{NAME}_kernel:")
    A("s_cmp_ge_u32 s2, 256"); A("s_cbranch_scc1 L_end")
    A("s_load_dwordx16 s[4:19], s[0:1], 0")
    A("s_load_dwordx8 s[20:27], s[0:1], 64")
    if stamps:
        for k in range(10): A(f"s_mov_b64 s[{sST+2*k}:{sST+2*k+1}], 0")
    stamp("start")
    if hold or hold5: A("s_memrealtime s[90:91]")
    A("v_lshrrev_b32 v2, 6, v0")
    A("v_and_b32 v1, 63, v0")
    A(f"v_readfirstlane_b32 s{sW}, v2")
    A("v_lshlrev_b32 v2, 2, v0"); A("v_mov_b32 v3, 0")
    A("ds_write_b32 v2, v3")
    if prefetch:
        A(f"s_cmp_lg_u32 s{sW}, 11"); A("s_cbranch_scc1 L_nopf")
        A(f"s_getpc_b64 s[{sT+1}:{sT+2}]")
        A("L_pfbase:")
        A("v_lshlrev_b32 v2, 7, v1")
        A(f"v_min_u32 v2, L_code_end-L_pfbase-4, v2")
        A(f"global_load_dword v47, v2, s[{sT+1}:{sT+2}]")
        A("v_lshlrev_b32 v2, 7, v1"); A("v_add_u32 v2, 8192, v2")
        A(f"v_min_u32 v2, L_code_end-L_pfbase-4, v2")
        A(f"global_load_dword v47, v2, s[{sT+1}:{sT+2}]")
        A("L_nopf:")
    A(f"s_and_b32 s{sHEAD}, s2, 31"); A(f"s_lshr_b32 s{sSPLIT}, s2, 5")
    A("v_lshrrev_b32 v45, 3, v1")
    A("v_and_b32 v46, 7, v1")
    D = 48
    A(f"s_cmp_ge_u32 s{sW}, 4"); A("s_cbranch_scc1 L_main")
    A("s_setprio 3")
    A(f"s_lshr_b32 s{sC10}, s2, 3"); A(f"s_mul_i32 s{sRBL}, s{sC10}, 26"); A(f"s_lshr_b32 s{sRBL}, s{sRBL}, 8")
    A(f"s_mul_i32 s{sT}, s{sRBL}, 10"); A(f"s_sub_u32 s{sC10}, s{sC10}, s{sT}")
    A(f"s_and_b32 s{sT}, s2, 7"); A(f"s_mul_i32 s{sT}, s{sT}, 3"); A(f"s_add_u32 s{sRB}, s{sT}, s{sRBL}")
    A("v_mul_u32_u24 v2, 20, v1")
    A(f"s_cmp_eq_u32 s{sW}, 3"); A("s_cbranch_scc1 L_h3")
    A("v_mul_u32_u24 v3, 20, v45"); A(f"s_mul_i32 s{sT+2}, s{sSPLIT}, 160")
    A(f"s_mul_i32 s{sT}, s{sSPLIT}, {80*12288}"); A(f"s_mul_i32 s{sT+1}, s{sHEAD}, 384"); A(f"s_add_u32 s{sT}, s{sT}, s{sT+1}")
    A(f"s_lshl_b32 s{sT+1}, s{sW}, 7"); A(f"s_add_u32 s{sG}, s{sT}, s{sT+1}")
    A(f"s_movk_i32 s{sT+1}, 12288")
    for G in range(1, 10): A(f"s_add_u32 s{sG+G}, s{sG+G-1}, s{sT+1}")
    A(f"v_mul_u32_u24 v8, {10*12288}, v45"); A("v_lshl_add_u32 v8, v46, 4, v8")
    A("s_waitcnt lgkmcnt(0)")
    st0 = list(stl)
    stamp("karg")
    srd(SA, 4, None, 1280)
    A(f"s_load_dword s{sTAG}, s[26:27], 0")
    srd(SB, 10, None, 640 * 12288)
    A(f"buffer_load_dwordx4 v[20:23], v2, {SA}, 0 offen"); A(f"buffer_load_dword v24, v2, {SA}, 0 offen offset:16")
    A(f"buffer_load_dword v25, v3, {SA}, s{sT+2} offen"); A(f"buffer_load_dwordx4 v[26:29], v3, {SA}, s{sT+2} offen offset:4")
    for G in range(10):
        A(f"buffer_load_dwordx4 v[{48+4*G}:{51+4*G}], v8, {SB}, s{sG+G} offen {pol}")
    stamp("h1issued")
    A("s_barrier")
    stamp("barrier")
    A("s_branch L_h012b")
    st1 = list(stl); stl[:] = st0
    A("L_h3:")
    A("v_lshlrev_b32 v3, 4, v45"); A(f"s_lshl_b32 s{sT+2}, s{sC10}, 7")
    A(f"s_mul_i32 s{sT}, s{sC10}, {64*3072}"); A(f"s_lshl_b32 s{sT+1}, s{sRB}, 7"); A(f"s_add_u32 s{sG}, s{sT}, s{sT+1}")
    A(f"s_movk_i32 s{sT+1}, 6144")
    for G in range(1, 4): A(f"s_add_u32 s{sG+G}, s{sG+G-1}, s{sT+1}")
    A(f"v_mul_u32_u24 v8, {8*3072}, v45"); A("v_lshl_add_u32 v8, v46, 4, v8")
    A("s_waitcnt lgkmcnt(0)")
    stamp("karg")
    A(f"s_load_dword s{sTAG}, s[26:27], 0")
    A("s_cmp_ge_u32 s2, 240"); A("s_cbranch_scc1 L_h3skip")
    srd(SA, 4, None, 1280)
    srd(SB, 16, None, 640 * 3072); srd(SC, 18, None, 640 * 3072)
    A(f"buffer_load_dwordx4 v[20:23], v2, {SA}, 0 offen"); A(f"buffer_load_dword v24, v2, {SA}, 0 offen offset:16")
    A(f"buffer_load_dword v25, v3, {SA}, s{sT+2} offen"); A(f"buffer_load_dwordx3 v[26:28], v3, {SA}, s{sT+2} offen offset:4")
    for G in range(8):
        A(f"buffer_load_dwordx4 v[{48+8*G}:{51+8*G}], v8, {SB}, s{sG+(G>>1)} offen offset:{3072*(G&1)} {pol}")
        A(f"buffer_load_dwordx4 v[{52+8*G}:{55+8*G}], v8, {SC}, s{sG+(G>>1)} offen offset:{3072*(G&1)} {pol}")
        if G == bar3 - 1: A("s_barrier")
    stamp("h1issued")
    A("s_branch L_h3b")
    A("L_h3skip:")
    A("s_barrier")
    A("s_branch L_h3c")
    base_st = list(st1); stl[:] = st0

    A("L_main:")
    A("s_setprio 2")
    if hstride is None: hstride = 256 * 3072
    A(f"s_and_b32 s{sT}, s{sW}, 3"); A(f"s_mul_i32 s{sT}, s{sT}, {wstride}")
    A(f"s_mul_i32 s{sT+1}, s{sSPLIT}, {wgstride}"); A(f"s_add_u32 s{sT}, s{sT}, s{sT+1}")
    A(f"s_lshr_b32 s{sT+1}, s{sW}, 3")
    if rot & 8:
        A(f"s_lshr_b32 s{sT+2}, s{sHEAD}, 3"); A(f"s_xor_b32 s{sT+1}, s{sT+1}, s{sT+2}"); A(f"s_and_b32 s{sT+1}, s{sT+1}, 1")
    A(f"s_mul_i32 s{sT+1}, s{sT+1}, {hstride}"); A(f"s_add_u32 s{sG}, s{sT}, s{sT+1}")
    if mul:
        A(f"s_mul_i32 s{sT}, s{sG}, {mul[0]}"); A(f"s_mul_i32 s{sT+2}, s{sHEAD}, {mul[1]}"); A(f"s_add_u32 s{sT}, s{sT}, s{sT+2}")
        for g in range(8):
            A(f"s_and_b32 s{sT+1}, s{sT}, 511"); A(f"s_mul_i32 s{sG+g}, s{sT+1}, 3072")
            if g < 7: A(f"s_add_u32 s{sT}, s{sT}, {gstride * mul[0]}")
    elif rot & 7:
        A(f"s_mov_b32 s{sT}, s{sG}"); A(f"s_mul_i32 s{sT+2}, s{sHEAD}, {rot & 7}")
        for g in range(8):
            A(f"s_add_u32 s{sT+1}, s{sT+2}, {g}"); A(f"s_and_b32 s{sT+1}, s{sT+1}, 7"); A(f"s_mul_i32 s{sT+1}, s{sT+1}, {gstride}"); A(f"s_add_u32 s{sG+g}, s{sT}, s{sT+1}")
    else:
        A(f"s_mov_b32 s{sT+1}, {gstride}")
        for g in range(1, 8): A(f"s_add_u32 s{sG+g}, s{sG+g-1}, s{sT+1}")
    A(f"s_mul_i32 s{sT}, s{sHEAD}, 12582912"); A(f"s_add_u32 s{sT}, s{sT}, 11010048")
    A("v_mul_u32_u24 v2, 384, v45"); A("v_lshl_add_u32 v2, v46, 4, v2")
    A("s_waitcnt lgkmcnt(0)")
    stamp("karg")
    srd(SA, 6, sT, 4096 * 384); srd(SB, 8, sT, 4096 * 384)
    A(f"s_load_dword s{sTAG}, s[26:27], 0")
    if tlb:
        A(f"s_load_dword s3, s[36:37], 0"); A(f"s_load_dword s3, s[40:41], 0")
        if tlb > 1:
            A(f"s_load_dword s3, s[36:37], 0xffffc"); A(f"s_load_dword s3, s[40:41], 0xffffc")
            A(f"s_load_dword s3, s[22:23], 0"); A(f"s_load_dword s3, s[20:21], 0")
            A(f"s_and_b32 s{sT}, s{sW}, 3"); A(f"s_lshl_b32 s{sT}, s{sT}, 21")
            A(f"s_load_dword s3, s[12:13], s{sT}")
    for g in range(8):
        if g == kpre:
            A("s_barrier")
            stamp("barrier")
        for j in range(3):
            r = D + 12 * g + 4 * j
            A(f"buffer_load_dwordx4 v[{r}:{r+3}], v2, {SA}, s{sG+g} offen offset:{128*j} {pol}"); nb()
        if g == 0: stamp("k3issued")
    vreg = [144 + 12 * g for g in range(vpre)] + [D + 12 * g for g in range(8 - vpre)]
    for g in range(vpre):
        for j in range(3):
            r = vreg[g] + 4 * j
            A(f"buffer_load_dwordx4 v[{r}:{r+3}], v2, {SB}, s{sG+g} offen offset:{128*j} {pol}"); nb()
    A("s_setprio 3")
    stamp("kissued")
    srd(WS, 26, None, WS_BYTES)
    masks()
    A("v_mov_b32 v36, 0"); A("v_lshlrev_b32 v37, 4, v46")
    for g in range(8): A(f"v_mov_b32 v{8+g}, 0")
    ldspoll("L_mq", L_QCNT, 3, [f"ds_read_b128 v[{16+4*j}:{19+4*j}], v37 offset:{L_Q+128*j}" for j in range(3)], 36, 38)
    gettag()
    stamp("qseen")
    for g in range(0, 8, 2):
        A(f"s_waitcnt vmcnt({18 - 3*g + 3*vpre})")
        for k in range(12):
            for gg in (g, g + 1):
                A(f"v_dot2c_f32_bf16 v{8+gg}, v{D+12*gg+k}, v{16+k}")
    stamp("kdone")
    A("s_nop 0")
    for dp in ("quad_perm:[1,0,3,2]", "quad_perm:[2,3,0,1]", "row_half_mirror"):
        for g in range(8): A(f"v_add_f32_dpp v{8+g}, v{8+g}, v{8+g} {dp} {DPPF}")
    for k in range(4): A(f"v_cvt_pk_bf16_f32 v{28+k}, v{8+2*k}, v{9+2*k}")
    for k in range(4): unpack(8 + 2 * k, 9 + 2 * k, 28 + k)
    for g in range(8): A(f"v_mul_f32 v{8+g}, {f32(192 ** -0.5)}, v{8+g}")
    for k in range(4): A(f"v_cvt_pk_bf16_f32 v{28+k}, v{8+2*k}, v{9+2*k}")
    for k in range(4): unpack(8 + 2 * k, 9 + 2 * k, 28 + k)
    A("v_max3_f32 v40, v8, v9, v10"); A("v_max3_f32 v41, v11, v12, v13"); A("v_max3_f32 v40, v40, v14, v15"); A("v_max_f32 v40, v40, v41")
    allred("v_max_f32", 40, 41, [8, 16, 32])
    for g in range(8): A(f"v_sub_f32 v{28+g}, v{8+g}, v40")
    for g in range(8): A(f"v_mul_f32 v{28+g}, {f32(LOG2E)}, v{28+g}")
    for g in range(8): A(f"v_exp_f32 v{28+g}, v{28+g}")
    A("s_nop 0")
    for k in range(4): A(f"v_add_f32 v{28+k}, v{28+k}, v{32+k}")
    A("v_add_f32 v28, v28, v29"); A("v_add_f32 v30, v30, v31"); A("v_add_f32 v41, v28, v30")
    allred("v_add_f32", 41, 42, [8, 16, 32])
    A(f"s_lshl_b32 s{sT}, s{sW}, 3"); A(f"v_mov_b32 v3, s{sT}"); A("v_mov_b32 v38, 1")
    A("s_mov_b64 exec, 1")
    A(f"ds_write_b64 v3, v[40:41] offset:{L_ST - 32}")
    A(f"ds_add_u32 v36, v38 offset:{L_KCNT}")
    A("s_mov_b64 exec, -1")
    stamp("e0pub")
    A("s_setprio 1")
    for g in range(vpre, 8):
        for j in range(3):
            r = vreg[g] + 4 * j
            A(f"buffer_load_dwordx4 v[{r}:{r+3}], v2, {SB}, s{sG+g} offen offset:{128*j} {pol}"); nb()
        if g == vgate - 1:
            A("s_mov_b64 exec, 1"); A(f"ds_add_u32 v36, v38 offset:{L_VCNT}"); A("s_mov_b64 exec, -1")
    A("s_setprio 3")
    stamp("vissued")
    A("v_bfe_u32 v39, v1, 4, 1"); A("v_lshlrev_b32 v39, 4, v39"); A("v_lshl_add_u32 v39, v46, 5, v39")
    A("v_lshrrev_b32 v3, 5, v1"); A("v_lshl_add_u32 v39, v3, 3, v39")
    A(f"s_mul_i32 s{sT}, s{sW}, 768"); A(f"v_add_u32 v39, s{sT}, v39")
    A("v_mul_u32_u24 v0, 3072, v3"); A("v_and_b32 v37, 31, v1"); A("v_lshl_add_u32 v0, v37, 3, v0")
    A("v_lshlrev_b32 v3, 12, v3"); A("v_lshl_add_u32 v3, v37, 4, v3")
    A("v_lshlrev_b32 v37, 3, v1")
    A(f"s_mul_i32 s{sT}, s{sHEAD}, {3*4096}"); A(f"s_lshl_b32 s{sT+1}, s{sSPLIT}, 9"); A(f"s_add_u32 s{sT}, s{sT}, s{sT+1}")
    A(f"s_add_u32 s{sT}, s{sT}, {E4}"); A(f"s_add_u32 s{sT+1}, s{sT}, 8192")
    ldspoll("L_ms", L_SFLAG, 1, [f"ds_read_b96 v[40:42], v36 offset:{L_M}"], 36, 38)
    stamp("sseen")
    A(f"v_readfirstlane_b32 s{sLOC}, v42")
    for g in range(8): A(f"v_sub_f32 v{8+g}, v{8+g}, v40")
    for g in range(8): A(f"v_mul_f32 v{8+g}, {f32(LOG2E)}, v{8+g}")
    for g in range(8): A(f"v_exp_f32 v{8+g}, v{8+g}")
    A("s_nop 0")
    for g in range(8): A(f"v_mul_f32 v{8+g}, v{8+g}, v41")
    for g in range(8): A(f"v_cvt_pk_bf16_f32 v{8+g}, v{8+g}, v{8+g}")
    A(f"s_add_u32 s{sTAGX}, s{sTAG}, 16")
    A(f"v_mov_b32 v41, s{sTAGX}"); A(f"v_mov_b32 v43, s{sTAGX}"); A(f"v_mov_b32 v45, s{sTAGX}"); A(f"v_mov_b32 v47, s{sTAGX}")
    A("v_mov_b32 v38, 1")
    for g in range(8):
        a = 28 + 4 * (g & 1)
        for j in range(4): A(f"v_and_b32 v{a+j}, v{8+g}, v{4+j}")
        for j in range(3):
            A(f"s_waitcnt vmcnt({3 * (7 - g) + (2 - j)})")
            if j == 0: A("s_nop 0")
            r = vreg[g] + 4 * j
            c = "0" if g == 0 else f"v[{16+4*j}:{19+4*j}]"
            A(f"v_mfma_f32_16x16x32_bf16 v[{16+4*j}:{19+4*j}], v[{a}:{a+3}], v[{r}:{r+3}], {c}")
    stamp("mfmadone")
    A("s_nop 3")
    for j in range(3):
        a = 16 + 4 * j
        A(f"v_permlane32_swap_b32 v{a}, v{a+2}"); A(f"v_permlane32_swap_b32 v{a+1}, v{a+3}")
    for j in range(3):
        a = 16 + 4 * j
        A(f"v_add_f32_dpp v{a}, v{a+2}, v{a} row_ror:8 {DPPF}"); A(f"v_add_f32_dpp v{a+1}, v{a+3}, v{a+1} row_ror:8 {DPPF}")
    exec_pub()
    for j in range(3):
        A(f"ds_write_b64 v39, v[{16+4*j}:{17+4*j}] offset:{L_OACC - 4*768 + 256*j}")
    A("s_mov_b64 exec, 1")
    A(f"ds_add_rtn_u32 v38, v36, v38 offset:{L_OCNT}")
    A("s_mov_b64 exec, -1")
    for w in range(8): A(f"ds_read_b64 v[{48+2*w}:{49+2*w}], v37 offset:{L_OACC + 768*w}")
    for w in range(4): A(f"ds_read_b64 v[{64+2*w}:{65+2*w}], v0 offset:{L_OACC + 768*w + 512}")
    A("s_waitcnt lgkmcnt(12)" if not stamps else "s_waitcnt lgkmcnt(0)")
    A(f"v_readfirstlane_b32 s{sT+2}, v38")
    A("s_nop 0")
    A(f"s_cmp_lg_u32 s{sT+2}, 7"); A("s_cbranch_scc1 L_notlast")
    A("s_waitcnt lgkmcnt(4)")
    for (x, y) in ((48, 50), (52, 54), (56, 58), (60, 62), (48, 52), (56, 60)):
        A(f"v_pk_add_f32 v[{x}:{x+1}], v[{x}:{x+1}], v[{y}:{y+1}]")
    A("v_add_f32 v40, v48, v56"); A("v_add_f32 v42, v49, v57")
    flavoured([f"buffer_store_dwordx4 v[40:43], v3, {WS}, s{sT} offen"])
    A("s_waitcnt lgkmcnt(0)")
    A("v_pk_add_f32 v[64:65], v[64:65], v[66:67]"); A("v_pk_add_f32 v[68:69], v[68:69], v[70:71]")
    A("v_pk_add_f32 v[64:65], v[64:65], v[68:69]")
    A("s_nop 1")
    A("v_permlane32_swap_b32 v64, v66"); A("v_permlane32_swap_b32 v65, v67")
    A("v_add_f32 v44, v64, v66"); A("v_add_f32 v46, v65, v67")
    A("s_mov_b32 exec_hi, 0")
    flavoured([f"buffer_store_dwordx4 v[44:47], v3, {WS}, s{sT+1} offen"])
    A("s_mov_b64 exec, -1")
    stamp("e4pub")
    A("L_notlast:")
    A("s_waitcnt lgkmcnt(0)")
    stamp("pvdone")
    if wbtest:
        A(f"s_cmp_lg_u32 s{sW}, 4"); A("s_cbranch_scc1 L_main_end")
        A("s_cmp_lt_u32 s2, 248"); A("s_cbranch_scc1 L_main_end")
        A("L_holdw:"); A("s_sleep 4"); A("s_memrealtime s[92:93]"); A("s_waitcnt lgkmcnt(0)"); A("s_sub_u32 s92, s92, s90")
        A(f"s_cmp_lt_u32 s92, {wbtest}"); A("s_cbranch_scc1 L_holdw")
        stamp("wb0")
        A("buffer_wbl2 sc1"); A("s_waitcnt vmcnt(0)")
        stamp("wb1")
        A("buffer_wbl2 sc1"); A("s_waitcnt vmcnt(0)")
        stamp("wb2")
    if wbm is not None:
        A(f"s_cmp_lg_u32 s{sW}, 4"); A("s_cbranch_scc1 L_main_end")
        A("s_cmp_lt_u32 s2, 248"); A("s_cbranch_scc1 L_main_end")
        A(f"s_cmp_lg_u32 s{sLOC}, 1"); A("s_cbranch_scc1 L_main_end")
        A("v_and_b32 v3, 3, v1"); A(f"v_mul_u32_u24 v3, {8*3*4096}, v3"); A("v_lshrrev_b32 v2, 2, v1"); A("v_lshl_add_u32 v3, v2, 9, v3")
        A(f"s_and_b32 s{sT}, s2, 7"); A(f"s_mul_i32 s{sT}, s{sT}, {3*4096}"); A(f"s_add_u32 s{sT}, s{sT}, {E4 + 8192}")
        ldspoll("L_mo2", L_OCNT, 8, [], 36, 38)
        A("s_mov_b32 exec_hi, 0")
        poll("L_pw", [f"buffer_load_dwordx4 v[96:99], v3, {WS}, s{sT} offen sc1"], [96], 2, tag=sTAGX)
        if wbm: A(f"s_sleep {wbm}")
        A("buffer_wbl2 sc1")
    A("L_main_end:")
    dump_stamps()
    A("s_endpgm")

    stl[:] = base_st
    A("L_h012b:")
    srd(WS, 26, None, WS_BYTES)
    masks()
    def helper_addrs():
        A("v_lshrrev_b32 v18, 4, v1"); A("v_lshlrev_b32 v18, 7, v18"); A("v_lshl_add_u32 v18, v46, 4, v18")
        A("v_bfe_u32 v0, v1, 3, 1"); A("v_lshlrev_b32 v0, 5, v0"); A("v_bfe_u32 v3, v1, 4, 1"); A("v_lshl_add_u32 v0, v3, 2, v0")
        A("v_lshrrev_b32 v3, 5, v1"); A("v_lshl_add_u32 v0, v3, 1, v0")
        A("v_lshrrev_b32 v19, 2, v46"); A("v_lshlrev_b32 v19, 9, v19"); A("v_lshl_add_u32 v19, v45, 6, v19")
        A("v_and_b32 v3, 3, v1"); A("v_lshl_add_u32 v19, v3, 4, v19")
    helper_addrs()
    stamp("hissued")
    A("s_waitcnt vmcnt(10)")
    stamp("xready")
    layernorm(10)
    A("s_waitcnt lgkmcnt(0)")
    gettag(True)
    stamp("lndone")
    for G in range(10):
        a = 20 + 4 * (G & 1)
        for j in range(4): A(f"v_and_b32 v{a+j}, v{8+G}, v{4+j}")
        A(f"s_waitcnt vmcnt({9-G})"); A("s_nop 0")
        c = "0" if G == 0 else "v[28:31]"
        A(f"v_mfma_f32_16x16x32_bf16 v[28:31], v[{a}:{a+3}], v[{48+4*G}:{51+4*G}], {c}")
    A(f"s_mul_i32 s{sT}, s{sHEAD}, 3"); A(f"s_add_u32 s{sT}, s{sT}, s{sW}"); A(f"s_lshl_b32 s{sT}, s{sT}, 12"); A(f"s_add_u32 s{sT}, s{sT}, {E1}")
    A(f"s_lshl_b32 s{sT+1}, s{sSPLIT}, 9"); A(f"s_add_u32 s{sT+1}, s{sT+1}, s{sT}")
    A(f"s_mov_b32 s{sTHR}, 0")
    A("s_nop 0")
    fold(28, 32, sTAGX)
    exec_pub()
    A(f"buffer_store_dwordx4 v[32:35], v18, {WS}, s{sT+1} offen")
    A("s_mov_b64 exec, -1")
    stamp("e1pub")
    def g8loads(soff): return [f"buffer_load_dwordx4 v[{96+4*i}:{99+4*i}], v19, {WS}, s{soff} offen offset:{1024*i} sc1" for i in range(4)]
    def g8sum():
        A("v_add_f32 v96, v96, v100"); A("v_add_f32 v98, v98, v102"); A("v_add_f32 v104, v104, v108"); A("v_add_f32 v106, v106, v110")
        A("v_add_f32 v96, v96, v104"); A("v_add_f32 v98, v98, v106")
        A("s_nop 0")
        A("v_add_f32_dpp v97, v96, v96 row_shl:4 row_mask:0xf bank_mask:0x5"); A("v_add_f32_dpp v99, v98, v98 row_shl:4 row_mask:0xf bank_mask:0x5")
        A("v_add_f32_dpp v97, v96, v96 row_shr:4 row_mask:0xf bank_mask:0xa"); A("v_add_f32_dpp v99, v98, v98 row_shr:4 row_mask:0xf bank_mask:0xa")
    def e1slow():
        A(f"s_cmp_lg_u32 s{sTHR}, 0"); A("s_cbranch_scc1 L_p1_giveup")
        A(f"s_mov_b32 s{sTHR}, 15"); A(f"s_mov_b32 s{sSPIN}, 0x8000")
        exec_pub()
        A(f"buffer_store_dwordx4 v[32:35], v18, {WS}, s{sT+1} offen sc1")
        A("s_mov_b64 exec, -1")
        A("s_branch L_p1")
        A("L_p1_giveup:")
    if e1pre: A(f"s_sleep {e1pre}")
    mpoll("L_p1", g8loads(sT), [96, 100, 104, 108], 112, e1sleep, tag=sTAGX, thr=sTHR, tries=n1, onfail=e1slow)
    g8sum()
    A("v_cvt_pk_bf16_f32 v96, v97, v99")
    A("v_and_b32 v3, 3, v1"); A("v_lshlrev_b32 v3, 4, v3"); A("v_lshl_add_u32 v3, v0, 1, v3")
    A(f"s_lshl_b32 s{sT}, s{sW}, 7"); A(f"v_add_u32 v3, s{sT}, v3")
    A(f"ds_write_b32 v3, v96 offset:{L_Q}")
    A("v_mov_b32 v44, 0"); A("v_mov_b32 v38, 1")
    A("s_mov_b64 exec, 1")
    A(f"ds_add_u32 v44, v38 offset:{L_QCNT}")
    A("s_mov_b64 exec, -1")
    stamp("qready")
    A(f"s_cmp_lg_u32 s{sW}, 2"); A("s_cbranch_scc1 L_wo")
    A("v_lshlrev_b32 v3, 4, v1"); A(f"s_lshl_b32 s{sT}, s{sHEAD}, 10"); A(f"s_add_u32 s{sT}, s{sT}, {E0}")
    A("v_lshlrev_b32 v39, 3, v46")
    A(f"v_mov_b32 v41, s{sTAG}"); A(f"v_mov_b32 v43, s{sTAG}")
    A(f"s_lshl_b32 s{sT+1}, s{sSPLIT}, 7"); A(f"s_add_u32 s{sT+1}, s{sT+1}, s{sT}")
    ldspoll("L_gl", L_LOC, 0, [], 44, 37, cmp="eq")
    A(f"v_readfirstlane_b32 s{sLOC}, v37")
    ldspoll("L_gk", L_KCNT, 8, [f"ds_read_b32 v40, v39 offset:{L_ST}", f"ds_read_b32 v42, v39 offset:{L_ST+4}"], 44, 37)
    A("s_mov_b64 exec, 0xff")
    flavoured([f"buffer_store_dwordx4 v[40:43], v3, {WS}, s{sT+1} offen"])
    A("s_mov_b64 exec, -1")
    if e0pre: A(f"s_sleep {e0pre}")
    poll("L_p0", [f"buffer_load_dwordx4 v[96:99], v3, {WS}, s{sT} offen sc1"], [96], e0sleep)
    A("v_mov_b32 v40, v96")
    allred("v_max_f32", 40, 41, ALL)
    A("v_sub_f32 v96, v96, v40"); A(f"v_mul_f32 v96, {f32(LOG2E)}, v96"); A("v_exp_f32 v96, v96"); A("s_nop 0")
    A("v_mul_f32 v42, v96, v98")
    allred("v_add_f32", 42, 41, ALL)
    A("v_rcp_f32 v41, v42")
    A("s_mov_b64 exec, 1")
    A(f"ds_write_b64 v44, v[40:41] offset:{L_M}")
    A(f"ds_write_b32 v44, v38 offset:{L_SFLAG}")
    A("s_mov_b64 exec, -1")
    stamp("stats")
    A("s_branch L_wo")
    A("L_h3b:")
    masks()
    A("s_waitcnt vmcnt(16)")
    layernorm(8)
    for G in range(8):
        a = 20 + 4 * (G & 1)
        for j in range(4): A(f"v_and_b32 v{a+j}, v{8+G}, v{4+j}")
        A(f"s_waitcnt vmcnt({14-2*G})"); A("s_nop 0")
        for m in range(2):
            c = "0" if G == 0 else f"v[{28+4*m}:{31+4*m}]"
            A(f"v_mfma_f32_16x16x32_bf16 v[{28+4*m}:{31+4*m}], v[{a}:{a+3}], v[{48+8*G+4*m}:{51+8*G+4*m}], {c}")
    A("L_h3c:")
    helper_addrs()
    srd(WS, 26, None, WS_BYTES)
    A("v_and_b32 v3, 3, v1"); A(f"v_mul_u32_u24 v3, {8*3*4096}, v3"); A("v_lshrrev_b32 v2, 2, v1"); A("v_lshl_add_u32 v3, v2, 9, v3")
    A(f"s_and_b32 s{sT}, s2, 7"); A(f"s_mul_i32 s{sT}, s{sT}, {3*4096}"); A(f"s_add_u32 s{sT}, s{sT}, {E1}")
    A("v_mov_b32 v44, 0")
    ldspoll("L_gq", L_QCNT, 3, [], 44, 47)
    gettag(True)
    A(f"s_mov_b32 s{sLOC}, 1")
    A("s_mov_b32 exec_hi, 0")
    poll("L_pl", [f"buffer_load_dwordx4 v[96:99], v3, {WS}, s{sT} offen sc1"], [96], 8, tag=sTAGX, tries=6, onfail=lambda: A(f"s_mov_b32 s{sLOC}, 2"))
    A("s_mov_b64 exec, 1")
    A(f"v_mov_b32 v47, s{sLOC}")
    A(f"ds_write_b32 v44, v47 offset:{L_LOC}")
    A("s_mov_b64 exec, -1")
    stamp("probe")
    A("s_cmp_ge_u32 s2, 240"); A("s_cbranch_scc1 L_final")
    A(f"s_mul_i32 s{sG}, s{sRB}, 10240"); A(f"s_add_u32 s{sG}, s{sG}, {E2}")
    A(f"s_add_u32 s{sG+1}, s{sG}, 4096"); A(f"s_add_u32 s{sG+2}, s{sG}, 8192")
    A(f"s_lshl_b32 s{sT}, s{sC10}, 10"); A(f"s_add_u32 s{sT}, s{sT}, s{sG}")
    fold(28, 36); fold(32, 40)
    exec_pub()
    if e2pol is None:
        flavoured([f"buffer_store_dwordx4 v[36:39], v18, {WS}, s{sT} offen", f"buffer_store_dwordx4 v[40:43], v18, {WS}, s{sT} offen offset:512"])
    else:
        A(f"buffer_store_dwordx4 v[36:39], v18, {WS}, s{sT} offen {e2pol}"); A(f"buffer_store_dwordx4 v[40:43], v18, {WS}, s{sT} offen offset:512 {e2pol}")
    A(f"s_mov_b32 s{sG+3}, s{sT}")
    A("s_mov_b64 exec, -1")
    A(f"s_mul_i32 s{sT}, s{sRB}, {64*1280}"); A(f"s_lshl_b32 s{sT+1}, s{sC10}, 7"); A(f"s_add_u32 s{sT}, s{sT}, s{sT+1}")
    for k in range(1, 4): A(f"s_add_u32 s{sT+k}, s{sT+k-1}, {8*1280}")
    srd(SB, 20, None, 1536 * 1280)
    A(f"v_mul_u32_u24 v2, 1280, v0"); A("v_lshl_add_u32 v2, v46, 4, v2")
    if ffn_gate == "k": ldspoll("L_gk3", L_KCNT, 8, [], 44, 47)
    elif ffn_gate == "k4": ldspoll("L_gk3", L_KCNT, 4, [], 44, 47, cmp="gt")
    for G in range(8):
        A(f"buffer_load_dwordx4 v[{48+4*G}:{51+4*G}], v2, {SB}, s{sT + (G>>1)} offen offset:{1280*(G&1)} {pol}"); nb()
    poll("L_p2", [f"buffer_load_dwordx4 v[{96+4*i}:{99+4*i}], v19, {WS}, s{sG + (i>>2)} offen offset:{1024*(i&3)} sc1" for i in range(10)],
         [96 + 4 * i for i in range(10)], 16)
    for (x, y) in ((0, 1), (2, 3), (4, 5), (6, 7), (8, 9), (0, 2), (4, 6), (0, 8), (0, 4)):
        A(f"v_add_f32 v{96+4*x}, v{96+4*x}, v{96+4*y}"); A(f"v_add_f32 v{98+4*x}, v{98+4*x}, v{98+4*y}")
    A("v_cvt_pk_bf16_f32 v96, v96, v98")
    A("v_mov_b32 v97, v96"); A("v_mov_b32 v98, v96"); A("s_nop 0")
    A("v_mov_b32_dpp v97, v96 row_shr:4 row_mask:0xf bank_mask:0xa")
    A("v_mov_b32_dpp v98, v96 row_shl:4 row_mask:0xf bank_mask:0x5")
    unpack(100, 101, 97); unpack(102, 103, 98)
    silu(100, 104); silu(101, 104)
    A("v_cvt_pk_bf16_f32 v97, v100, v101"); unpack(100, 101, 97)
    A("v_mul_f32 v100, v100, v102"); A("v_mul_f32 v101, v101, v103")
    A("v_cvt_pk_bf16_f32 v8, v100, v100"); A("v_cvt_pk_bf16_f32 v9, v101, v101")
    A(f"s_mul_i32 s{sT}, s{sC10}, {48*512}"); A(f"s_lshl_b32 s{sT+1}, s{sRB}, 9"); A(f"s_add_u32 s{sT}, s{sT}, s{sT+1}")
    A(f"s_add_u32 s{sT}, s{sT}, {E5 + 24*512}")
    loc5()
    unit_mfma(48, 8, 9, 28, 20)
    fold(28, 36)
    exec_pub()
    flavoured([f"buffer_store_dwordx4 v[36:39], v18, {WS}, s{sT} offen"])
    A("s_mov_b64 exec, -1")
    if clean2:
        A("v_lshlrev_b32 v3, 4, v1")
        ldspoll("L_gc", L_SFLAG, 1, [], 44, 47)
        A(f"buffer_load_dwordx4 v[96:99], v3, {WS}, s{sG+3} offen nt")
    stamp("e3pub")
    A("L_wo:")
    A("s_cmp_ge_u32 s2, 240"); A("s_cbranch_scc1 L_final")
    A(f"s_lshl_b32 s{sT+2}, s{sRBL}, 2"); A(f"s_add_u32 s{sT+2}, s{sT+2}, s{sW}")
    A(f"s_mul_i32 s{sT}, s{sT+2}, 86"); A(f"s_lshr_b32 s{sT}, s{sT}, 8")
    A(f"s_mul_i32 s{sT}, s{sT}, 21"); A(f"s_add_u32 s{sT+2}, s{sT+2}, s{sT}")
    A(f"s_and_b32 s{sT}, s2, 7"); A(f"s_mul_i32 s{sT}, s{sT}, 3"); A(f"s_add_u32 s{sT+2}, s{sT+2}, s{sT}")
    A(f"s_mul_i32 s{sT}, s{sT+2}, {64*1280}"); A(f"s_lshl_b32 s{sT+1}, s{sC10}, 7"); A(f"s_add_u32 s{sT}, s{sT}, s{sT+1}")
    A(f"s_add_u32 s{sT+1}, s{sT}, 5120")
    srd(SB, 12, None, 6144 * 1280)
    A(f"v_mul_u32_u24 v2, {8*1280}, v45"); A("v_lshl_add_u32 v2, v46, 4, v2")
    A(f"s_lshl_b32 s{sG}, s{sT+2}, 12"); A(f"s_add_u32 s{sG}, s{sG}, {E4}")
    A(f"s_mul_i32 s{sG+1}, s{sC10}, {48*512}"); A(f"s_lshl_b32 s{sT+2}, s{sRB}, 9"); A(f"s_add_u32 s{sG+1}, s{sG+1}, s{sT+2}")
    A(f"s_add_u32 s{sG+1}, s{sG+1}, {E5}")
    A("v_lshrrev_b32 v36, 1, v18"); A(f"s_lshl_b32 s{sT+2}, s{sW}, 8"); A(f"v_add_u32 v37, s{sT+2}, v36")
    A(f"v_mov_b32 v33, s{sTAG}"); A(f"v_mov_b32 v35, s{sTAG}")
    A(f"s_add_u32 s{sTAGX}, s{sTAG}, 16")
    def woload(G): A(f"buffer_load_dwordx4 v[{48+4*G}:{51+4*G}], v2, {SB}, s{sT + (G>>2)} offen offset:{1280*(G&3)} {pol}"); nb()
    if wo_early:
        ldspoll("L_gk4", L_KCNT, 8, [], 44, 47)
        for G in range(wo_early): woload(G)
    ldspoll("L_gv", L_VCNT, 8, [f"ds_read_b32 v38, v44 offset:{L_LOC}"], 44, 47)
    A(f"s_setprio {wo_prio}")
    for G in range(wo_early, 8): woload(G)
    A("s_setprio 3")
    stamp("woissued")
    A(f"v_readfirstlane_b32 s{sLOC}, v38")
    loc5()
    if stamps and "wolanded" in stamps:
        A("s_waitcnt vmcnt(0)")
        stamp("wolanded")
    if p4gate: ldspoll("L_go", L_OCNT, 8, [], 44, 47)
    mpoll("L_p4", g8loads(sG), [96, 100, 104, 108], 112, p4sleep, tag=sTAGX)
    stamp("e4seen")
    g8sum()
    A("v_cvt_pk_bf16_f32 v8, v97, v97"); A("v_cvt_pk_bf16_f32 v9, v99, v99")
    A("v_mov_b32 v47, 1")
    unit_mfma(48, 8, 9, 28, 20)
    A("v_permlane32_swap_b32 v28, v30"); A("v_permlane32_swap_b32 v29, v31")
    A("s_nop 0")
    A(f"v_add_f32_dpp v28, v30, v28 row_ror:8 {DPPF}"); A(f"v_add_f32_dpp v29, v31, v29 row_ror:8 {DPPF}")
    exec_pub()
    A(f"ds_write_b64 v37, v[28:29] offset:{L_WACC}")
    A("s_mov_b64 exec, 1")
    A(f"ds_add_rtn_u32 v47, v44, v47 offset:{L_WCNT}")
    exec_pub()
    A(f"ds_read2_b64 v[20:23], v36 offset0:{L_WACC//8} offset1:{L_WACC//8+32}")
    A(f"ds_read2_b64 v[24:27], v36 offset0:{L_WACC//8+64} offset1:{L_WACC//8+96}")
    A("s_waitcnt lgkmcnt(0)")
    A(f"v_readfirstlane_b32 s{sT}, v47")
    A("v_pk_add_f32 v[20:21], v[20:21], v[22:23]"); A("v_pk_add_f32 v[24:25], v[24:25], v[26:27]")
    A(f"s_cmp_lg_u32 s{sT}, 3"); A("s_cbranch_scc1 L_help_end")
    A("v_add_f32 v32, v20, v24"); A("v_add_f32 v34, v21, v25")
    flavoured([f"buffer_store_dwordx4 v[32:35], v18, {WS}, s{sG+1} offen"])
    stamp("e5pub")
    A("s_branch L_help_end")
    A("L_final:")
    A("s_cmp_ge_u32 s2, 250"); A("s_cbranch_scc1 L_help_end")
    srd(SA, 4, None, 1280); srd(SB, 22, None, 1280)
    A("v_lshrrev_b32 v9, 5, v1"); A("v_lshl_add_u32 v9, v46, 3, v9"); A("v_lshlrev_b32 v9, 1, v9")
    A(f"s_sub_u32 s{sT}, s2, 240"); A(f"s_lshl_b32 s{sT+3}, s{sT}, 7")
    A(f"s_and_b32 s{sT+1}, s{sW}, 1"); A(f"s_lshl_b32 s{sT+1}, s{sT+1}, 3"); A(f"s_add_u32 s{sT+3}, s{sT+3}, s{sT+1}")
    A(f"s_and_b32 s{sT+1}, s{sW}, 2"); A(f"s_lshl_b32 s{sT+1}, s{sT+1}, 1"); A(f"s_add_u32 s{sT+3}, s{sT+3}, s{sT+1}")
    A("v_lshlrev_b32 v11, 9, v45"); A("v_lshl_add_u32 v11, v46, 4, v11")
    A(f"s_mul_i32 s{sT}, s{sT}, {48*512}"); A(f"s_lshl_b32 s{sT+1}, s{sW}, 7"); A(f"s_add_u32 s{sT}, s{sT}, s{sT+1}")
    A(f"s_add_u32 s{sG}, s{sT}, {E5}")
    for k in range(1, 6): A(f"s_add_u32 s{sG+k}, s{sG+k-1}, 4096")
    ldspoll("L_mo", L_OCNT, 8, [], 44, 38)
    A(f"buffer_load_ushort v10, v9, {SA}, s{sT+3} offen")
    def finred(pre=True):
        if pre:
            A("v_add_f32 v48, v48, v52"); A("v_add_f32 v50, v50, v54"); A("v_add_f32 v48, v48, v56"); A("v_add_f32 v50, v50, v58")
        A("s_nop 1"); A("v_permlane32_swap_b32 v48, v50"); A("v_add_f32 v48, v48, v50")
        allred("v_add_f32", 48, 50, [16, 8])
        A("v_cvt_pk_bf16_f32 v48, v48, v48"); A("v_lshlrev_b32 v48, 16, v48")
    mpoll("L_p3", [f"buffer_load_dwordx4 v[{48+4*k}:{51+4*k}], v11, {WS}, s{sG+3+k} offen sc1" for k in range(3)], [48, 52, 56], 60, 4)
    stamp("e3seen")
    finred()
    silu(48, 50)
    A("v_cvt_pk_bf16_f32 v12, v48, v48"); A("v_lshlrev_b32 v12, 16, v12")
    A("v_lshlrev_b32 v10, 16, v10")
    if not ns5:
        mpoll("L_p5", [f"buffer_load_dwordx4 v[{48+4*k}:{51+4*k}], v11, {WS}, s{sG+k} offen sc1" for k in range(3)], [48, 52, 56], 60, p5sleep)
    else:
        def ld(q):
            for k in range(3): A(f"buffer_load_dwordx4 v[{64+12*q+4*k}:{67+12*q+4*k}], v11, {WS}, s{sG+k} offen sc1")
        A(f"s_mov_b32 s{sSPIN}, 0x4000")
        for q in range(ns5 - 1):
            ld(q)
            if p5sleep: A(f"s_sleep {p5sleep}")
        A("L_p5:")
        for q in range(ns5):
            ld((q + ns5 - 1) % ns5)
            A(f"s_waitcnt vmcnt({3*(ns5-1)})")
            b = 64 + 12 * q
            for k in range(3): A(f"v_bitop3_b32 v{60+k}, s{sTAG}, v{b+4*k+1}, v{b+4*k+3} bitop3:0x7e")
            A("v_or3_b32 v60, v60, v61, v62")
            A("v_cmp_ne_u32 vcc, 0, v60")
            A(f"v_add_f32 v48, v{b}, v{b+4}"); A(f"v_add_f32 v50, v{b+2}, v{b+6}")
            A(f"v_add_f32 v48, v48, v{b+8}"); A(f"v_add_f32 v50, v50, v{b+10}")
            A("s_cbranch_vccz L_p5_ok")
            if p5sleep: A(f"s_sleep {p5sleep}")
        A(f"s_sub_u32 s{sSPIN}, s{sSPIN}, 1")
        A("s_cbranch_scc0 L_p5")
        A("L_p5_ok:")
    stamp("e5seen")
    finred(not ns5)
    A("v_mul_f32 v48, v48, v12"); A("v_cvt_pk_bf16_f32 v48, v48, v48"); A("v_lshlrev_b32 v48, 16, v48")
    A("v_add_f32 v48, v48, v10"); A("v_cvt_pk_bf16_f32 v48, v48, v48")
    if hold:
        A("L_hold:"); A("s_memrealtime s[92:93]"); A("s_waitcnt lgkmcnt(0)"); A("s_sub_u32 s92, s92, s90")
        A(f"s_cmp_lt_u32 s92, {hold}"); A("s_cbranch_scc1 L_hold")
    A("s_mov_b32 exec_lo, 0xff"); A("s_mov_b32 exec_hi, 0xff")
    A(f"buffer_store_short v48, v9, {SB}, s{sT+3} offen {outpol}")
    A(f"s_cmp_lg_u32 s{sT+3}, 0"); A("s_cbranch_scc1 L_noepoch")
    A("s_mov_b64 exec, 1")
    A(f"v_mov_b32 v49, s{sTAG}")
    A(f"buffer_store_dword v49, v44, {WS}, 0 offen {outpol}")
    A("L_noepoch:")
    if stamps:
        A("s_waitcnt vmcnt(0)")
    stamp("end")
    A("L_help_end:")
    dump_stamps()
    A("L_end:")
    A("s_endpgm")
    A("L_code_end:")
    A('.section .rodata,"a"'); A(".p2align 6")
    A(f".amdhsa_kernel {NAME}_kernel")
    A("  .amdhsa_next_free_vgpr 168"); A("  .amdhsa_next_free_sgpr 100"); A("  .amdhsa_accum_offset 168")
    A("  .amdhsa_group_segment_fixed_size 0"); A("  .amdhsa_kernarg_size 96"); A("  .amdhsa_user_sgpr_count 2")
    A("  .amdhsa_user_sgpr_kernarg_segment_ptr 1"); A("  .amdhsa_system_sgpr_workgroup_id_x 1")
    A("  .amdhsa_float_denorm_mode_32 3")
    A(".end_amdhsa_kernel")
    return "\n".join(L) + "\n"

SETS = {
  "A": dict(start=[(0,0)], e1pub=[(0,1)], qready=[(0,2)], e0pub=[(4,3),(11,4)], stats=[(2,5)], pvdone=[(4,6)], vissued=[(11,7)], e4pub=[(None,8)],
            woissued=[(0,9)], e4seen=[(0,10)], probe=[(3,11)], e5seen=[(0,13)], e3pub=[(3,15)]),
  "C": dict(start=[(0,0),(3,1),(4,2),(11,3)], hissued=[(0,4),(2,5)], xready=[(0,6),(2,7)], lndone=[(0,8),(2,9)], e1pub=[(0,10),(1,11),(2,12)], qready=[(0,13),(1,14),(2,15)]),
  "T": dict(start=[(0,0)], e4pub=[(None,1)], woissued=[(0,2)], e4seen=[(0,3),(1,4),(2,5),(3,6)], e5pub=[(None,7)], e3seen=[(0,8)], e5seen=[(0,12),(1,9),(2,10),(3,11)], end=[(0,13),(3,14)], e3pub=[(3,15)]),
  "U": dict(start=[(0,0)], e4pub=[(None,1)], woissued=[(0,2)], e4seen=[(0,3),(1,4),(2,5),(3,6)], wolanded=[(0,7),(1,8),(2,9),(3,10)], mfmadone=[(8,11),(11,14)], e5seen=[(0,12)], end=[(0,13)], vissued=[(11,15)]),
  "S": dict(start=[(0,0),(4,1)], karg=[(0,2),(3,3),(4,4),(11,5)], h1issued=[(0,6),(2,7),(3,8)], barrier=[(0,9),(4,10)], k3issued=[(4,11)], xready=[(0,12)], e1pub=[(0,13)]),
  "W": dict(start=[(0,0)], wb0=[(4,1)], wb1=[(4,2)], wb2=[(4,3)]),
  "D": dict(start=[(0,0)], kissued=[(4,1),(5,2),(6,3),(7,4),(8,5),(9,6),(10,7),(11,8)], vissued=[(4,9),(5,10),(6,11),(8,12),(9,13),(10,14),(11,15)]),
}
def build(out, **kw):
    import hazard, os
    ref = "cdna_kernels/" + NAME + ".s.ref"
    hdr = open(ref).read().split("; Override launch")[0] if os.path.exists(ref) else ""
    if kw.get("stamps"): kw["stamps"] = SETS[kw["stamps"]]
    t = gen(**kw)
    for x in hazard.check(t)[:30]: print("HAZARD", x)
    open(out, "w").write(hdr + t)
if __name__ == "__main__":
    import ast
    kw = {}
    for a in sys.argv[2:]:
        k, v = a.split("=", 1)
        try: kw[k] = ast.literal_eval(v)
        except Exception: kw[k] = v
    build(sys.argv[1], **kw)
```

```python
import sys, struct
NAME = "recurrent_scan__sliding_block_cached__glu_gated_swiglu__decode"

def f32(x): return "0x%08x" % struct.unpack("<I", struct.pack("<f", x))[0]

E0, ACC, RDY, E1, E2 = 0x1000, 0xA000, 0xF000, 0x10000, 0x70000
WS_BYTES = E2 + 24 * 10240
TAGK = 0x9E3779B0
L_QCNT, L_OCNT, L_SFLAG, L_XF, L_M, L_LOC, L_KCNT, L_VCNT, L_WCNT, L_PUB, L_ST = 0, 4, 8, 12, 16, 24, 28, 32, 36, 40, 64
L_Q, L_WACC, L_FACC, L_XN, L_OACC = 512, 1024, 2048, 2304, 3584
LDS_BYTES = L_OACC + 8 * 768
DPPF = "row_mask:0xf bank_mask:0xf"
LOG2E = 1.4426950408889634
GTRIES, LTRIES = 0x20000, 0x800000

def gen(stamps=None, pol="nt", wo_early=2, hold=0, e1sleep=4, e0sleep=8, bar3=5, n1=24, forceslow=False, rotk=9,
        lnwave=8, pf=True, pvint=True, diag=False):
    L = []
    def A(x, c=None): L.append(x if c is None else f"{x:<72}; {c}")
    def C(x): L.append("; " + x)
    sW, sTAG, sHEAD, sSPLIT = 28, 29, 30, 31
    WS, SA, SB, SC = "s[32:35]", "s[36:39]", "s[40:43]", "s[44:47]"
    sRB, sC10, sSPIN = 48, 49, 50
    sT = 51
    sG = 56
    sRBL, sTAGX = 66, 67
    sST = 68
    sTHR, sLOC = 88, 89
    sP = 92
    PUB, EVEN = "s[14:15]", "s[24:25]"
    nst = [0]; stl = []
    def stamp(name):
        if not stamps or name not in stamps: return
        r = sST + 2 * len(stl)
        assert len(stl) < 10
        stl.append(stamps[name])
        A(f"s_memrealtime s[{r}:{r+1}]")
    def dump_stamps():
        if not stamps: return
        A("s_waitcnt lgkmcnt(0)")
        A(f"s_lshl_b32 s{sT}, s2, 7"); A(f"s_add_u32 s{sT}, s{sT}, {64<<20}")
        A(f"s_add_u32 s{sT+1}, s26, s{sT}"); A(f"s_addc_u32 s{sT+2}, s27, 0")
        A("s_mov_b64 exec, 1")
        A("v_mov_b32 v0, 0")
        for k, pairs in enumerate(stl):
            r = sST + 2 * k
            for (wv, slot) in pairs:
                lab2 = f"L_nost{nst[0]}"; nst[0] += 1
                if wv is not None:
                    A(f"s_cmp_lg_u32 s{sW}, {wv}"); A(f"s_cbranch_scc1 {lab2}")
                else:
                    A(f"s_cmp_eq_u32 s{r}, 0"); A(f"s_cbranch_scc1 {lab2}")
                A(f"v_mov_b32 v2, s{r}"); A(f"v_mov_b32 v3, s{r+1}")
                A(f"global_store_dwordx2 v0, v[2:3], s[{sT+1}:{sT+2}] offset:{8*slot}")
                A(f"{lab2}:")
    codes = {}
    def timeout(label):
        if not diag: return
        c = codes.setdefault(label, len(codes))
        A("s_load_dwordx2 s[100:101], s[0:1], 80"); A("s_waitcnt lgkmcnt(0)")
        A(f"v_mov_b32 v166, {4*c}"); A(f"s_lshl_b32 s3, s2, 4"); A(f"s_add_u32 s3, s3, s{sW}"); A("s_add_u32 s3, s3, 0x10000"); A("v_mov_b32 v167, s3")
        A("global_store_dword v166, v167, s[100:101]"); A("s_waitcnt vmcnt(0)")
    def base(n): return int(n[2:n.index(":")])
    def srd_c(name, size):
        b = base(name); A(f"s_mov_b32 s{b+2}, {size}"); A(f"s_mov_b32 s{b+3}, 0x20000")
    def srd_p(name, lo, off=None):
        b = base(name)
        if off is None: A(f"s_mov_b64 s[{b}:{b+1}], s[{lo}:{lo+1}]")
        else: A(f"s_add_u32 s{b}, s{lo}, s{off}"); A(f"s_addc_u32 s{b+1}, s{lo+1}, 0")
    def srd(name, lo, size): srd_p(name, lo); srd_c(name, size)
    def masks():
        C("v4..v7: keep one bf16 slot (lane & 7) of the eight a lane supplies to the matrix core")
        A("v_and_b32 v3, 1, v1"); A("v_lshlrev_b32 v3, 4, v3"); A("v_mov_b32 v7, 0xffff"); A("v_lshlrev_b32 v3, v3, v7")
        A("v_bfe_u32 v7, v1, 1, 2")
        A("v_cmp_eq_u32 vcc, 0, v7"); A(f"v_cmp_eq_u32 s[{sP}:{sP+1}], 1, v7"); A(f"v_cmp_eq_u32 s[{sP+2}:{sP+3}], 2, v7")
        A("v_cndmask_b32 v4, 0, v3, vcc")
        A("v_cmp_eq_u32 vcc, 3, v7")
        A(f"v_cndmask_b32 v5, 0, v3, s[{sP}:{sP+1}]"); A(f"v_cndmask_b32 v6, 0, v3, s[{sP+2}:{sP+3}]")
        A("v_cndmask_b32 v7, 0, v3, vcc")
        A(f"s_mov_b32 s{base(PUB)}, 0x00ff00ff"); A(f"s_mov_b32 s{base(PUB)+1}, s{base(PUB)}")
    def allred(op, x, t, steps):
        dp = {1: "quad_perm:[1,0,3,2]", 2: "quad_perm:[2,3,0,1]", 4: "row_ror:4", 8: "row_ror:8"}
        for s in steps:
            if s in dp:
                A("s_nop 1"); A(f"{op}_dpp v{x}, v{x}, v{x} {dp[s]} {DPPF}")
            else:
                A(f"v_mov_b32 v{t}, v{x}"); A("s_nop 1"); A(f"v_permlane{s}_swap_b32 v{x}, v{t}"); A(f"{op} v{x}, v{x}, v{t}")
    ALL = [1, 2, 8, 4, 16, 32]
    def unpack(lo, hi, src):
        A(f"v_lshlrev_b32 v{lo}, 16, v{src}"); A(f"v_and_b32 v{hi}, 0xffff0000, v{src}")
    def gettag(x=False):
        A(f"s_and_b32 s{sTAG}, s{sTAG}, -16"); A(f"s_add_u32 s{sTAG}, s{sTAG}, {TAGK:#x}", "hand-off tag of this launch")
        if x:
            A(f"s_getreg_b32 s{sTAGX}, hwreg(HW_REG_XCC_ID, 0, 4)")
            if forceslow: A(f"s_lshr_b32 s{sTAGX}, s2, 4")
            A(f"s_or_b32 s{sTAGX}, s{sTAGX}, s{sTAG}", "tag that also names this die")
    def ortree(ts, dst=None):
        ts = list(ts)
        while len(ts) > 1:
            d = ts[0] if dst is None else dst
            if len(ts) >= 3:
                A(f"v_or3_b32 v{d}, v{ts[0]}, v{ts[1]}, v{ts[2]}"); ts = ts[3:] + [d]
            else:
                A(f"v_or_b32 v{d}, v{ts[0]}, v{ts[1]}"); ts = [d]
        return ts[0]
    def poll(label, loads, regs, sleep, tag=sTAG, tries=GTRIES, onfail=None):
        A(f"s_mov_b32 s{sSPIN}, {tries}")
        A(f"{label}:")
        for l in loads: A(l)
        A("s_waitcnt vmcnt(0)")
        for r in regs: A(f"v_bitop3_b32 v{r+1}, s{tag}, v{r+1}, v{r+3} bitop3:0x7e")
        t = ortree([r + 1 for r in regs])
        A(f"v_cmp_ne_u32 vcc, 0, v{t}")
        A(f"s_cbranch_vccz {label}_ok")
        if sleep: A(f"s_sleep {sleep}")
        A(f"s_sub_u32 s{sSPIN}, s{sSPIN}, 1")
        A(f"s_cbranch_scc0 {label}")
        timeout(label)
        if onfail: onfail()
        A(f"{label}_ok:")
    def gather8(label, soff, sleep, tag, thr="0", tries=GTRIES, onfail=None):
        loads = [f"buffer_load_dwordx4 v[{96+4*i}:{99+4*i}], v19, {WS}, s{soff} offen offset:{1024*i} sc1" for i in range(4)]
        A(f"s_mov_b32 s{sSPIN}, {tries}")
        for l in loads: A(l)
        A(f"{label}:")
        A("s_waitcnt vmcnt(0)")
        for k in range(4): A(f"v_bitop3_b32 v{112+k}, s{tag}, v{97+4*k}, v{99+4*k} bitop3:0x7e")
        ortree([112, 113, 114, 115], 116)
        A(f"v_cmp_lt_u32 vcc, {thr}, v116")
        A("v_add_f32 v116, v96, v100"); A("v_add_f32 v117, v98, v102"); A("v_add_f32 v118, v104, v108"); A("v_add_f32 v119, v106, v110")
        A(f"s_cbranch_vccz {label}_ok")
        for k in range(4): A(f"v_cmp_lt_u32 s[{sP+2*k}:{sP+2*k+1}], {thr}, v{112+k}")
        if sleep: A(f"s_sleep {sleep}")
        for k, l in enumerate(loads):
            A(f"s_mov_b64 exec, s[{sP+2*k}:{sP+2*k+1}]"); A(f"s_cbranch_execz {label}_s{k}")
            A(l)
            A(f"{label}_s{k}:")
        A("s_mov_b64 exec, -1")
        A(f"s_sub_u32 s{sSPIN}, s{sSPIN}, 1")
        A(f"s_cbranch_scc0 {label}")
        timeout(label)
        if onfail: onfail()
        A("s_waitcnt vmcnt(0)")
        A(f"{label}_ok:")
        A("v_pk_add_f32 v[116:117], v[116:117], v[118:119]")
        A("s_nop 1")
        A("v_add_f32_dpp v118, v116, v116 row_shl:4 row_mask:0xf bank_mask:0x5"); A("v_add_f32_dpp v119, v117, v117 row_shl:4 row_mask:0xf bank_mask:0x5")
        A("v_add_f32_dpp v118, v116, v116 row_shr:4 row_mask:0xf bank_mask:0xa"); A("v_add_f32_dpp v119, v117, v117 row_shr:4 row_mask:0xf bank_mask:0xa")
    def ldspoll(label, flag_off, want, reads, vz, vflag, cmp="ne"):
        A(f"s_mov_b32 s{sSPIN}, {LTRIES}")
        A(f"{label}:")
        A(f"ds_read_b32 v{vflag}, v{vz} offset:{flag_off}")
        for l in reads: A(l)
        A("s_waitcnt lgkmcnt(0)")
        A(f"v_cmp_{cmp}_u32 vcc, {want}, v{vflag}")
        A(f"s_cbranch_vccz {label}_ok")
        A("s_sleep 1")
        A(f"s_sub_u32 s{sSPIN}, s{sSPIN}, 1")
        A(f"s_cbranch_scc0 {label}")
        timeout("lds")
        A(f"{label}_ok:")
    def lds_signal(op, vz, vval, off):
        A("s_mov_b64 exec, 1"); A(f"{op} v{vz}, v{vval} offset:{off}"); A("s_mov_b64 exec, -1")
    def fold(acc, y0, y1, fill):
        A(f"v_permlane32_swap_b32 v{acc}, v{acc+2}")
        A(f"v_permlane32_swap_b32 v{acc+1}, v{acc+3}")
        for l in fill: A(l)
        A(f"v_add_f32_dpp v{y0}, v{acc+2}, v{acc} row_ror:8 {DPPF}")
        A(f"v_add_f32_dpp v{y1}, v{acc+3}, v{acc+1} row_ror:8 {DPPF}")
    nfl = [0]
    def flavoured(lines):
        lab = f"L_fl{nfl[0]}"; nfl[0] += 1
        A(f"s_cmp_eq_u32 s{sLOC}, 1"); A(f"s_cbranch_scc1 {lab}_p")
        for l in lines: A(l + " sc1")
        A(f"s_branch {lab}_e")
        A(f"{lab}_p:")
        for l in lines: A(l)
        A(f"{lab}_e:")
    def silu2(x, t):
        A(f"v_mul_f32 v{t}, {f32(-LOG2E)}, v{x}"); A(f"v_mul_f32 v{t+1}, {f32(-LOG2E)}, v{x+1}")
        A(f"v_exp_f32 v{t}, v{t}"); A(f"v_exp_f32 v{t+1}, v{t+1}")
        A(f"v_add_f32 v{t}, 1.0, v{t}"); A(f"v_add_f32 v{t+1}, 1.0, v{t+1}")
        A(f"v_rcp_f32 v{t}, v{t}"); A(f"v_rcp_f32 v{t+1}, v{t+1}")
        A(f"v_mul_f32 v{x}, v{x}, v{t}"); A(f"v_mul_f32 v{x+1}, v{x+1}, v{t+1}")
    def mfma(acc, a, b, first):
        A(f"v_mfma_f32_16x16x32_bf16 v[{acc}:{acc+3}], v[{a}:{a+3}], v[{b}:{b+3}], " + ("0" if first else f"v[{acc}:{acc+3}]"))
    def unit_mfma(tail):
        for G in range(8):
            a = 20 + 4 * (G & 1); k = G >> 1
            for j in range(4):
                A(f"v_and_b32_dpp v{a+j}, v{8 + (G & 1)}, v{4+j} quad_perm:[{k},{k},{k},{k}] {DPPF}")
            if G > 0: mfma(28, 20 + 4 * ((G - 1) & 1), 48 + 4 * (G - 1), G == 1)
        A("s_nop 0")
        mfma(28, 24, 76, False)
        for l in tail: A(l)
        A(f"s_nop {7 - len(tail)}")
    def xn_dups(n, addr_setup):
        for l in addr_setup: A(l)
        rd = [f"ds_read2_b32 v[{20+2*k}:{21+2*k}], v3 offset0:{2*k} offset1:{2*k+1}" for k in range(2)]
        if n == 10: rd.append("ds_read_b32 v24, v3 offset:16")
        ldspoll(f"L_gx{n}", L_XF, 1, rd, 44, 47)
        A(f"s_mov_b32 s{sT}, 0x01000100"); A(f"s_mov_b32 s{sT+1}, 0x03020302")
        for k in range(n): A(f"v_perm_b32 v{8+k}, v{20 + k//2}, v{20 + k//2}, s{sT + (k & 1)}")
    def roles():
        A(f"s_lshr_b32 s{sC10}, s2, 3"); A(f"s_mul_i32 s{sRBL}, s{sC10}, 26"); A(f"s_lshr_b32 s{sRBL}, s{sRBL}, 8", "row block inside the group = (id >> 3) / 10")
        A(f"s_mul_i32 s{sT}, s{sRBL}, 10"); A(f"s_sub_u32 s{sC10}, s{sC10}, s{sT}", "64-column block = (id >> 3) % 10")
        A(f"s_and_b32 s{sT}, s2, 7"); A(f"s_mul_i32 s{sT}, s{sT}, 3"); A(f"s_add_u32 s{sRB}, s{sT}, s{sRBL}", "FFN block 0..23")
    def helper_addrs():
        C("v18 = publish offset, v19 = gather offset, v0 = first row/column of this lane in publish order")
        A("v_lshrrev_b32 v18, 4, v1"); A("v_lshlrev_b32 v18, 7, v18"); A("v_lshl_add_u32 v18, v46, 4, v18")
        A("v_bfe_u32 v0, v1, 3, 1"); A("v_lshlrev_b32 v0, 5, v0"); A("v_bfe_u32 v3, v1, 4, 1"); A("v_lshl_add_u32 v0, v3, 2, v0")
        A("v_lshrrev_b32 v3, 5, v1"); A("v_lshl_add_u32 v0, v3, 1, v0")
        A("v_lshrrev_b32 v19, 2, v46"); A("v_lshlrev_b32 v19, 9, v19"); A("v_lshl_add_u32 v19, v45, 6, v19")
        A("v_and_b32 v3, 3, v1"); A("v_lshl_add_u32 v19, v3, 4, v19")
        A("v_mov_b32 v44, 0")
        srd(WS, 26, WS_BYTES)

    A(f"; @launch grid=(256,1,1) block=(768,1,1) lds={LDS_BYTES}")
    A('.amdgcn_target "amdgcn-amd-amdhsa--gfx950"')
    A(".text"); A(f".globl {NAME}_kernel"); A(".p2align 8"); A(f".type {NAME}_kernel,@function")
    A(f"{NAME}_kernel:")
    A("s_load_dwordx16 s[4:19], s[0:1], 0")
    A("s_load_dwordx8 s[20:27], s[0:1], 64")
    A("s_cmpk_ge_u32 s2, 256"); A("s_cbranch_scc1 L_end")
    if stamps:
        for k in range(10): A(f"s_mov_b64 s[{sST+2*k}:{sST+2*k+1}], 0")
    stamp("start")
    if hold: A("s_memrealtime s[90:91]")
    A("v_lshrrev_b32 v2, 6, v0")
    A("v_and_b32 v1, 63, v0", "lane")
    A(f"v_readfirstlane_b32 s{sW}, v2", "wave")
    A("v_lshrrev_b32 v45, 3, v1", "row slot")
    A("v_and_b32 v46, 7, v1", "16-byte chunk")
    A(f"s_and_b32 s{sHEAD}, s2, 31"); A(f"s_lshr_b32 s{sSPLIT}, s2, 5")
    A(f"s_cmp_gt_u32 s{sW}, 2"); A("s_cbranch_scc1 L_w3up")
    C("---- waves 0..2: 80 rows x 64 columns of wq")
    A("s_setprio 3")
    A(f"s_mul_i32 s{sT}, s{sSPLIT}, {80*12288}"); A(f"s_mul_i32 s{sG}, s{sHEAD}, 3"); A(f"s_add_u32 s{sG}, s{sG}, s{sW}")
    A(f"s_lshl_b32 s{sG}, s{sG}, 7"); A(f"s_add_u32 s{sG}, s{sG}, s{sT}")
    A(f"v_mul_u32_u24 v8, {10*12288}, v45"); A("v_lshl_add_u32 v8, v46, 4, v8")
    srd_c(SB, 640 * 12288)
    A("s_waitcnt lgkmcnt(0)")
    st0 = list(stl)
    stamp("karg")
    srd_p(SB, 10)
    for G in range(10):
        A(f"buffer_load_dwordx4 v[{48+4*G}:{51+4*G}], v8, {SB}, s{sG} offen {pol}")
        if G < 9: A(f"s_addk_i32 s{sG}, 12288")
    stamp("h1issued")
    A("s_barrier")
    A(f"s_load_dword s{sTAG}, s[26:27], 0")
    stamp("barrier")
    A("s_branch L_h012b")
    st1 = list(stl); stl[:] = st0
    A("L_w3up:")
    A(f"s_cmp_gt_u32 s{sW}, 3"); A("s_cbranch_scc1 L_main")
    C("---- wave 3: 64 rows x 64 columns of w1 and w3")
    A("s_setprio 3")
    roles()
    A(f"s_mul_i32 s{sT}, s{sC10}, {64*3072}"); A(f"s_lshl_b32 s{sG}, s{sRB}, 7"); A(f"s_add_u32 s{sG}, s{sG}, s{sT}")
    A(f"v_mul_u32_u24 v8, {8*3072}, v45"); A("v_lshl_add_u32 v8, v46, 4, v8")
    srd_c(SB, 640 * 3072); srd_c(SC, 640 * 3072)
    A("s_waitcnt lgkmcnt(0)")
    stamp("karg")
    A(f"s_load_dword s{sTAG}, s[26:27], 0")
    A("s_cmpk_ge_u32 s2, 240"); A("s_cbranch_scc1 L_h3skip")
    srd_p(SB, 16); srd_p(SC, 18)
    for G in range(8):
        A(f"buffer_load_dwordx4 v[{48+8*G}:{51+8*G}], v8, {SB}, s{sG} offen {pol}")
        A(f"buffer_load_dwordx4 v[{52+8*G}:{55+8*G}], v8, {SC}, s{sG} offen {pol}")
        if G < 7: A(f"s_addk_i32 s{sG}, 3072")
        if G == bar3 - 1: A("s_barrier")
    stamp("h1issued")
    A("s_branch L_h3b")
    A("L_h3skip:")
    A("s_barrier")
    A("s_branch L_h3i")
    base_st = list(st1); stl[:] = st0

    D = 48
    A("L_main:")
    C("---- waves 4..11: 64 keys each, eight groups of eight rows")
    A("s_setprio 2")
    A("v_mov_b32 v36, 0")
    if pf:
        A(f"s_cmp_lg_u32 s{sW}, 5"); A("s_cbranch_scc1 L_nopf")
        C("pull this kernel's own code into L2: four lines per workgroup")
        A(f"s_getpc_b64 s[{sT+1}:{sT+2}]")
        A("L_pfbase:")
        A(f"s_lshr_b32 s{sT}, s2, 3"); A(f"s_lshl_b32 s{sT}, s{sT}, 7")
        A("v_and_b32 v2, 3, v1"); A(f"v_lshl_add_u32 v2, v2, 12, s{sT}")
        A("v_min_u32 v2, L_code_end-L_pfbase-4, v2")
        A(f"global_load_dword v47, v2, s[{sT+1}:{sT+2}]")
        A("L_nopf:")
    A("v_lshlrev_b32 v3, 2, v1")
    A("ds_write2st64_b32 v3, v36, v36 offset1:1", "clear the flag area")
    C("group index = 256*(wave>>3) + 32*g + ((8*(wave&3) + split + 9*g) & 31): one contiguous window per head")
    A(f"s_and_b32 s{sT}, s{sW}, 3"); A(f"s_lshl_b32 s{sT}, s{sT}, 3"); A(f"s_add_u32 s{sT}, s{sT}, s{sSPLIT}")
    A(f"s_lshr_b32 s{sT+1}, s{sW}, 3"); A(f"s_lshl_b32 s{sT+1}, s{sT+1}, 8")
    A(f"s_add_u32 s{sG}, s{sT}, s{sT+1}"); A(f"s_mulk_i32 s{sG}, 3072")
    A(f"s_mul_i32 s{sT+3}, s{sHEAD}, 12582912"); A(f"s_add_u32 s{sT+3}, s{sT+3}, 11010048")
    A("v_mul_u32_u24 v2, 384, v45"); A("v_lshl_add_u32 v2, v46, 4, v2")
    srd_c(SA, 4096 * 384)
    A("s_waitcnt lgkmcnt(0)")
    stamp("karg")
    A(f"s_cmp_lg_u32 s{sW}, {lnwave}"); A("s_cbranch_scc1 L_nox")
    srd(SB, 4, 1280)
    A("v_lshlrev_b32 v8, 4, v1")
    A(f"buffer_load_dwordx4 v[20:23], v8, {SB}, 0 offen"); A(f"buffer_load_dword v24, v3, {SB}, 0 offen offset:1024")
    A("s_barrier")
    A("s_branch L_ln")
    A("L_nox:")
    A("s_barrier")
    A("L_lnback:")
    srd_p(SA, 6, sT + 3)
    A(f"s_load_dword s{sTAG}, s[26:27], 0")
    stamp("barrier")
    for g in range(8):
        for j in range(3):
            r = D + 12 * g + 4 * j
            A(f"buffer_load_dwordx4 v[{r}:{r+3}], v2, {SA}, s{sG+g} offen offset:{128*j} {pol}")
            if g < 7:
                if j == 0: A(f"s_add_u32 s{sT}, s{sT}, {rotk}"); A(f"s_add_u32 s{sT+1}, s{sT+1}, 32")
                if j == 1: A(f"s_and_b32 s{sT+2}, s{sT}, 31"); A(f"s_add_u32 s{sG+g+1}, s{sT+2}, s{sT+1}")
                if j == 2: A(f"s_mulk_i32 s{sG+g+1}, 3072")
            else:
                if j == 0: srd_p(SB, 8, sT + 3)
                if j == 1: srd_c(SB, 4096 * 384)
        if g == 0: stamp("k3issued")
    A("s_setprio 3")
    stamp("kissued")
    srd(WS, 26, WS_BYTES)
    masks()
    A("v_lshlrev_b32 v37, 4, v46")
    for g in range(8): A(f"v_mov_b32 v{8+g}, 0")
    ldspoll("L_mq", L_QCNT, 3, [f"ds_read_b128 v[{16+4*j}:{19+4*j}], v37 offset:{L_Q+128*j}" for j in range(3)], 36, 38)
    gettag()
    stamp("qseen")
    C("scores")
    for g in range(0, 8, 2):
        A(f"s_waitcnt vmcnt({18 - 3*g})")
        for k in range(12):
            for gg in (g, g + 1):
                A(f"v_dot2c_f32_bf16 v{8+gg}, v{D+12*gg+k}, v{16+k}")
    stamp("kdone")
    for dp in ("quad_perm:[1,0,3,2]", "quad_perm:[2,3,0,1]", "row_half_mirror"):
        for g in range(8): A(f"v_add_f32_dpp v{8+g}, v{8+g}, v{8+g} {dp} {DPPF}")
    for k in range(4): A(f"v_cvt_pk_bf16_f32 v{28+k}, v{8+2*k}, v{9+2*k}")
    for k in range(4): unpack(8 + 2 * k, 9 + 2 * k, 28 + k)
    for g in range(8): A(f"v_mul_f32 v{8+g}, {f32(192 ** -0.5)}, v{8+g}")
    for k in range(4): A(f"v_cvt_pk_bf16_f32 v{28+k}, v{8+2*k}, v{9+2*k}")
    for k in range(4): unpack(8 + 2 * k, 9 + 2 * k, 28 + k)
    C("maximum and sum of exponentials of this wave's 64 keys")
    A("v_max3_f32 v40, v8, v9, v10"); A("v_max3_f32 v41, v11, v12, v13"); A("v_max3_f32 v40, v40, v14, v15"); A("v_max_f32 v40, v40, v41")
    allred("v_max_f32", 40, 41, [8, 16, 32])
    for g in range(8): A(f"v_sub_f32 v{28+g}, v{8+g}, v40")
    for g in range(8): A(f"v_mul_f32 v{28+g}, {f32(LOG2E)}, v{28+g}")
    for g in range(8): A(f"v_exp_f32 v{28+g}, v{28+g}")
    for k in range(4): A(f"v_add_f32 v{28+k}, v{28+k}, v{32+k}")
    A("v_add_f32 v28, v28, v29"); A("v_add_f32 v30, v30, v31"); A("v_add_f32 v41, v28, v30")
    allred("v_add_f32", 41, 42, [8, 16, 32])
    A(f"s_lshl_b32 s{sT}, s{sW}, 3"); A(f"v_mov_b32 v3, s{sT}"); A("v_mov_b32 v38, 1")
    A("s_mov_b64 exec, 1")
    A(f"ds_write_b64 v3, v[40:41] offset:{L_ST - 32}")
    A(f"ds_add_u32 v36, v38 offset:{L_KCNT}")
    A("s_mov_b64 exec, -1")
    stamp("e0pub")
    C("V rows of the same keys into the same registers")
    A("s_setprio 1")
    for g in range(8):
        for j in range(3):
            r = D + 12 * g + 4 * j
            A(f"buffer_load_dwordx4 v[{r}:{r+3}], v2, {SB}, s{sG} offen {pol}")
            if j < 2: A(f"s_addk_i32 s{sG}, 128")
            elif g < 7: A(f"s_mov_b32 s{sG}, s{sG+g+1}")
    lds_signal("ds_add_u32", 36, 38, L_VCNT)
    A("s_setprio 3")
    stamp("vissued")
    C("v39 = partial write offset, v37 / v0 = partial read offsets, v3 = publish offset")
    A("v_bfe_u32 v39, v1, 4, 1"); A("v_lshlrev_b32 v39, 4, v39"); A("v_lshl_add_u32 v39, v46, 5, v39")
    A("v_lshrrev_b32 v3, 5, v1"); A("v_lshl_add_u32 v39, v3, 3, v39")
    A(f"s_mul_i32 s{sT}, s{sW}, 768"); A(f"v_add_u32 v39, s{sT}, v39")
    A("v_mul_u32_u24 v0, 3072, v3"); A("v_and_b32 v37, 31, v1"); A("v_lshl_add_u32 v0, v37, 3, v0")
    A("v_lshlrev_b32 v3, 12, v3"); A("v_lshl_add_u32 v3, v37, 4, v3")
    A("v_lshlrev_b32 v37, 3, v1")
    A(f"s_mul_i32 s{sT}, s{sHEAD}, {3*4096}"); A(f"s_lshl_b32 s{sT+1}, s{sSPLIT}, 9"); A(f"s_add_u32 s{sT}, s{sT}, s{sT+1}")
    A(f"s_add_u32 s{sT}, s{sT}, {E1}"); A(f"s_add_u32 s{sT+1}, s{sT}, 8192")
    C("softmax weights with the maximum and the sum of the whole head")
    ldspoll("L_ms", L_SFLAG, 1, [f"ds_read_b96 v[40:42], v36 offset:{L_M}"], 36, 38)
    stamp("sseen")
    A(f"v_readfirstlane_b32 s{sLOC}, v42")
    for g in range(8): A(f"v_sub_f32 v{8+g}, v{8+g}, v40")
    for g in range(8): A(f"v_mul_f32 v{8+g}, {f32(LOG2E)}, v{8+g}")
    for g in range(8): A(f"v_exp_f32 v{8+g}, v{8+g}")
    for g in range(8): A(f"v_mul_f32 v{8+g}, v{8+g}, v41")
    for g in range(8): A(f"v_cvt_pk_bf16_f32 v{8+g}, v{8+g}, v{8+g}")
    A(f"s_add_u32 s{sTAGX}, s{sTAG}, 16", "second use of the q lines: another tag")
    for r in (41, 43, 45, 47): A(f"v_mov_b32 v{r}, s{sTAGX}")
    def pv_out(j):
        a = 16 + 4 * j
        fold(a, a, a + 1, ["s_nop 0"])
        A(f"s_mov_b64 exec, {PUB}")
        A(f"ds_write_b64 v39, v[{a}:{a+1}] offset:{L_OACC - 4*768 + 256*j}")
        if j < 2: A("s_mov_b64 exec, -1")
    for g in range(8):
        a = 28 + 4 * (g & 1)
        for j in range(4): A(f"v_and_b32 v{a+j}, v{8+g}, v{4+j}")
        for j in range(3):
            A(f"s_waitcnt vmcnt({3 * (7 - g) + (2 - j)})")
            if j == 0: A("s_nop 0")
            mfma(16 + 4 * j, a, D + 12 * g + 4 * j, g == 0)
            if pvint and g == 7 and j == 1:
                A("s_nop 5"); pv_out(0)
    stamp("mfmadone")
    if pvint:
        pv_out(1); pv_out(2)
    else:
        A("s_nop 3")
        for j in range(3):
            a = 16 + 4 * j
            A(f"v_permlane32_swap_b32 v{a}, v{a+2}"); A(f"v_permlane32_swap_b32 v{a+1}, v{a+3}")
        for j in range(3):
            a = 16 + 4 * j
            A(f"v_add_f32_dpp v{a}, v{a+2}, v{a} row_ror:8 {DPPF}"); A(f"v_add_f32_dpp v{a+1}, v{a+3}, v{a+1} row_ror:8 {DPPF}")
        A(f"s_mov_b64 exec, {PUB}")
        for j in range(3):
            A(f"ds_write_b64 v39, v[{16+4*j}:{17+4*j}] offset:{L_OACC - 4*768 + 256*j}")
    A("s_mov_b64 exec, 1")
    A(f"ds_add_rtn_u32 v38, v36, v38 offset:{L_OCNT}")
    A("s_mov_b64 exec, -1")
    C("the wave that arrives last adds the eight partials and publishes them")
    for w in range(8): A(f"ds_read_b64 v[{48+2*w}:{49+2*w}], v37 offset:{L_OACC + 768*w}")
    for w in range(4): A(f"ds_read_b64 v[{64+2*w}:{65+2*w}], v0 offset:{L_OACC + 768*w + 512}")
    A("s_waitcnt lgkmcnt(4)" if not stamps else "s_waitcnt lgkmcnt(0)")
    A(f"v_readfirstlane_b32 s{sT+2}, v38")
    for (x, y) in ((48, 50), (52, 54), (56, 58), (60, 62), (48, 52), (56, 60)):
        A(f"v_pk_add_f32 v[{x}:{x+1}], v[{x}:{x+1}], v[{y}:{y+1}]")
    A(f"s_cmp_lg_u32 s{sT+2}, 7"); A("s_cbranch_scc1 L_main_end")
    A("v_add_f32 v40, v48, v56"); A("v_add_f32 v42, v49, v57")
    def third():
        A("s_waitcnt lgkmcnt(0)")
        A("v_pk_add_f32 v[64:65], v[64:65], v[66:67]"); A("v_pk_add_f32 v[68:69], v[68:69], v[70:71]")
        A("v_pk_add_f32 v[64:65], v[64:65], v[68:69]")
        A("s_nop 1")
        A("v_permlane32_swap_b32 v64, v66"); A("v_permlane32_swap_b32 v65, v67")
        A("v_add_f32 v44, v64, v66"); A("v_add_f32 v46, v65, v67")
        A("s_mov_b32 exec_hi, 0")
    A(f"s_cmp_lg_u32 s{sLOC}, 1"); A("s_cbranch_scc1 L_e4far")
    A(f"buffer_store_dwordx4 v[40:43], v3, {WS}, s{sT} offen")
    third()
    A(f"buffer_store_dwordx4 v[44:47], v3, {WS}, s{sT+1} offen")
    A("L_e4done:")
    A("s_mov_b64 exec, 1")
    A(f"ds_write_b32 v36, v38 offset:{L_PUB}")
    stamp("e4pub")
    A("L_main_end:")
    dump_stamps()
    A("s_endpgm")
    A("L_e4far:")
    A(f"buffer_store_dwordx4 v[40:43], v3, {WS}, s{sT} offen sc1")
    third()
    A(f"buffer_store_dwordx4 v[44:47], v3, {WS}, s{sT+1} offen sc1")
    A("s_branch L_e4done")

    A("L_ln:")
    C("---- layer norm of x, rounded step by step to bf16, into LDS")
    A("s_waitcnt vmcnt(0)")
    for k in range(5): unpack(48 + 2 * k, 49 + 2 * k, 20 + k)
    for k in range(4): A(f"v_pk_add_f32 v[40:41], v[{40 if k else 48}:{41 if k else 49}], v[{50+2*k}:{51+2*k}]")
    A("v_add_f32 v40, v40, v41")
    allred("v_add_f32", 40, 41, ALL)
    A(f"v_mul_f32 v40, {f32(1/640)}, v40")
    for k in range(10): A(f"v_sub_f32 v{60+k}, v{48+k}, v40")
    A("v_mul_f32 v42, v60, v60"); A("v_mul_f32 v43, v61, v61")
    for k in range(2, 10): A(f"v_fmac_f32 v{42 + k % 2}, v{60+k}, v{60+k}")
    A("v_add_f32 v42, v42, v43")
    allred("v_add_f32", 42, 41, ALL)
    A(f"v_mul_f32 v42, {f32(1/640)}, v42")
    A("v_cvt_pk_bf16_f32 v41, v40, v42")
    unpack(40, 42, 41)
    A(f"v_add_f32 v42, {f32(1e-5)}, v42")
    A("v_cvt_pk_bf16_f32 v42, v42, v42"); A("v_lshlrev_b32 v42, 16, v42")
    A("v_sqrt_f32 v42, v42")
    for k in range(10): A(f"v_sub_f32 v{48+k}, v{48+k}, v40")
    A("v_cvt_pk_bf16_f32 v42, v42, v42"); A("v_lshlrev_b32 v42, 16, v42")
    A("v_rcp_f32 v42, v42")
    for k in range(5): A(f"v_cvt_pk_bf16_f32 v{20+k}, v{48+2*k}, v{49+2*k}")
    for k in range(5): unpack(48 + 2 * k, 49 + 2 * k, 20 + k)
    for k in range(10): A(f"v_mul_f32 v{48+k}, v{48+k}, v42")
    for k in range(5): A(f"v_cvt_pk_bf16_f32 v{20+k}, v{48+2*k}, v{49+2*k}")
    A("v_mov_b32 v38, 1")
    A(f"ds_write_b128 v8, v[20:23] offset:{L_XN}"); A(f"ds_write_b32 v3, v24 offset:{L_XN + 1024}")
    lds_signal("ds_write_b32", 36, 38, L_XF)
    A("s_branch L_lnback")

    stl[:] = base_st
    A("L_h012b:")
    C("---- waves 0..2: partial q, exchange inside the head, q into LDS")
    roles()
    masks()
    helper_addrs()
    xn_dups(10, [f"s_mul_i32 s{sT}, s{sSPLIT}, 160", f"s_add_u32 s{sT}, s{sT}, {L_XN}", "v_mul_u32_u24 v3, 20, v45", f"v_add_u32 v3, s{sT}, v3"])
    gettag(True)
    stamp("lndone")
    for G in range(10):
        a = 20 + 4 * (G & 1)
        for j in range(4): A(f"v_and_b32 v{a+j}, v{8+G}, v{4+j}")
        A(f"s_waitcnt vmcnt({9-G})"); A("s_nop 0")
        mfma(28, a, 48 + 4 * G, G == 0)
    A(f"s_mul_i32 s{sT}, s{sHEAD}, 3"); A(f"s_add_u32 s{sT}, s{sT}, s{sW}"); A(f"s_lshl_b32 s{sT}, s{sT}, 12"); A(f"s_add_u32 s{sT}, s{sT}, {E1}")
    A(f"s_lshl_b32 s{sT+1}, s{sSPLIT}, 9"); A(f"s_add_u32 s{sT+1}, s{sT+1}, s{sT}")
    A(f"s_mov_b32 s{sTHR}, 0")
    A(f"v_mov_b32 v33, s{sTAGX}")
    fold(28, 32, 34, [f"v_mov_b32 v35, s{sTAGX}"])
    A(f"s_mov_b64 exec, {PUB}")
    A(f"buffer_store_dwordx4 v[32:35], v18, {WS}, s{sT+1} offen")
    A("s_mov_b64 exec, -1")
    stamp("e1pub")
    def e1slow():
        C("some producer of this head is (or may be) on another die: write through and accept any die id")
        A(f"s_cmp_lg_u32 s{sTHR}, 0"); A("s_cbranch_scc1 L_p1_giveup")
        A(f"s_mov_b32 s{sTHR}, 15"); A(f"s_mov_b32 s{sSPIN}, {GTRIES}")
        A(f"s_mov_b64 exec, {PUB}")
        A(f"buffer_store_dwordx4 v[32:35], v18, {WS}, s{sT+1} offen sc1")
        A("s_mov_b64 exec, -1")
        A("s_branch L_p1")
        A("L_p1_giveup:")
    gather8("L_p1", sT, e1sleep, sTAGX, thr=f"s{sTHR}", tries=n1, onfail=e1slow)
    A("v_cvt_pk_bf16_f32 v96, v118, v119")
    A("v_and_b32 v3, 3, v1"); A("v_lshlrev_b32 v3, 4, v3"); A("v_lshl_add_u32 v3, v0, 1, v3")
    A(f"s_lshl_b32 s{sT}, s{sW}, 7"); A(f"v_add_u32 v3, s{sT}, v3")
    A(f"ds_write_b32 v3, v96 offset:{L_Q}")
    A("v_mov_b32 v38, 1")
    lds_signal("ds_add_u32", 44, 38, L_QCNT)
    stamp("qready")
    A(f"s_cmp_lg_u32 s{sW}, 2"); A("s_cbranch_scc1 L_wo")
    C("---- wave 2: softmax maximum and sum of the head")
    A("v_lshlrev_b32 v3, 4, v1"); A(f"s_lshl_b32 s{sT}, s{sHEAD}, 10"); A(f"s_add_u32 s{sT}, s{sT}, {E0}")
    A("v_lshlrev_b32 v39, 3, v46")
    A(f"v_mov_b32 v41, s{sTAG}"); A(f"v_mov_b32 v43, s{sTAG}")
    A(f"s_lshl_b32 s{sT+1}, s{sSPLIT}, 7"); A(f"s_add_u32 s{sT+1}, s{sT+1}, s{sT}")
    ldspoll("L_gl", L_LOC, 0, [], 44, 37, cmp="eq")
    A(f"v_readfirstlane_b32 s{sLOC}, v37")
    ldspoll("L_gk", L_KCNT, 8, [f"ds_read_b32 v40, v39 offset:{L_ST}", f"ds_read_b32 v42, v39 offset:{L_ST+4}"], 44, 37)
    A("s_mov_b64 exec, 0xff")
    flavoured([f"buffer_store_dwordx4 v[40:43], v3, {WS}, s{sT+1} offen"])
    A("s_mov_b64 exec, -1")
    poll("L_p0", [f"buffer_load_dwordx4 v[96:99], v3, {WS}, s{sT} offen sc1"], [96], e0sleep)
    A("v_mov_b32 v40, v96")
    allred("v_max_f32", 40, 41, ALL)
    A("v_sub_f32 v96, v96, v40"); A(f"v_mul_f32 v96, {f32(LOG2E)}, v96"); A("v_exp_f32 v96, v96"); A("s_nop 0")
    A("v_mul_f32 v42, v96, v98")
    allred("v_add_f32", 42, 41, ALL)
    A("v_rcp_f32 v41, v42")
    A("s_mov_b64 exec, 1")
    A(f"ds_write_b64 v44, v[40:41] offset:{L_M}")
    A(f"ds_write_b32 v44, v38 offset:{L_SFLAG}")
    A("s_mov_b64 exec, -1")
    stamp("stats")
    A("s_branch L_wo")
    A("L_h3i:")
    C("---- wave 3 of workgroups 240..249: clear the accumulators of one column block, then say so")
    helper_addrs()
    A("s_cmpk_ge_u32 s2, 250"); A("s_cbranch_scc1 L_h3c")
    A(f"s_sub_u32 s{sT}, s2, 240"); A(f"s_lshl_b32 s{sT+1}, s{sT}, 7"); A(f"s_add_u32 s{sT+1}, s{sT+1}, {RDY}")
    A(f"s_lshl_b32 s{sT}, s{sT}, 10"); A(f"s_add_u32 s{sT}, s{sT}, {ACC}")
    for k in range(4): A(f"v_mov_b32 v{20+k}, 0")
    A("v_lshlrev_b32 v3, 4, v1")
    A(f"buffer_store_dwordx4 v[20:23], v3, {WS}, s{sT} offen sc1")
    A("s_waitcnt vmcnt(0) lgkmcnt(0)")
    A(f"s_and_b32 s{sT}, s{sTAG}, -16"); A(f"s_add_u32 s{sT}, s{sT}, {TAGK:#x}")
    for k in range(4): A(f"v_mov_b32 v{24+k}, s{sT}")
    A("s_mov_b64 exec, 0xff")
    A(f"buffer_store_dwordx4 v[24:27], v3, {WS}, s{sT+1} offen sc1")
    A("s_mov_b64 exec, -1")
    A("s_branch L_h3c")
    A("L_h3b:")
    C("---- wave 3: partial gate / up")
    masks()
    helper_addrs()
    xn_dups(8, [f"s_lshl_b32 s{sT}, s{sC10}, 7", f"s_add_u32 s{sT}, s{sT}, {L_XN}", f"v_lshl_add_u32 v3, v45, 4, s{sT}"])
    for G in range(8):
        a = 20 + 4 * (G & 1)
        for j in range(4): A(f"v_and_b32 v{a+j}, v{8+G}, v{4+j}")
        A(f"s_waitcnt vmcnt({14-2*G})"); A("s_nop 0")
        for m in range(2): mfma(28 + 4 * m, a, 48 + 8 * G + 4 * m, G == 0)
    A("L_h3c:")
    C("do all 32 workgroups with this id & 7 sit on this die?  Their q partials carry their die ids")
    A("v_and_b32 v3, 3, v1"); A(f"v_mul_u32_u24 v3, {8*3*4096}, v3"); A("v_lshrrev_b32 v2, 2, v1"); A("v_lshl_add_u32 v3, v2, 9, v3")
    A(f"s_and_b32 s{sT}, s2, 7"); A(f"s_mul_i32 s{sT}, s{sT}, {3*4096}"); A(f"s_add_u32 s{sT}, s{sT}, {E1}")
    ldspoll("L_gq", L_QCNT, 3, [], 44, 47)
    gettag(True)
    A(f"s_mov_b32 s{sLOC}, 1")
    A("s_mov_b32 exec_hi, 0")
    poll("L_pl", [f"buffer_load_dwordx4 v[96:99], v3, {WS}, s{sT} offen sc1"], [96], 8, tag=sTAGX, tries=6, onfail=lambda: A(f"s_mov_b32 s{sLOC}, 2"))
    A(f"v_mov_b32 v47, s{sLOC}")
    lds_signal("ds_write_b32", 44, 47, L_LOC)
    stamp("probe")
    A("s_cmpk_ge_u32 s2, 240"); A("s_cbranch_scc1 L_help_end")
    A(f"s_mul_i32 s{sG}, s{sRB}, 10240"); A(f"s_add_u32 s{sG}, s{sG}, {E2}")
    A(f"s_add_u32 s{sG+1}, s{sG}, 4096"); A(f"s_add_u32 s{sG+2}, s{sG}, 8192")
    A(f"s_lshl_b32 s{sT}, s{sC10}, 10"); A(f"s_add_u32 s{sT}, s{sT}, s{sG}")
    fold(28, 36, 38, [f"v_mov_b32 v37, s{sTAG}", f"v_mov_b32 v39, s{sTAG}"])
    fold(32, 40, 42, [f"v_mov_b32 v41, s{sTAG}", f"v_mov_b32 v43, s{sTAG}"])
    A(f"s_mov_b64 exec, {PUB}")
    flavoured([f"buffer_store_dwordx4 v[36:39], v18, {WS}, s{sT} offen", f"buffer_store_dwordx4 v[40:43], v18, {WS}, s{sT} offen offset:512"])
    A("s_mov_b64 exec, -1")
    C("hidden block and its 64 x 64 piece of w2")
    A(f"s_mul_i32 s{sT}, s{sRB}, {64*1280}"); A(f"s_lshl_b32 s{sT+1}, s{sC10}, 7"); A(f"s_add_u32 s{sT}, s{sT}, s{sT+1}")
    srd(SB, 20, 1536 * 1280)
    A(f"v_mul_u32_u24 v2, 1280, v0"); A("v_lshl_add_u32 v2, v46, 4, v2")
    ldspoll("L_gk3", L_KCNT, 8, [], 44, 47)
    for G in range(8):
        A(f"buffer_load_dwordx4 v[{48+4*G}:{51+4*G}], v2, {SB}, s{sT} offen {pol}")
        if G < 7: A(f"s_addk_i32 s{sT}, {1280 if G % 2 == 0 else 7*1280}")
    poll("L_p2", [f"buffer_load_dwordx4 v[{96+4*i}:{99+4*i}], v19, {WS}, s{sG + (i>>2)} offen offset:{1024*(i&3)} sc1" for i in range(10)],
         [96 + 4 * i for i in range(10)], 16)
    for (x, y) in ((0, 1), (2, 3), (4, 5), (6, 7), (8, 9), (0, 2), (4, 6), (0, 8), (0, 4)):
        A(f"v_add_f32 v{96+4*x}, v{96+4*x}, v{96+4*y}"); A(f"v_add_f32 v{98+4*x}, v{98+4*x}, v{98+4*y}")
    A("v_cvt_pk_bf16_f32 v96, v96, v98")
    A("v_mov_b32 v97, v96"); A("v_mov_b32 v98, v96")
    A("v_mov_b32_dpp v97, v96 row_shr:4 row_mask:0xf bank_mask:0xa", "gate pair")
    A("v_mov_b32_dpp v98, v96 row_shl:4 row_mask:0xf bank_mask:0x5", "up pair")
    unpack(100, 101, 97); unpack(102, 103, 98)
    silu2(100, 104)
    A("v_cvt_pk_bf16_f32 v97, v100, v101"); unpack(100, 101, 97)
    A("v_mul_f32 v100, v100, v102"); A("v_mul_f32 v101, v101, v103")
    A("v_cvt_pk_bf16_f32 v8, v100, v100"); A("v_cvt_pk_bf16_f32 v9, v101, v101")
    A(f"s_add_u32 s{sT+1}, s{sT+1}, {RDY}")
    unit_mfma(["v_lshrrev_b32 v36, 1, v18", "v_lshrrev_b32 v3, 1, v1", "v_lshlrev_b32 v3, 2, v3", f"v_add_u32 v3, {L_FACC}, v3", "v_mov_b32 v10, 1.0", "v_mov_b32 v11, 1.0"])
    fold(28, 28, 29, ["s_nop 0"])
    A(f"s_mov_b64 exec, {PUB}")
    A(f"ds_write_b64 v36, v[28:29] offset:{L_FACC}")
    A("s_mov_b32 exec_lo, 0x55555555"); A("s_mov_b32 exec_hi, 0x55555555")
    A("ds_read2_b32 v[10:11], v3 offset1:32", "even lanes: value, odd lanes: 1.0 (arrival count)")
    A("s_mov_b64 exec, -1")
    C("the accumulators must have been cleared in this launch")
    A(f"s_mov_b32 s{sSPIN}, {GTRIES}")
    A("L_pr:")
    A(f"s_load_dwordx2 s[{sP}:{sP+1}], s[26:27], s{sT+1} glc")
    A("s_waitcnt lgkmcnt(0)")
    A(f"s_xor_b32 s{sP}, s{sP}, s{sTAG}"); A(f"s_xor_b32 s{sP+1}, s{sP+1}, s{sTAG}"); A(f"s_or_b32 s{sP}, s{sP}, s{sP+1}")
    A("s_cbranch_scc0 L_wo")
    A("s_sleep 4")
    A(f"s_sub_u32 s{sSPIN}, s{sSPIN}, 1")
    A("s_cbranch_scc0 L_pr")
    timeout("L_pr")
    A("L_wo:")
    C("---- waves 0..3: a 64 x 64 piece of wo each")
    A("s_cmpk_ge_u32 s2, 240"); A("s_cbranch_scc1 L_help_end")
    A(f"s_lshl_b32 s{sT+2}, s{sRBL}, 2"); A(f"s_add_u32 s{sT+2}, s{sT+2}, s{sW}", "b = 4*rbl + wave")
    A(f"s_mul_i32 s{sT}, s{sT+2}, 86"); A(f"s_lshr_b32 s{sT}, s{sT}, 8")
    A(f"s_mul_i32 s{sT}, s{sT}, 21"); A(f"s_add_u32 s{sT+2}, s{sT+2}, s{sT}")
    A(f"s_and_b32 s{sT}, s2, 7"); A(f"s_mul_i32 s{sT}, s{sT}, 3"); A(f"s_add_u32 s{sT+2}, s{sT+2}, s{sT}", "64-row block = 3*head + b % 3")
    A(f"s_mul_i32 s{sT}, s{sT+2}, {64*1280}"); A(f"s_lshl_b32 s{sG+2}, s{sC10}, 7"); A(f"s_add_u32 s{sT}, s{sT}, s{sG+2}")
    srd(SB, 12, 6144 * 1280); srd(SA, 4, 1280); srd(SC, 22, 1280)
    A(f"v_mul_u32_u24 v2, {8*1280}, v45"); A("v_lshl_add_u32 v2, v46, 4, v2")
    A(f"s_lshl_b32 s{sG}, s{sT+2}, 12"); A(f"s_add_u32 s{sG}, s{sG}, {E1}")
    A(f"s_lshl_b32 s{sG+1}, s{sC10}, 10"); A(f"s_add_u32 s{sG+1}, s{sG+1}, {ACC}")
    A("v_lshrrev_b32 v37, 1, v18"); A(f"s_lshl_b32 s{sT+2}, s{sW}, 8"); A(f"v_add_u32 v37, s{sT+2}, v37")
    A("v_lshrrev_b32 v36, 1, v1"); A("v_lshlrev_b32 v36, 2, v36"); A(f"v_add_u32 v36, {L_WACC}, v36")
    C("v16 = byte offset of this lane pair's first output column, v17 = accumulator offset")
    A("v_bfe_u32 v16, v1, 2, 3"); A("v_lshlrev_b32 v16, 4, v16"); A("v_lshrrev_b32 v17, 5, v1"); A("v_lshl_add_u32 v16, v17, 3, v16")
    A("v_and_b32 v17, 2, v1"); A("v_add_u32 v16, v16, v17")
    A("v_lshlrev_b32 v17, 2, v1")
    A(f"s_add_u32 s{sTAGX}, s{sTAG}, 16")
    A(f"s_mov_b32 s{base(EVEN)}, 0x55555555"); A(f"s_mov_b32 s{base(EVEN)+1}, s{base(EVEN)}")
    A("v_mov_b32 v40, 1.0"); A("v_mov_b32 v41, 1.0")
    A(f"v_mov_b32 v42, {f32(23.0)}"); A(f"v_mov_b32 v43, {f32(24.0)}")
    def woload(G):
        A(f"buffer_load_dwordx4 v[{48+4*G}:{51+4*G}], v2, {SB}, s{sT} offen {pol}")
        if G < 7: A(f"s_addk_i32 s{sT}, 1280")
    ldspoll("L_gk4", L_KCNT, 8, [], 44, 47)
    A(f"buffer_load_ushort v14, v16, {SA}, s{sG+2} offen"); A(f"buffer_load_ushort v15, v16, {SA}, s{sG+2} offen offset:4")
    for G in range(wo_early): woload(G)
    ldspoll("L_gv", L_VCNT, 8, [], 44, 47)
    for G in range(wo_early, 8): woload(G)
    stamp("woissued")
    A(f"s_cmp_lg_u32 s{sW}, 3"); A("s_cbranch_scc1 L_nof3")
    A(f"buffer_atomic_add_f32 v10, v17, {WS}, s{sG+1} offen offset:512 sc1")
    A(f"buffer_atomic_add_f32 v11, v17, {WS}, s{sG+1} offen offset:768 sc1")
    A("L_nof3:")
    ldspoll("L_go", L_PUB, 7, [], 44, 47)
    A("v_mov_b32 v47, 1")
    gather8("L_p4", sG, 0, sTAGX)
    stamp("e4seen")
    A("v_cvt_pk_bf16_f32 v8, v118, v118"); A("v_cvt_pk_bf16_f32 v9, v119, v119")
    A("s_nop 0")
    unit_mfma([])
    fold(28, 28, 29, ["s_nop 0"])
    A(f"s_mov_b64 exec, {PUB}")
    A(f"ds_write_b64 v37, v[28:29] offset:{L_WACC}")
    A("s_mov_b64 exec, 1")
    A(f"ds_add_rtn_u32 v47, v44, v47 offset:{L_WCNT}")
    A(f"s_mov_b64 exec, {EVEN}")
    for w in range(4): A(f"ds_read2_b32 v[{20+2*w}:{21+2*w}], v36 offset0:{64*w} offset1:{64*w+32}")
    A("s_waitcnt lgkmcnt(0)")
    A(f"v_readfirstlane_b32 s{sT}, v47")
    A("v_pk_add_f32 v[20:21], v[20:21], v[22:23]"); A("v_pk_add_f32 v[24:25], v[24:25], v[26:27]")
    A(f"s_cmp_lg_u32 s{sT}, 3"); A("s_cbranch_scc1 L_help_end")
    C("last wave of the workgroup: add {value, 1.0} pairs to the accumulators; whoever sees 23 earlier arrivals finishes the column")
    def gload():
        A(f"buffer_load_dword v12, v17, {WS}, s{sG+1} offen offset:512 sc1"); A(f"buffer_load_dword v13, v17, {WS}, s{sG+1} offen offset:768 sc1")
    def gcalc():
        A(f"v_cmp_ne_u32 s[{sP+2}:{sP+3}], v12, v43"); A(f"v_cmp_ne_u32 s[{sP+4}:{sP+5}], v13, v43")
        A("v_cvt_pk_bf16_f32 v22, v12, v13")
        unpack(12, 13, 22)
        silu2(12, 24)
        A(f"s_or_b64 s[{sP+2}:{sP+3}], s[{sP+2}:{sP+3}], s[{sP+4}:{sP+5}]")
        A("v_cvt_pk_bf16_f32 v22, v12, v13")
        A(f"s_andn2_b64 s[{sP+2}:{sP+3}], s[{sP+2}:{sP+3}], {EVEN}", "count lanes that are not complete")
        unpack(12, 13, 22)
    A("v_pk_add_f32 v[40:41], v[20:21], v[24:25]")
    A("s_mov_b64 exec, -1")
    gload()
    A(f"buffer_atomic_add_f32 v40, v17, {WS}, s{sG+1} offen sc0 sc1")
    A(f"buffer_atomic_add_f32 v41, v17, {WS}, s{sG+1} offen offset:256 sc0 sc1")
    stamp("e5pub")
    A("v_pk_add_f32 v[20:21], v[20:21], v[24:25]")
    A("v_lshlrev_b32 v14, 16, v14"); A("v_lshlrev_b32 v15, 16, v15")
    A(f"s_mov_b32 s{sSPIN}, {GTRIES}")
    A("s_waitcnt vmcnt(2)")
    gcalc()
    A("s_waitcnt vmcnt(0)")
    stamp("atdone")
    A("v_cmp_eq_f32 vcc, v40, v42"); A(f"v_cmp_eq_f32 s[{sP}:{sP+1}], v41, v42")
    A("v_pk_add_f32 v[20:21], v[20:21], v[40:41]")
    A("s_lshr_b64 vcc, vcc, 1"); A(f"s_lshr_b64 s[{sP}:{sP+1}], s[{sP}:{sP+1}], 1")
    A("v_cvt_pk_bf16_f32 v23, v20, v21")
    A(f"s_cmp_lg_u64 s[{sP+2}:{sP+3}], 0"); A("s_cbranch_scc1 L_glate")
    A("L_gok:")
    unpack(20, 21, 23)
    A("v_pk_mul_f32 v[20:21], v[20:21], v[12:13]")
    A("v_cvt_pk_bf16_f32 v22, v20, v21")
    unpack(20, 21, 22)
    A("v_pk_add_f32 v[20:21], v[20:21], v[14:15]")
    A("v_cvt_pk_bf16_f32 v22, v20, v21")
    if hold:
        A("L_hold:"); A("s_memrealtime s[96:97]"); A("s_waitcnt lgkmcnt(0)"); A("s_sub_u32 s96, s96, s90")
        A(f"s_cmp_lt_u32 s96, {hold}"); A("s_cbranch_scc1 L_hold")
    A(f"s_and_b64 exec, vcc, {EVEN}"); A("s_cbranch_execz L_no0")
    A(f"buffer_store_short v22, v16, {SC}, s{sG+2} offen")
    A("L_no0:")
    A(f"s_and_b64 exec, s[{sP}:{sP+1}], {EVEN}"); A("s_cbranch_execz L_no1")
    A(f"buffer_store_short_d16_hi v22, v16, {SC}, s{sG+2} offen offset:4")
    A(f"s_cmp_lg_u32 s{sC10}, 0"); A("s_cbranch_scc1 L_no1")
    A("s_and_b64 exec, exec, 1"); A("s_cbranch_execz L_no1")
    C("every wave of the launch has read the old word by now: leave this launch's tag for the next one to step past")
    A(f"v_mov_b32 v49, s{sTAG}")
    A(f"buffer_store_dword v49, v44, {WS}, 0 offen")
    A("L_no1:")
    if stamps: A("s_waitcnt vmcnt(0)")
    stamp("end")
    A("L_help_end:")
    dump_stamps()
    A("L_end:")
    A("s_endpgm")
    A("L_glate:")
    C("the gate sums are not complete yet: only a wave that finishes some column waits for them")
    A(f"s_or_b64 s[{sP+4}:{sP+5}], vcc, s[{sP}:{sP+1}]"); A(f"s_and_b64 s[{sP+4}:{sP+5}], s[{sP+4}:{sP+5}], {EVEN}")
    A("s_cbranch_scc0 L_help_end")
    A("L_gre:")
    gload()
    A("s_waitcnt vmcnt(0)")
    gcalc()
    A(f"s_cmp_eq_u64 s[{sP+2}:{sP+3}], 0"); A("s_cbranch_scc1 L_gok")
    A(f"s_sub_u32 s{sSPIN}, s{sSPIN}, 1")
    A("s_cbranch_scc0 L_gre")
    timeout("L_gre")
    if diag:
        A("v_lshlrev_b32 v166, 2, v1"); A("v_add_u32 v166, 1024, v166")
        gload(); A("s_waitcnt vmcnt(0)")
        A("global_store_dword v166, v12, s[100:101]"); A("global_store_dword v166, v13, s[100:101] offset:256")
        print(codes)
    A("s_endpgm")
    A("L_code_end:")
    A('.section .rodata,"a"'); A(".p2align 6")
    A(f".amdhsa_kernel {NAME}_kernel")
    A("  .amdhsa_next_free_vgpr 168"); A("  .amdhsa_next_free_sgpr 102"); A("  .amdhsa_accum_offset 168")
    A("  .amdhsa_group_segment_fixed_size 0"); A("  .amdhsa_kernarg_size 96"); A("  .amdhsa_user_sgpr_count 2")
    A("  .amdhsa_user_sgpr_kernarg_segment_ptr 1"); A("  .amdhsa_system_sgpr_workgroup_id_x 1")
    A("  .amdhsa_float_denorm_mode_32 3")
    A(".end_amdhsa_kernel")
    return "\n".join(L) + "\n"

SETS = {
  "A": dict(start=[(0,0)], e1pub=[(0,1)], qready=[(0,2)], e0pub=[(4,3),(11,4)], stats=[(2,5)], kissued=[(4,6),(11,12)], vissued=[(11,7)], e4pub=[(None,8)],
            woissued=[(0,9)], e4seen=[(0,10)], probe=[(3,11)], atdone=[(None,13)], lndone=[(0,14)]),
  "V": dict(start=[(0,0)], e4pub=[(None,1)], woissued=[(0,2)], e4seen=[(0,3),(1,4),(2,5),(3,6)], e5pub=[(None,7)], atdone=[(None,8)], end=[(None,9)], mfmadone=[(8,10),(9,11),(10,12),(11,13)], stats=[(2,14)]),
  "S": dict(start=[(0,0),(4,1)], karg=[(0,2),(3,3),(4,4),(11,5)], h1issued=[(0,6),(2,7),(3,8)], barrier=[(0,9),(4,10)], k3issued=[(4,11)], lndone=[(0,12)], e1pub=[(0,13)], kissued=[(4,14)]),
}
def build(out, **kw):
    import hazard, os
    ref = "cdna_kernels/" + NAME + ".s.ref"
    hdr = open(ref).read().split("; Override launch")[0] if os.path.exists(ref) else ""
    if kw.get("stamps"): kw["stamps"] = SETS[kw["stamps"]]
    t = gen(**kw)
    for x in hazard.check(t)[:30]: print("HAZARD", x)
    open(out, "w").write(hdr + t)
if __name__ == "__main__":
    import ast
    kw = {}
    for a in sys.argv[2:]:
        k, v = a.split("=", 1)
        try: kw[k] = ast.literal_eval(v)
        except Exception: kw[k] = v
    build(sys.argv[1], **kw)
```

```python
import sys, struct
NAME = "recurrent_scan__sliding_block_cached__glu_gated_swiglu__decode"

def f32(x): return "0x%08x" % struct.unpack("<I", struct.pack("<f", x))[0]

E0, ACC, RDY, E1, E2 = 0x1000, 0xA000, 0xF000, 0x10000, 0x70000
WS_BYTES = E2 + 24 * 10240
TAGK = 0x9E3779B0
L_QCNT, L_OCNT, L_SFLAG, L_XF, L_M, L_LOC, L_KCNT, L_VCNT, L_WCNT, L_PUB, L_ST = 0, 4, 8, 12, 16, 24, 28, 32, 36, 40, 64
L_Q, L_WACC, L_FACC, L_XN, L_OACC = 512, 1024, 2048, 2304, 3584
LDS_BYTES = L_OACC + 8 * 768
DPPF = "row_mask:0xf bank_mask:0xf"
LOG2E = 1.4426950408889634
GTRIES, LTRIES = 0x20000, 0x800000

DOC = """
One launch, 256 workgroups of 12 waves, one workgroup per CU; every byte of K, V and the weights is read once.
  workgroup id b: head = b & 31, split = b >> 5 (512 keys); group = b & 7 (32 workgroups, four heads).
  waves 4..11 : 64 keys each.  K rows -> registers, scores (v_dot2c), V rows -> same registers, P.V on the matrix core.
  waves 0..2  : 80 x 64 piece of wq -> partial q, exchanged inside the head; wave 2 also exchanges the softmax max / sum.
  wave 3      : 64 x 64 pieces of w1, w3 and w2 (workgroups < 240).
  waves 0..3  : 64 x 64 piece of wo each (workgroups < 240).
A row-major [8 rows][64 columns] tile is one 16-byte load per lane and one v_mfma_f32_16x16x32_bf16 whose A operand holds
the row weight in slot (lane & 7) only (masks v4..v7).  All intermediate values are rounded to bf16 where the reference does.
Hand-offs between workgroups go through d_ws as 8-byte {value, tag} granules.  The tag is the word at d_ws[0] plus a constant;
the launch leaves its tag there, so granules of an earlier launch never match.  Stores are plain only when the readers are
known to share this L2 (die ids travel in the tags of the q partials); otherwise they are written through (sc1).
The last two sums (wo and w2 partials) are f64 device-scope atomic adds of {value, 1.0} pairs on accumulators cleared in this
launch; the adder that sees all other arrivals finishes that output column.  Every wait is bounded.
"""
def gen(stamps=None, pol="nt", wo_early=2, hold=0, e1sleep=4, e0sleep=8, bar3=5, n1=24, forceslow=False, rotk=9,
        lnwave=8, pf=True, pvint=True, diag=False, tlb=0, rev=False, gmode=0, otouch=0, f64=True):
    L = []
    def A(x, c=None): L.append(x if c is None else f"{x:<72}; {c}")
    def C(x): L.append("; " + x)
    sW, sTAG, sHEAD, sSPLIT = 28, 29, 30, 31
    WS, SA, SB, SC = "s[32:35]", "s[36:39]", "s[40:43]", "s[44:47]"
    sRB, sC10, sSPIN = 48, 49, 50
    sT = 51
    sG = 56
    sRBL, sTAGX = 66, 67
    sST = 68
    sTHR, sLOC = 88, 89
    sP = 92
    PUB, EVEN = "s[14:15]", "s[24:25]"
    nst = [0]; stl = []
    def stamp(name):
        if not stamps or name not in stamps: return
        r = sST + 2 * len(stl)
        assert len(stl) < 10
        stl.append(stamps[name])
        A(f"s_memrealtime s[{r}:{r+1}]")
    def dump_stamps():
        if not stamps: return
        A("s_waitcnt lgkmcnt(0)")
        A(f"s_lshl_b32 s{sT}, s2, 7"); A(f"s_add_u32 s{sT}, s{sT}, {64<<20}")
        A(f"s_add_u32 s{sT+1}, s26, s{sT}"); A(f"s_addc_u32 s{sT+2}, s27, 0")
        A("s_mov_b64 exec, 1")
        A("v_mov_b32 v0, 0")
        for k, pairs in enumerate(stl):
            r = sST + 2 * k
            for (wv, slot) in pairs:
                lab2 = f"L_nost{nst[0]}"; nst[0] += 1
                if wv is not None:
                    A(f"s_cmp_lg_u32 s{sW}, {wv}"); A(f"s_cbranch_scc1 {lab2}")
                else:
                    A(f"s_cmp_eq_u32 s{r}, 0"); A(f"s_cbranch_scc1 {lab2}")
                A(f"v_mov_b32 v2, s{r}"); A(f"v_mov_b32 v3, s{r+1}")
                A(f"global_store_dwordx2 v0, v[2:3], s[{sT+1}:{sT+2}] offset:{8*slot}")
                A(f"{lab2}:")
    codes = {}
    def timeout(label):
        if not diag: return
        c = codes.setdefault(label, len(codes))
        A("s_load_dwordx2 s[100:101], s[0:1], 80"); A("s_waitcnt lgkmcnt(0)")
        A(f"v_mov_b32 v166, {4*c}"); A(f"s_lshl_b32 s3, s2, 4"); A(f"s_add_u32 s3, s3, s{sW}"); A("s_add_u32 s3, s3, 0x10000"); A("v_mov_b32 v167, s3")
        A("global_store_dword v166, v167, s[100:101]"); A("s_waitcnt vmcnt(0)")
    def base(n): return int(n[2:n.index(":")])
    def srd_c(name, size):
        b = base(name); A(f"s_mov_b32 s{b+2}, {size}"); A(f"s_mov_b32 s{b+3}, 0x20000")
    def srd_p(name, lo, off=None):
        b = base(name)
        if off is None: A(f"s_mov_b64 s[{b}:{b+1}], s[{lo}:{lo+1}]")
        else: A(f"s_add_u32 s{b}, s{lo}, s{off}"); A(f"s_addc_u32 s{b+1}, s{lo+1}, 0")
    def srd(name, lo, size): srd_p(name, lo); srd_c(name, size)
    def masks():
        C("v4..v7: keep one bf16 slot (lane & 7) of the eight a lane supplies to the matrix core")
        A("v_and_b32 v3, 1, v1"); A("v_lshlrev_b32 v3, 4, v3"); A("v_mov_b32 v7, 0xffff"); A("v_lshlrev_b32 v3, v3, v7")
        A("v_bfe_u32 v7, v1, 1, 2")
        A("v_cmp_eq_u32 vcc, 0, v7"); A(f"v_cmp_eq_u32 s[{sP}:{sP+1}], 1, v7"); A(f"v_cmp_eq_u32 s[{sP+2}:{sP+3}], 2, v7")
        A("v_cndmask_b32 v4, 0, v3, vcc")
        A("v_cmp_eq_u32 vcc, 3, v7")
        A(f"v_cndmask_b32 v5, 0, v3, s[{sP}:{sP+1}]"); A(f"v_cndmask_b32 v6, 0, v3, s[{sP+2}:{sP+3}]")
        A("v_cndmask_b32 v7, 0, v3, vcc")
        A(f"s_mov_b32 s{base(PUB)}, 0x00ff00ff"); A(f"s_mov_b32 s{base(PUB)+1}, s{base(PUB)}")
    def allred(op, x, t, steps):
        dp = {1: "quad_perm:[1,0,3,2]", 2: "quad_perm:[2,3,0,1]", 4: "row_ror:4", 8: "row_ror:8"}
        for s in steps:
            if s in dp:
                A("s_nop 1"); A(f"{op}_dpp v{x}, v{x}, v{x} {dp[s]} {DPPF}")
            else:
                A(f"v_mov_b32 v{t}, v{x}"); A("s_nop 1"); A(f"v_permlane{s}_swap_b32 v{x}, v{t}"); A(f"{op} v{x}, v{x}, v{t}")
    ALL = [1, 2, 8, 4, 16, 32]
    def unpack(lo, hi, src):
        A(f"v_lshlrev_b32 v{lo}, 16, v{src}"); A(f"v_and_b32 v{hi}, 0xffff0000, v{src}")
    def gettag(x=False):
        A(f"s_and_b32 s{sTAG}, s{sTAG}, -16"); A(f"s_add_u32 s{sTAG}, s{sTAG}, {TAGK:#x}", "hand-off tag of this launch")
        if x:
            A(f"s_getreg_b32 s{sTAGX}, hwreg(HW_REG_XCC_ID, 0, 4)")
            if forceslow: A(f"s_lshr_b32 s{sTAGX}, s2, 4")
            A(f"s_or_b32 s{sTAGX}, s{sTAGX}, s{sTAG}", "tag that also names this die")
    def ortree(ts, dst=None):
        ts = list(ts)
        while len(ts) > 1:
            d = ts[0] if dst is None else dst
            if len(ts) >= 3:
                A(f"v_or3_b32 v{d}, v{ts[0]}, v{ts[1]}, v{ts[2]}"); ts = ts[3:] + [d]
            else:
                A(f"v_or_b32 v{d}, v{ts[0]}, v{ts[1]}"); ts = [d]
        return ts[0]
    def poll(label, loads, regs, sleep, tag=sTAG, tries=GTRIES, onfail=None):
        A(f"s_mov_b32 s{sSPIN}, {tries}")
        A(f"{label}:")
        for l in loads: A(l)
        A("s_waitcnt vmcnt(0)")
        for r in regs: A(f"v_bitop3_b32 v{r+1}, s{tag}, v{r+1}, v{r+3} bitop3:0x7e")
        t = ortree([r + 1 for r in regs])
        A(f"v_cmp_ne_u32 vcc, 0, v{t}")
        A(f"s_cbranch_vccz {label}_ok")
        if sleep: A(f"s_sleep {sleep}")
        A(f"s_sub_u32 s{sSPIN}, s{sSPIN}, 1")
        A(f"s_cbranch_scc0 {label}")
        timeout(label)
        if onfail: onfail()
        A(f"{label}_ok:")
    def gather8(label, soff, sleep, tag, thr="0", tries=GTRIES, onfail=None):
        loads = [f"buffer_load_dwordx4 v[{96+4*i}:{99+4*i}], v19, {WS}, s{soff} offen offset:{1024*i} sc1" for i in range(4)]
        A(f"s_mov_b32 s{sSPIN}, {tries}")
        for l in loads: A(l)
        A(f"{label}:")
        A("s_waitcnt vmcnt(0)")
        for k in range(4): A(f"v_bitop3_b32 v{112+k}, s{tag}, v{97+4*k}, v{99+4*k} bitop3:0x7e")
        ortree([112, 113, 114, 115], 116)
        A(f"v_cmp_lt_u32 vcc, {thr}, v116")
        A("v_add_f32 v116, v96, v100"); A("v_add_f32 v117, v98, v102"); A("v_add_f32 v118, v104, v108"); A("v_add_f32 v119, v106, v110")
        A(f"s_cbranch_vccz {label}_ok")
        for k in range(4): A(f"v_cmp_lt_u32 s[{sP+2*k}:{sP+2*k+1}], {thr}, v{112+k}")
        if sleep: A(f"s_sleep {sleep}")
        for k, l in enumerate(loads):
            A(f"s_mov_b64 exec, s[{sP+2*k}:{sP+2*k+1}]"); A(f"s_cbranch_execz {label}_s{k}")
            A(l)
            A(f"{label}_s{k}:")
        A("s_mov_b64 exec, -1")
        A(f"s_sub_u32 s{sSPIN}, s{sSPIN}, 1")
        A(f"s_cbranch_scc0 {label}")
        timeout(label)
        if onfail: onfail()
        A("s_waitcnt vmcnt(0)")
        A(f"{label}_ok:")
        A("v_pk_add_f32 v[116:117], v[116:117], v[118:119]")
        A("s_nop 1")
        A("v_add_f32_dpp v118, v116, v116 row_shl:4 row_mask:0xf bank_mask:0x5"); A("v_add_f32_dpp v119, v117, v117 row_shl:4 row_mask:0xf bank_mask:0x5")
        A("v_add_f32_dpp v118, v116, v116 row_shr:4 row_mask:0xf bank_mask:0xa"); A("v_add_f32_dpp v119, v117, v117 row_shr:4 row_mask:0xf bank_mask:0xa")
    def ldspoll(label, flag_off, want, reads, vz, vflag, cmp="ne"):
        A(f"s_mov_b32 s{sSPIN}, {LTRIES}")
        A(f"{label}:")
        A(f"ds_read_b32 v{vflag}, v{vz} offset:{flag_off}")
        for l in reads: A(l)
        A("s_waitcnt lgkmcnt(0)")
        A(f"v_cmp_{cmp}_u32 vcc, {want}, v{vflag}")
        A(f"s_cbranch_vccz {label}_ok")
        A("s_sleep 1")
        A(f"s_sub_u32 s{sSPIN}, s{sSPIN}, 1")
        A(f"s_cbranch_scc0 {label}")
        timeout("lds")
        A(f"{label}_ok:")
    def lds_signal(op, vz, vval, off):
        A("s_mov_b64 exec, 1"); A(f"{op} v{vz}, v{vval} offset:{off}"); A("s_mov_b64 exec, -1")
    def fold(acc, y0, y1, fill):
        A(f"v_permlane32_swap_b32 v{acc}, v{acc+2}")
        A(f"v_permlane32_swap_b32 v{acc+1}, v{acc+3}")
        for l in fill: A(l)
        A(f"v_add_f32_dpp v{y0}, v{acc+2}, v{acc} row_ror:8 {DPPF}")
        A(f"v_add_f32_dpp v{y1}, v{acc+3}, v{acc+1} row_ror:8 {DPPF}")
    nfl = [0]
    def flavoured(lines):
        lab = f"L_fl{nfl[0]}"; nfl[0] += 1
        A(f"s_cmp_eq_u32 s{sLOC}, 1"); A(f"s_cbranch_scc1 {lab}_p")
        for l in lines: A(l + " sc1")
        A(f"s_branch {lab}_e")
        A(f"{lab}_p:")
        for l in lines: A(l)
        A(f"{lab}_e:")
    def silu2(x, t):
        A(f"v_mul_f32 v{t}, {f32(-LOG2E)}, v{x}"); A(f"v_mul_f32 v{t+1}, {f32(-LOG2E)}, v{x+1}")
        A(f"v_exp_f32 v{t}, v{t}"); A(f"v_exp_f32 v{t+1}, v{t+1}")
        A(f"v_add_f32 v{t}, 1.0, v{t}"); A(f"v_add_f32 v{t+1}, 1.0, v{t+1}")
        A(f"v_rcp_f32 v{t}, v{t}"); A(f"v_rcp_f32 v{t+1}, v{t+1}")
        A(f"v_mul_f32 v{x}, v{x}, v{t}"); A(f"v_mul_f32 v{x+1}, v{x+1}, v{t+1}")
    def mfma(acc, a, b, first):
        A(f"v_mfma_f32_16x16x32_bf16 v[{acc}:{acc+3}], v[{a}:{a+3}], v[{b}:{b+3}], " + ("0" if first else f"v[{acc}:{acc+3}]"))
    def unit_mfma(tail):
        for G in range(8):
            a = 20 + 4 * (G & 1); k = G >> 1
            for j in range(4):
                A(f"v_and_b32_dpp v{a+j}, v{8 + (G & 1)}, v{4+j} quad_perm:[{k},{k},{k},{k}] {DPPF}")
            if G > 0: mfma(28, 20 + 4 * ((G - 1) & 1), 48 + 4 * (G - 1), G == 1)
        A("s_nop 0")
        mfma(28, 24, 76, False)
        for l in tail: A(l)
        A(f"s_nop {7 - len(tail)}")
    def xn_dups(n, addr_setup):
        for l in addr_setup: A(l)
        rd = [f"ds_read2_b32 v[{20+2*k}:{21+2*k}], v3 offset0:{2*k} offset1:{2*k+1}" for k in range(2)]
        if n == 10: rd.append("ds_read_b32 v24, v3 offset:16")
        ldspoll(f"L_gx{n}", L_XF, 1, rd, 44, 47)
        A(f"s_mov_b32 s{sT}, 0x01000100"); A(f"s_mov_b32 s{sT+1}, 0x03020302")
        for k in range(n): A(f"v_perm_b32 v{8+k}, v{20 + k//2}, v{20 + k//2}, s{sT + (k & 1)}")
    def roles():
        A(f"s_lshr_b32 s{sC10}, s2, 3"); A(f"s_mul_i32 s{sRBL}, s{sC10}, 26"); A(f"s_lshr_b32 s{sRBL}, s{sRBL}, 8", "row block inside the group = (id >> 3) / 10")
        A(f"s_mul_i32 s{sT}, s{sRBL}, 10"); A(f"s_sub_u32 s{sC10}, s{sC10}, s{sT}", "64-column block = (id >> 3) % 10")
        A(f"s_and_b32 s{sT}, s2, 7"); A(f"s_mul_i32 s{sT}, s{sT}, 3"); A(f"s_add_u32 s{sRB}, s{sT}, s{sRBL}", "FFN block 0..23")
    def helper_addrs():
        C("v18 = publish offset, v19 = gather offset, v0 = first row/column of this lane in publish order")
        A("v_lshrrev_b32 v18, 4, v1"); A("v_lshlrev_b32 v18, 7, v18"); A("v_lshl_add_u32 v18, v46, 4, v18")
        A("v_bfe_u32 v0, v1, 3, 1"); A("v_lshlrev_b32 v0, 5, v0"); A("v_bfe_u32 v3, v1, 4, 1"); A("v_lshl_add_u32 v0, v3, 2, v0")
        A("v_lshrrev_b32 v3, 5, v1"); A("v_lshl_add_u32 v0, v3, 1, v0")
        A("v_lshrrev_b32 v19, 2, v46"); A("v_lshlrev_b32 v19, 9, v19"); A("v_lshl_add_u32 v19, v45, 6, v19")
        A("v_and_b32 v3, 3, v1"); A("v_lshl_add_u32 v19, v3, 4, v19")
        A("v_mov_b32 v44, 0")
        srd(WS, 26, WS_BYTES)

    A(f"; @launch grid=(256,1,1) block=(768,1,1) lds={LDS_BYTES}")
    A('.amdgcn_target "amdgcn-amd-amdhsa--gfx950"')
    for l in DOC.strip("\n").split("\n"): C(l)
    A(".text"); A(f".globl {NAME}_kernel"); A(".p2align 8"); A(f".type {NAME}_kernel,@function")
    A(f"{NAME}_kernel:")
    A("s_load_dwordx16 s[4:19], s[0:1], 0")
    A("s_load_dwordx8 s[20:27], s[0:1], 64")
    A("s_cmpk_ge_u32 s2, 256"); A("s_cbranch_scc1 L_end")
    if stamps:
        for k in range(10): A(f"s_mov_b64 s[{sST+2*k}:{sST+2*k+1}], 0")
    stamp("start")
    if hold: A("s_memrealtime s[90:91]")
    A("v_lshrrev_b32 v2, 6, v0")
    A("v_and_b32 v1, 63, v0", "lane")
    A(f"v_readfirstlane_b32 s{sW}, v2", "wave")
    A("v_lshrrev_b32 v45, 3, v1", "row slot")
    A("v_and_b32 v46, 7, v1", "16-byte chunk")
    A(f"s_and_b32 s{sHEAD}, s2, 31"); A(f"s_lshr_b32 s{sSPLIT}, s2, 5")
    A(f"s_cmp_gt_u32 s{sW}, 2"); A("s_cbranch_scc1 L_w3up")
    C("---- waves 0..2: 80 rows x 64 columns of wq")
    A("s_setprio 3")
    A(f"s_mul_i32 s{sT}, s{sSPLIT}, {80*12288}"); A(f"s_mul_i32 s{sG}, s{sHEAD}, 3"); A(f"s_add_u32 s{sG}, s{sG}, s{sW}")
    A(f"s_lshl_b32 s{sG}, s{sG}, 7"); A(f"s_add_u32 s{sG}, s{sG}, s{sT}")
    A(f"v_mul_u32_u24 v8, {10*12288}, v45"); A("v_lshl_add_u32 v8, v46, 4, v8")
    srd_c(SB, 640 * 12288)
    A("s_waitcnt lgkmcnt(0)")
    st0 = list(stl)
    stamp("karg")
    srd_p(SB, 10)
    for G in range(10):
        A(f"buffer_load_dwordx4 v[{48+4*G}:{51+4*G}], v8, {SB}, s{sG} offen {pol}")
        if G < 9: A(f"s_addk_i32 s{sG}, 12288")
    stamp("h1issued")
    A("s_barrier")
    A(f"s_load_dword s{sTAG}, s[26:27], 0")
    stamp("barrier")
    A("s_branch L_h012b")
    st1 = list(stl); stl[:] = st0
    A("L_w3up:")
    A(f"s_cmp_gt_u32 s{sW}, 3"); A("s_cbranch_scc1 L_main")
    C("---- wave 3: 64 rows x 64 columns of w1 and w3")
    A("s_setprio 3")
    roles()
    A(f"s_mul_i32 s{sT}, s{sC10}, {64*3072}"); A(f"s_lshl_b32 s{sG}, s{sRB}, 7"); A(f"s_add_u32 s{sG}, s{sG}, s{sT}")
    A(f"v_mul_u32_u24 v8, {8*3072}, v45"); A("v_lshl_add_u32 v8, v46, 4, v8")
    srd_c(SB, 640 * 3072); srd_c(SC, 640 * 3072)
    if lnwave == 3:
        srd_c(SA, 1280); A("v_lshlrev_b32 v9, 4, v1"); A("v_lshlrev_b32 v3, 2, v1")
    A("s_waitcnt lgkmcnt(0)")
    stamp("karg")
    if lnwave == 3:
        srd_p(SA, 4)
        A(f"buffer_load_dwordx4 v[20:23], v9, {SA}, 0 offen"); A(f"buffer_load_dword v24, v3, {SA}, 0 offen offset:1024")
    A(f"s_load_dword s{sTAG}, s[26:27], 0")
    A("s_cmpk_ge_u32 s2, 240"); A("s_cbranch_scc1 L_h3skip")
    srd_p(SB, 16); srd_p(SC, 18)
    for G in range(8):
        A(f"buffer_load_dwordx4 v[{48+8*G}:{51+8*G}], v8, {SB}, s{sG} offen {pol}")
        A(f"buffer_load_dwordx4 v[{52+8*G}:{55+8*G}], v8, {SC}, s{sG} offen {pol}")
        if G < 7: A(f"s_addk_i32 s{sG}, 3072")
        if G == bar3 - 1: A("s_barrier")
    stamp("h1issued")
    if lnwave == 3:
        A("s_waitcnt vmcnt(16)")
        A("s_branch L_ln")
        A("L_h3skip:")
        A("s_barrier")
        A("s_waitcnt vmcnt(0)")
        A("s_branch L_ln")
    else:
        A("s_branch L_h3b")
        A("L_h3skip:")
        A("s_barrier")
        A("s_branch L_h3i")
    base_st = list(st1); stl[:] = st0

    D = 48
    A("L_main:")
    C("---- waves 4..11: 64 keys each, eight groups of eight rows")
    A("s_setprio 2")
    A("v_mov_b32 v36, 0")
    if pf:
        A(f"s_cmp_lg_u32 s{sW}, 5"); A("s_cbranch_scc1 L_nopf")
        C("pull this kernel's own code into L2: four lines per workgroup")
        A(f"s_getpc_b64 s[{sT+1}:{sT+2}]")
        A("L_pfbase:")
        A(f"s_lshr_b32 s{sT}, s2, 3"); A(f"s_lshl_b32 s{sT}, s{sT}, 7")
        A("v_and_b32 v2, 3, v1"); A(f"v_lshl_add_u32 v2, v2, 12, s{sT}")
        A("v_min_u32 v2, L_code_end-L_pfbase-4, v2")
        A(f"global_load_dword v47, v2, s[{sT+1}:{sT+2}]")
        A("L_nopf:")
    A("v_lshlrev_b32 v3, 2, v1")
    A("ds_write2st64_b32 v3, v36, v36 offset1:1", "clear the flag area")
    C("group index = 256*(wave>>3) + 32*g + ((8*(wave&3) + split + 9*g) & 31): one contiguous window per head")
    A(f"s_and_b32 s{sT}, s{sW}, 3"); A(f"s_lshl_b32 s{sT}, s{sT}, 3"); A(f"s_add_u32 s{sT}, s{sT}, s{sSPLIT}")
    A(f"s_lshr_b32 s{sT+1}, s{sW}, 3"); A(f"s_lshl_b32 s{sT+1}, s{sT+1}, 8")
    if rev: A(f"s_sub_u32 s{sT+1}, 480, s{sT+1}")
    A(f"s_add_u32 s{sG}, s{sT}, s{sT+1}"); A(f"s_mulk_i32 s{sG}, 3072")
    A(f"s_mul_i32 s{sT+3}, s{sHEAD}, 12582912"); A(f"s_add_u32 s{sT+3}, s{sT+3}, 11010048")
    A("v_mul_u32_u24 v2, 384, v45"); A("v_lshl_add_u32 v2, v46, 4, v2")
    srd_c(SA, 4096 * 384)
    A("s_waitcnt lgkmcnt(0)")
    stamp("karg")
    if lnwave != 3:
        A(f"s_cmp_lg_u32 s{sW}, {lnwave}"); A("s_cbranch_scc1 L_nox")
        srd(SB, 4, 1280)
        A("v_lshlrev_b32 v8, 4, v1")
        A(f"buffer_load_dwordx4 v[20:23], v8, {SB}, 0 offen"); A(f"buffer_load_dword v24, v3, {SB}, 0 offen offset:1024")
        A("s_barrier")
        A("s_branch L_ln")
        A("L_nox:")
        A("s_barrier")
        A("L_lnback:")
    else:
        A("s_barrier")
    srd_p(SA, 6, sT + 3)
    A(f"s_load_dword s{sTAG}, s[26:27], 0")
    if tlb:
        A(f"s_cmp_lg_u32 s{sW}, 9"); A("s_cbranch_scc1 L_notlb")
        A(f"s_add_u32 s{sT+4}, s{sT+3}, s{sG}")
        A(f"s_load_dword s3, s[8:9], s{sT+4}")
        if tlb > 1:
            A(f"s_mul_i32 s{sT+4}, s2, {24*1280}"); A(f"s_load_dword s3, s[12:13], s{sT+4}")
            A(f"s_mul_i32 s{sT+4}, s2, {6*1280}"); A(f"s_load_dword s3, s[20:21], s{sT+4}")
        A("L_notlb:")
    stamp("barrier")
    for g in range(8):
        for j in range(3):
            r = D + 12 * g + 4 * j
            A(f"buffer_load_dwordx4 v[{r}:{r+3}], v2, {SA}, s{sG+g} offen offset:{128*j} {pol}")
            if g < 7:
                if j == 0: A(f"s_add_u32 s{sT}, s{sT}, {rotk}"); A(f"s_{'sub' if rev else 'add'}_u32 s{sT+1}, s{sT+1}, 32")
                if j == 1: A(f"s_and_b32 s{sT+2}, s{sT}, 31"); A(f"s_add_u32 s{sG+g+1}, s{sT+2}, s{sT+1}")
                if j == 2: A(f"s_mulk_i32 s{sG+g+1}, 3072")
            else:
                if j == 0: srd_p(SB, 8, sT + 3)
                if j == 1: srd_c(SB, 4096 * 384)
        if g == 0: stamp("k3issued")
    A("s_setprio 3")
    stamp("kissued")
    srd(WS, 26, WS_BYTES)
    masks()
    A("v_lshlrev_b32 v37, 4, v46")
    for g in range(8): A(f"v_mov_b32 v{8+g}, 0")
    ldspoll("L_mq", L_QCNT, 3, [f"ds_read_b128 v[{16+4*j}:{19+4*j}], v37 offset:{L_Q+128*j}" for j in range(3)], 36, 38)
    gettag()
    stamp("qseen")
    C("scores")
    for g in range(0, 8, 2):
        A(f"s_waitcnt vmcnt({18 - 3*g})")
        for k in range(12):
            for gg in (g, g + 1):
                A(f"v_dot2c_f32_bf16 v{8+gg}, v{D+12*gg+k}, v{16+k}")
    stamp("kdone")
    for dp in ("quad_perm:[1,0,3,2]", "quad_perm:[2,3,0,1]", "row_half_mirror"):
        for g in range(8): A(f"v_add_f32_dpp v{8+g}, v{8+g}, v{8+g} {dp} {DPPF}")
    for k in range(4): A(f"v_cvt_pk_bf16_f32 v{28+k}, v{8+2*k}, v{9+2*k}")
    for k in range(4): unpack(8 + 2 * k, 9 + 2 * k, 28 + k)
    for g in range(8): A(f"v_mul_f32 v{8+g}, {f32(192 ** -0.5)}, v{8+g}")
    for k in range(4): A(f"v_cvt_pk_bf16_f32 v{28+k}, v{8+2*k}, v{9+2*k}")
    for k in range(4): unpack(8 + 2 * k, 9 + 2 * k, 28 + k)
    C("maximum and sum of exponentials of this wave's 64 keys")
    A("v_max3_f32 v40, v8, v9, v10"); A("v_max3_f32 v41, v11, v12, v13"); A("v_max3_f32 v40, v40, v14, v15"); A("v_max_f32 v40, v40, v41")
    allred("v_max_f32", 40, 41, [8, 16, 32])
    for g in range(8): A(f"v_sub_f32 v{28+g}, v{8+g}, v40")
    for g in range(8): A(f"v_mul_f32 v{28+g}, {f32(LOG2E)}, v{28+g}")
    for g in range(8): A(f"v_exp_f32 v{28+g}, v{28+g}")
    for k in range(4): A(f"v_add_f32 v{28+k}, v{28+k}, v{32+k}")
    A("v_add_f32 v28, v28, v29"); A("v_add_f32 v30, v30, v31"); A("v_add_f32 v41, v28, v30")
    allred("v_add_f32", 41, 42, [8, 16, 32])
    A(f"s_lshl_b32 s{sT}, s{sW}, 3"); A(f"v_mov_b32 v3, s{sT}"); A("v_mov_b32 v38, 1")
    A("s_mov_b64 exec, 1")
    A(f"ds_write_b64 v3, v[40:41] offset:{L_ST - 32}")
    A(f"ds_add_u32 v36, v38 offset:{L_KCNT}")
    A("s_mov_b64 exec, -1")
    stamp("e0pub")
    C("V rows of the same keys into the same registers")
    A("s_setprio 1")
    for g in range(8):
        for j in range(3):
            r = D + 12 * g + 4 * j
            A(f"buffer_load_dwordx4 v[{r}:{r+3}], v2, {SB}, s{sG} offen {pol}")
            if j < 2: A(f"s_addk_i32 s{sG}, 128")
            elif g < 7: A(f"s_mov_b32 s{sG}, s{sG+g+1}")
    lds_signal("ds_add_u32", 36, 38, L_VCNT)
    A("s_setprio 3")
    stamp("vissued")
    C("v39 = partial write offset, v37 / v0 = partial read offsets, v3 = publish offset")
    A("v_bfe_u32 v39, v1, 4, 1"); A("v_lshlrev_b32 v39, 4, v39"); A("v_lshl_add_u32 v39, v46, 5, v39")
    A("v_lshrrev_b32 v3, 5, v1"); A("v_lshl_add_u32 v39, v3, 3, v39")
    A(f"s_mul_i32 s{sT}, s{sW}, 768"); A(f"v_add_u32 v39, s{sT}, v39")
    A("v_mul_u32_u24 v0, 3072, v3"); A("v_and_b32 v37, 31, v1"); A("v_lshl_add_u32 v0, v37, 3, v0")
    A("v_lshlrev_b32 v3, 12, v3"); A("v_lshl_add_u32 v3, v37, 4, v3")
    A("v_lshlrev_b32 v37, 3, v1")
    A(f"s_mul_i32 s{sT}, s{sHEAD}, {3*4096}"); A(f"s_lshl_b32 s{sT+1}, s{sSPLIT}, 9"); A(f"s_add_u32 s{sT}, s{sT}, s{sT+1}")
    A(f"s_add_u32 s{sT}, s{sT}, {E1}"); A(f"s_add_u32 s{sT+1}, s{sT}, 8192")
    C("softmax weights with the maximum and the sum of the whole head")
    ldspoll("L_ms", L_SFLAG, 1, [f"ds_read_b96 v[40:42], v36 offset:{L_M}"], 36, 38)
    stamp("sseen")
    A(f"v_readfirstlane_b32 s{sLOC}, v42")
    for g in range(8): A(f"v_sub_f32 v{8+g}, v{8+g}, v40")
    for g in range(8): A(f"v_mul_f32 v{8+g}, {f32(LOG2E)}, v{8+g}")
    for g in range(8): A(f"v_exp_f32 v{8+g}, v{8+g}")
    for g in range(8): A(f"v_mul_f32 v{8+g}, v{8+g}, v41")
    for g in range(8): A(f"v_cvt_pk_bf16_f32 v{8+g}, v{8+g}, v{8+g}")
    A(f"s_add_u32 s{sTAGX}, s{sTAG}, 16", "second use of the q lines: another tag")
    for r in (41, 43, 45, 47): A(f"v_mov_b32 v{r}, s{sTAGX}")
    def pv_out(j):
        a = 16 + 4 * j
        fold(a, a, a + 1, ["s_nop 0"])
        A(f"s_mov_b64 exec, {PUB}")
        A(f"ds_write_b64 v39, v[{a}:{a+1}] offset:{L_OACC - 4*768 + 256*j}")
        if j < 2: A("s_mov_b64 exec, -1")
    for g in range(8):
        a = 28 + 4 * (g & 1)
        for j in range(4): A(f"v_and_b32 v{a+j}, v{8+g}, v{4+j}")
        for j in range(3):
            A(f"s_waitcnt vmcnt({3 * (7 - g) + (2 - j)})")
            if j == 0: A("s_nop 0")
            mfma(16 + 4 * j, a, D + 12 * g + 4 * j, g == 0)
            if pvint and g == 7 and j == 1:
                A("s_nop 5"); pv_out(0)
    stamp("mfmadone")
    if pvint:
        pv_out(1); pv_out(2)
    else:
        A("s_nop 3")
        for j in range(3):
            a = 16 + 4 * j
            A(f"v_permlane32_swap_b32 v{a}, v{a+2}"); A(f"v_permlane32_swap_b32 v{a+1}, v{a+3}")
        for j in range(3):
            a = 16 + 4 * j
            A(f"v_add_f32_dpp v{a}, v{a+2}, v{a} row_ror:8 {DPPF}"); A(f"v_add_f32_dpp v{a+1}, v{a+3}, v{a+1} row_ror:8 {DPPF}")
        A(f"s_mov_b64 exec, {PUB}")
        for j in range(3):
            A(f"ds_write_b64 v39, v[{16+4*j}:{17+4*j}] offset:{L_OACC - 4*768 + 256*j}")
    A("s_mov_b64 exec, 1")
    A(f"ds_add_rtn_u32 v38, v36, v38 offset:{L_OCNT}")
    A("s_mov_b64 exec, -1")
    C("the wave that arrives last adds the eight partials and publishes them")
    for w in range(8): A(f"ds_read_b64 v[{48+2*w}:{49+2*w}], v37 offset:{L_OACC + 768*w}")
    for w in range(4): A(f"ds_read_b64 v[{64+2*w}:{65+2*w}], v0 offset:{L_OACC + 768*w + 512}")
    A("s_waitcnt lgkmcnt(4)" if not stamps else "s_waitcnt lgkmcnt(0)")
    A(f"v_readfirstlane_b32 s{sT+2}, v38")
    for (x, y) in ((48, 50), (52, 54), (56, 58), (60, 62), (48, 52), (56, 60)):
        A(f"v_pk_add_f32 v[{x}:{x+1}], v[{x}:{x+1}], v[{y}:{y+1}]")
    A(f"s_cmp_lg_u32 s{sT+2}, 7"); A("s_cbranch_scc1 L_main_end")
    A("v_add_f32 v40, v48, v56"); A("v_add_f32 v42, v49, v57")
    def third():
        A("s_waitcnt lgkmcnt(0)")
        A("v_pk_add_f32 v[64:65], v[64:65], v[66:67]"); A("v_pk_add_f32 v[68:69], v[68:69], v[70:71]")
        A("v_pk_add_f32 v[64:65], v[64:65], v[68:69]")
        A("s_nop 1")
        A("v_permlane32_swap_b32 v64, v66"); A("v_permlane32_swap_b32 v65, v67")
        A("v_add_f32 v44, v64, v66"); A("v_add_f32 v46, v65, v67")
        A("s_mov_b32 exec_hi, 0")
    A(f"s_cmp_lg_u32 s{sLOC}, 1"); A("s_cbranch_scc1 L_e4far")
    A(f"buffer_store_dwordx4 v[40:43], v3, {WS}, s{sT} offen")
    third()
    A(f"buffer_store_dwordx4 v[44:47], v3, {WS}, s{sT+1} offen")
    A("L_e4done:")
    A("s_mov_b64 exec, 1")
    A(f"ds_write_b32 v36, v38 offset:{L_PUB}")
    stamp("e4pub")
    A("L_main_end:")
    dump_stamps()
    A("s_endpgm")
    A("L_e4far:")
    A(f"buffer_store_dwordx4 v[40:43], v3, {WS}, s{sT} offen sc1")
    third()
    A(f"buffer_store_dwordx4 v[44:47], v3, {WS}, s{sT+1} offen sc1")
    A("s_branch L_e4done")

    A("L_ln:")
    C("---- layer norm of x, rounded step by step to bf16, into LDS")
    if lnwave != 3: A("s_waitcnt vmcnt(0)")
    X1, X2 = (112, 124) if lnwave == 3 else (48, 60)
    for k in range(5): unpack(X1 + 2 * k, X1 + 1 + 2 * k, 20 + k)
    for k in range(4): A(f"v_pk_add_f32 v[40:41], v[{40 if k else X1}:{41 if k else X1+1}], v[{X1+2+2*k}:{X1+3+2*k}]")
    A("v_add_f32 v40, v40, v41")
    allred("v_add_f32", 40, 41, ALL)
    A(f"v_mul_f32 v40, {f32(1/640)}, v40")
    for k in range(10): A(f"v_sub_f32 v{X2+k}, v{X1+k}, v40")
    A(f"v_mul_f32 v42, v{X2}, v{X2}"); A(f"v_mul_f32 v43, v{X2+1}, v{X2+1}")
    for k in range(2, 10): A(f"v_fmac_f32 v{42 + k % 2}, v{X2+k}, v{X2+k}")
    A("v_add_f32 v42, v42, v43")
    allred("v_add_f32", 42, 41, ALL)
    A(f"v_mul_f32 v42, {f32(1/640)}, v42")
    A("v_cvt_pk_bf16_f32 v41, v40, v42")
    unpack(40, 42, 41)
    A(f"v_add_f32 v42, {f32(1e-5)}, v42")
    A("v_cvt_pk_bf16_f32 v42, v42, v42"); A("v_lshlrev_b32 v42, 16, v42")
    A("v_sqrt_f32 v42, v42")
    for k in range(10): A(f"v_sub_f32 v{X1+k}, v{X1+k}, v40")
    A("v_cvt_pk_bf16_f32 v42, v42, v42"); A("v_lshlrev_b32 v42, 16, v42")
    A("v_rcp_f32 v42, v42")
    for k in range(5): A(f"v_cvt_pk_bf16_f32 v{20+k}, v{X1+2*k}, v{X1+1+2*k}")
    for k in range(5): unpack(X1 + 2 * k, X1 + 1 + 2 * k, 20 + k)
    for k in range(10): A(f"v_mul_f32 v{X1+k}, v{X1+k}, v42")
    for k in range(5): A(f"v_cvt_pk_bf16_f32 v{20+k}, v{X1+2*k}, v{X1+1+2*k}")
    A("v_mov_b32 v38, 1")
    if lnwave == 3: A("v_mov_b32 v36, 0")
    A(f"ds_write_b128 v{9 if lnwave == 3 else 8}, v[20:23] offset:{L_XN}"); A(f"ds_write_b32 v3, v24 offset:{L_XN + 1024}")
    lds_signal("ds_write_b32", 36, 38, L_XF)
    if lnwave == 3:
        A("s_cmpk_ge_u32 s2, 240"); A("s_cbranch_scc1 L_h3i")
        A("s_branch L_h3b")
    else:
        A("s_branch L_lnback")

    stl[:] = base_st
    A("L_h012b:")
    C("---- waves 0..2: partial q, exchange inside the head, q into LDS")
    roles()
    masks()
    helper_addrs()
    xn_dups(10, [f"s_mul_i32 s{sT}, s{sSPLIT}, 160", f"s_add_u32 s{sT}, s{sT}, {L_XN}", "v_mul_u32_u24 v3, 20, v45", f"v_add_u32 v3, s{sT}, v3"])
    gettag(True)
    stamp("lndone")
    for G in range(10):
        a = 20 + 4 * (G & 1)
        for j in range(4): A(f"v_and_b32 v{a+j}, v{8+G}, v{4+j}")
        A(f"s_waitcnt vmcnt({9-G})"); A("s_nop 0")
        mfma(28, a, 48 + 4 * G, G == 0)
    A(f"s_mul_i32 s{sT}, s{sHEAD}, 3"); A(f"s_add_u32 s{sT}, s{sT}, s{sW}"); A(f"s_lshl_b32 s{sT}, s{sT}, 12"); A(f"s_add_u32 s{sT}, s{sT}, {E1}")
    A(f"s_lshl_b32 s{sT+1}, s{sSPLIT}, 9"); A(f"s_add_u32 s{sT+1}, s{sT+1}, s{sT}")
    A(f"s_mov_b32 s{sTHR}, 0")
    A(f"v_mov_b32 v33, s{sTAGX}")
    fold(28, 32, 34, [f"v_mov_b32 v35, s{sTAGX}"])
    A(f"s_mov_b64 exec, {PUB}")
    A(f"buffer_store_dwordx4 v[32:35], v18, {WS}, s{sT+1} offen")
    A("s_mov_b64 exec, -1")
    stamp("e1pub")
    def e1slow():
        C("some producer of this head is (or may be) on another die: write through and accept any die id")
        A(f"s_cmp_lg_u32 s{sTHR}, 0"); A("s_cbranch_scc1 L_p1_giveup")
        A(f"s_mov_b32 s{sTHR}, 15"); A(f"s_mov_b32 s{sSPIN}, {GTRIES}")
        A(f"s_mov_b64 exec, {PUB}")
        A(f"buffer_store_dwordx4 v[32:35], v18, {WS}, s{sT+1} offen sc1")
        A("s_mov_b64 exec, -1")
        A("s_branch L_p1")
        A("L_p1_giveup:")
    gather8("L_p1", sT, e1sleep, sTAGX, thr=f"s{sTHR}", tries=n1, onfail=e1slow)
    A("v_cvt_pk_bf16_f32 v96, v118, v119")
    A("v_and_b32 v3, 3, v1"); A("v_lshlrev_b32 v3, 4, v3"); A("v_lshl_add_u32 v3, v0, 1, v3")
    A(f"s_lshl_b32 s{sT}, s{sW}, 7"); A(f"v_add_u32 v3, s{sT}, v3")
    A(f"ds_write_b32 v3, v96 offset:{L_Q}")
    A("v_mov_b32 v38, 1")
    lds_signal("ds_add_u32", 44, 38, L_QCNT)
    stamp("qready")
    A(f"s_cmp_lg_u32 s{sW}, 2"); A("s_cbranch_scc1 L_wo")
    C("---- wave 2: softmax maximum and sum of the head")
    A("v_lshlrev_b32 v3, 4, v1"); A(f"s_lshl_b32 s{sT}, s{sHEAD}, 10"); A(f"s_add_u32 s{sT}, s{sT}, {E0}")
    A("v_lshlrev_b32 v39, 3, v46")
    A(f"v_mov_b32 v41, s{sTAG}"); A(f"v_mov_b32 v43, s{sTAG}")
    A(f"s_lshl_b32 s{sT+1}, s{sSPLIT}, 7"); A(f"s_add_u32 s{sT+1}, s{sT+1}, s{sT}")
    ldspoll("L_gl", L_LOC, 0, [], 44, 37, cmp="eq")
    A(f"v_readfirstlane_b32 s{sLOC}, v37")
    ldspoll("L_gk", L_KCNT, 8, [f"ds_read_b32 v40, v39 offset:{L_ST}", f"ds_read_b32 v42, v39 offset:{L_ST+4}"], 44, 37)
    A("s_mov_b64 exec, 0xff")
    flavoured([f"buffer_store_dwordx4 v[40:43], v3, {WS}, s{sT+1} offen"])
    A("s_mov_b64 exec, -1")
    poll("L_p0", [f"buffer_load_dwordx4 v[96:99], v3, {WS}, s{sT} offen sc1"], [96], e0sleep)
    A("v_mov_b32 v40, v96")
    allred("v_max_f32", 40, 41, ALL)
    A("v_sub_f32 v96, v96, v40"); A(f"v_mul_f32 v96, {f32(LOG2E)}, v96"); A("v_exp_f32 v96, v96"); A("s_nop 0")
    A("v_mul_f32 v42, v96, v98")
    allred("v_add_f32", 42, 41, ALL)
    A("v_rcp_f32 v41, v42")
    A("s_mov_b64 exec, 1")
    A(f"ds_write_b64 v44, v[40:41] offset:{L_M}")
    A(f"ds_write_b32 v44, v38 offset:{L_SFLAG}")
    A("s_mov_b64 exec, -1")
    stamp("stats")
    A("s_branch L_wo")
    A("L_h3i:")
    C("---- wave 3 of workgroups 240..249: clear the accumulators of one column block, then say so")
    helper_addrs()
    A("s_cmpk_ge_u32 s2, 250"); A("s_cbranch_scc1 L_h3c")
    A(f"s_sub_u32 s{sT}, s2, 240"); A(f"s_lshl_b32 s{sT+1}, s{sT}, 7"); A(f"s_add_u32 s{sT+1}, s{sT+1}, {RDY}")
    A(f"s_lshl_b32 s{sT}, s{sT}, {11 if f64 else 10}"); A(f"s_add_u32 s{sT}, s{sT}, {ACC}")
    for k in range(4): A(f"v_mov_b32 v{20+k}, 0")
    A("v_lshlrev_b32 v3, 4, v1")
    A(f"buffer_store_dwordx4 v[20:23], v3, {WS}, s{sT} offen sc1")
    if f64: A(f"buffer_store_dwordx4 v[20:23], v3, {WS}, s{sT} offen offset:1024 sc1")
    A("s_waitcnt vmcnt(0) lgkmcnt(0)")
    A(f"s_and_b32 s{sT}, s{sTAG}, -16"); A(f"s_add_u32 s{sT}, s{sT}, {TAGK:#x}")
    for k in range(4): A(f"v_mov_b32 v{24+k}, s{sT}")
    A("s_mov_b64 exec, 0xff")
    A(f"buffer_store_dwordx4 v[24:27], v3, {WS}, s{sT+1} offen sc1")
    A("s_mov_b64 exec, -1")
    A("s_branch L_h3c")
    A("L_h3b:")
    C("---- wave 3: partial gate / up")
    masks()
    helper_addrs()
    xn_dups(8, [f"s_lshl_b32 s{sT}, s{sC10}, 7", f"s_add_u32 s{sT}, s{sT}, {L_XN}", f"v_lshl_add_u32 v3, v45, 4, s{sT}"])
    for G in range(8):
        a = 20 + 4 * (G & 1)
        for j in range(4): A(f"v_and_b32 v{a+j}, v{8+G}, v{4+j}")
        A(f"s_waitcnt vmcnt({14-2*G})"); A("s_nop 0")
        for m in range(2): mfma(28 + 4 * m, a, 48 + 8 * G + 4 * m, G == 0)
    A("L_h3c:")
    C("do all 32 workgroups with this id & 7 sit on this die?  Their q partials carry their die ids")
    A("v_and_b32 v3, 3, v1"); A(f"v_mul_u32_u24 v3, {8*3*4096}, v3"); A("v_lshrrev_b32 v2, 2, v1"); A("v_lshl_add_u32 v3, v2, 9, v3")
    A(f"s_and_b32 s{sT}, s2, 7"); A(f"s_mul_i32 s{sT}, s{sT}, {3*4096}"); A(f"s_add_u32 s{sT}, s{sT}, {E1}")
    ldspoll("L_gq", L_QCNT, 3, [], 44, 47)
    gettag(True)
    A(f"s_mov_b32 s{sLOC}, 1")
    A("s_mov_b32 exec_hi, 0")
    poll("L_pl", [f"buffer_load_dwordx4 v[96:99], v3, {WS}, s{sT} offen sc1"], [96], 8, tag=sTAGX, tries=6, onfail=lambda: A(f"s_mov_b32 s{sLOC}, 2"))
    A(f"v_mov_b32 v47, s{sLOC}")
    lds_signal("ds_write_b32", 44, 47, L_LOC)
    stamp("probe")
    A("s_cmpk_ge_u32 s2, 240"); A("s_cbranch_scc1 L_help_end")
    A(f"s_mul_i32 s{sG}, s{sRB}, 10240"); A(f"s_add_u32 s{sG}, s{sG}, {E2}")
    A(f"s_add_u32 s{sG+1}, s{sG}, 4096"); A(f"s_add_u32 s{sG+2}, s{sG}, 8192")
    A(f"s_lshl_b32 s{sT}, s{sC10}, 10"); A(f"s_add_u32 s{sT}, s{sT}, s{sG}")
    fold(28, 36, 38, [f"v_mov_b32 v37, s{sTAG}", f"v_mov_b32 v39, s{sTAG}"])
    fold(32, 40, 42, [f"v_mov_b32 v41, s{sTAG}", f"v_mov_b32 v43, s{sTAG}"])
    A(f"s_mov_b64 exec, {PUB}")
    flavoured([f"buffer_store_dwordx4 v[36:39], v18, {WS}, s{sT} offen", f"buffer_store_dwordx4 v[40:43], v18, {WS}, s{sT} offen offset:512"])
    A("s_mov_b64 exec, -1")
    C("hidden block and its 64 x 64 piece of w2")
    A(f"s_mul_i32 s{sT}, s{sRB}, {64*1280}"); A(f"s_lshl_b32 s{sT+1}, s{sC10}, 7"); A(f"s_add_u32 s{sT}, s{sT}, s{sT+1}")
    srd(SB, 20, 1536 * 1280)
    A(f"v_mul_u32_u24 v2, 1280, v0"); A("v_lshl_add_u32 v2, v46, 4, v2")
    ldspoll("L_gk3", L_KCNT, 8, [], 44, 47)
    for G in range(8):
        A(f"buffer_load_dwordx4 v[{48+4*G}:{51+4*G}], v2, {SB}, s{sT} offen {pol}")
        if G < 7: A(f"s_addk_i32 s{sT}, {1280 if G % 2 == 0 else 7*1280}")
    poll("L_p2", [f"buffer_load_dwordx4 v[{96+4*i}:{99+4*i}], v19, {WS}, s{sG + (i>>2)} offen offset:{1024*(i&3)} sc1" for i in range(10)],
         [96 + 4 * i for i in range(10)], 16)
    for (x, y) in ((0, 1), (2, 3), (4, 5), (6, 7), (8, 9), (0, 2), (4, 6), (0, 8), (0, 4)):
        A(f"v_add_f32 v{96+4*x}, v{96+4*x}, v{96+4*y}"); A(f"v_add_f32 v{98+4*x}, v{98+4*x}, v{98+4*y}")
    A("v_cvt_pk_bf16_f32 v96, v96, v98")
    A("v_mov_b32 v97, v96"); A("v_mov_b32 v98, v96")
    A("v_mov_b32_dpp v97, v96 row_shr:4 row_mask:0xf bank_mask:0xa", "gate pair")
    A("v_mov_b32_dpp v98, v96 row_shl:4 row_mask:0xf bank_mask:0x5", "up pair")
    unpack(100, 101, 97); unpack(102, 103, 98)
    silu2(100, 104)
    A("v_cvt_pk_bf16_f32 v97, v100, v101"); unpack(100, 101, 97)
    A("v_mul_f32 v100, v100, v102"); A("v_mul_f32 v101, v101, v103")
    A("v_cvt_pk_bf16_f32 v8, v100, v100"); A("v_cvt_pk_bf16_f32 v9, v101, v101")
    A(f"s_add_u32 s{sT+1}, s{sT+1}, {RDY}")
    unit_mfma(["v_lshrrev_b32 v36, 1, v18", "v_lshrrev_b32 v3, 1, v1", "v_lshlrev_b32 v3, 2, v3", f"v_add_u32 v3, {L_FACC}, v3", "v_mov_b32 v10, 1.0", "v_mov_b32 v11, 1.0"])
    fold(28, 28, 29, ["s_nop 0"])
    A(f"s_mov_b64 exec, {PUB}")
    A(f"ds_write_b64 v36, v[28:29] offset:{L_FACC}")
    A("s_mov_b32 exec_lo, 0x55555555"); A("s_mov_b32 exec_hi, 0x55555555")
    A("ds_read2_b32 v[10:11], v3 offset1:32", "even lanes: value, odd lanes: 1.0 (arrival count)")
    A("s_mov_b64 exec, -1")
    C("the accumulators must have been cleared in this launch")
    A(f"s_mov_b32 s{sSPIN}, {GTRIES}")
    A("L_pr:")
    A(f"s_load_dwordx2 s[{sP}:{sP+1}], s[26:27], s{sT+1} glc")
    A("s_waitcnt lgkmcnt(0)")
    A(f"s_xor_b32 s{sP}, s{sP}, s{sTAG}"); A(f"s_xor_b32 s{sP+1}, s{sP+1}, s{sTAG}"); A(f"s_or_b32 s{sP}, s{sP}, s{sP+1}")
    A("s_cbranch_scc0 L_wo")
    A("s_sleep 4")
    A(f"s_sub_u32 s{sSPIN}, s{sSPIN}, 1")
    A("s_cbranch_scc0 L_pr")
    timeout("L_pr")
    A("L_wo:")
    C("---- waves 0..3: a 64 x 64 piece of wo each")
    A("s_cmpk_ge_u32 s2, 240"); A("s_cbranch_scc1 L_help_end")
    A(f"s_lshl_b32 s{sT+2}, s{sRBL}, 2"); A(f"s_add_u32 s{sT+2}, s{sT+2}, s{sW}", "b = 4*rbl + wave")
    A(f"s_mul_i32 s{sT}, s{sT+2}, 86"); A(f"s_lshr_b32 s{sT}, s{sT}, 8")
    A(f"s_mul_i32 s{sT}, s{sT}, 21"); A(f"s_add_u32 s{sT+2}, s{sT+2}, s{sT}")
    A(f"s_and_b32 s{sT}, s2, 7"); A(f"s_mul_i32 s{sT}, s{sT}, 3"); A(f"s_add_u32 s{sT+2}, s{sT+2}, s{sT}", "64-row block = 3*head + b % 3")
    A(f"s_mul_i32 s{sT}, s{sT+2}, {64*1280}"); A(f"s_lshl_b32 s{sG+2}, s{sC10}, 7"); A(f"s_add_u32 s{sT}, s{sT}, s{sG+2}")
    srd(SB, 12, 6144 * 1280); srd(SA, 4, 1280); srd(SC, 22, 1280)
    A(f"v_mul_u32_u24 v2, {8*1280}, v45"); A("v_lshl_add_u32 v2, v46, 4, v2")
    A(f"s_lshl_b32 s{sG}, s{sT+2}, 12"); A(f"s_add_u32 s{sG}, s{sG}, {E1}")
    A(f"s_lshl_b32 s{sG+1}, s{sC10}, {11 if f64 else 10}"); A(f"s_add_u32 s{sG+1}, s{sG+1}, {ACC}")
    A("v_lshrrev_b32 v37, 1, v18"); A(f"s_lshl_b32 s{sT+2}, s{sW}, 8"); A(f"v_add_u32 v37, s{sT+2}, v37")
    A("v_lshrrev_b32 v36, 1, v1"); A("v_lshlrev_b32 v36, 2, v36"); A(f"v_add_u32 v36, {L_WACC}, v36")
    C("v16 = byte offset of this lane pair's first output column, v17 = accumulator offset")
    A("v_bfe_u32 v16, v1, 2, 3"); A("v_lshlrev_b32 v16, 4, v16"); A("v_lshrrev_b32 v17, 5, v1"); A("v_lshl_add_u32 v16, v17, 3, v16")
    A("v_and_b32 v17, 2, v1"); A("v_add_u32 v16, v16, v17")
    A(f"v_lshlrev_b32 v17, {3 if f64 else 2}, v1")
    A(f"s_add_u32 s{sTAGX}, s{sTAG}, 16")
    A(f"s_mov_b32 s{base(EVEN)}, 0x55555555"); A(f"s_mov_b32 s{base(EVEN)+1}, s{base(EVEN)}")
    A("v_mov_b32 v40, 1.0"); A("v_mov_b32 v41, 1.0")
    if gmode & 1: A("v_mov_b32 v12, 0"); A("v_mov_b32 v13, 0")
    if f64: A("v_mov_b32 v42, 0x40370000", "high word of 23.0"); A("v_mov_b32 v43, 0x40380000", "high word of 24.0")
    else: A(f"v_mov_b32 v42, {f32(23.0)}"); A(f"v_mov_b32 v43, {f32(24.0)}")
    def woload(G):
        A(f"buffer_load_dwordx4 v[{48+4*G}:{51+4*G}], v2, {SB}, s{sT} offen {pol}")
        if G < 7: A(f"s_addk_i32 s{sT}, 1280")
    ldspoll("L_gk4", L_KCNT, 8, [], 44, 47)
    A(f"buffer_load_ushort v14, v16, {SA}, s{sG+2} offen"); A(f"buffer_load_ushort v15, v16, {SA}, s{sG+2} offen offset:4")
    if otouch:
        A(f"s_cmp_lg_u32 s{sW}, 0"); A("s_cbranch_scc1 L_noot")
        A("s_mov_b64 exec, 1")
        A(f"buffer_load_ushort v39, v16, {SC}, s{sG+2} offen", "translation of the output page")
        A("s_mov_b64 exec, -1")
        A("L_noot:")
    for G in range(wo_early): woload(G)
    ldspoll("L_gv", L_VCNT, 8, [], 44, 47)
    for G in range(wo_early, 8): woload(G)
    stamp("woissued")
    A(f"s_cmp_lg_u32 s{sW}, 3"); A("s_cbranch_scc1 L_nof3")
    if f64:
        A("v_cvt_f64_f32 v[80:81], v10"); A("v_cvt_f64_f32 v[82:83], v11")
        A(f"buffer_atomic_add_f64 v[80:81], v17, {WS}, s{sG+1} offen offset:1024 sc1")
        A(f"buffer_atomic_add_f64 v[82:83], v17, {WS}, s{sG+1} offen offset:1536 sc1")
    else:
        A(f"buffer_atomic_add_f32 v10, v17, {WS}, s{sG+1} offen offset:512 sc1")
        A(f"buffer_atomic_add_f32 v11, v17, {WS}, s{sG+1} offen offset:768 sc1")
    A("L_nof3:")
    ldspoll("L_go", L_PUB, 7, [], 44, 47)
    A("v_mov_b32 v47, 1")
    gather8("L_p4", sG, 0, sTAGX)
    stamp("e4seen")
    A("v_cvt_pk_bf16_f32 v8, v118, v118"); A("v_cvt_pk_bf16_f32 v9, v119, v119")
    A("s_nop 0")
    unit_mfma([])
    fold(28, 28, 29, ["s_nop 0"])
    A(f"s_mov_b64 exec, {PUB}")
    A(f"ds_write_b64 v37, v[28:29] offset:{L_WACC}")
    A("s_mov_b64 exec, 1")
    A(f"ds_add_rtn_u32 v47, v44, v47 offset:{L_WCNT}")
    A(f"s_mov_b64 exec, {EVEN}")
    for w in range(4): A(f"ds_read2_b32 v[{20+2*w}:{21+2*w}], v36 offset0:{64*w} offset1:{64*w+32}")
    A("s_waitcnt lgkmcnt(0)")
    A(f"v_readfirstlane_b32 s{sT}, v47")
    A("v_pk_add_f32 v[20:21], v[20:21], v[22:23]"); A("v_pk_add_f32 v[24:25], v[24:25], v[26:27]")
    A(f"s_cmp_lg_u32 s{sT}, 3"); A("s_cbranch_scc1 L_help_end")
    C("last wave of the workgroup: add {value, 1.0} pairs to the accumulators; whoever sees 23 earlier arrivals finishes the column")
    def gload(first=False):
        if f64:
            A(f"buffer_load_dwordx2 v[84:85], v17, {WS}, s{sG+1} offen offset:1024 sc1"); A(f"buffer_load_dwordx2 v[86:87], v17, {WS}, s{sG+1} offen offset:1536 sc1")
        elif gmode & 1:
            if not first: A("v_mov_b32 v12, 0"); A("v_mov_b32 v13, 0")
            A(f"buffer_atomic_add_f32 v12, v17, {WS}, s{sG+1} offen offset:512 sc0 sc1"); A(f"buffer_atomic_add_f32 v13, v17, {WS}, s{sG+1} offen offset:768 sc0 sc1")
        else:
            p = "sc0 sc1 nt" if gmode & 4 else "sc1"
            A(f"buffer_load_dword v12, v17, {WS}, s{sG+1} offen offset:512 {p}"); A(f"buffer_load_dword v13, v17, {WS}, s{sG+1} offen offset:768 {p}")
    def gcalc():
        if f64:
            A("v_cvt_f32_f64 v12, v[84:85]"); A("v_cvt_f32_f64 v13, v[86:87]")
            A(f"v_cmp_ne_u32 s[{sP+2}:{sP+3}], v85, v43"); A(f"v_cmp_ne_u32 s[{sP+4}:{sP+5}], v87, v43")
        else:
            A(f"v_cmp_ne_u32 s[{sP+2}:{sP+3}], v12, v43"); A(f"v_cmp_ne_u32 s[{sP+4}:{sP+5}], v13, v43")
        A("v_cvt_pk_bf16_f32 v22, v12, v13")
        unpack(12, 13, 22)
        silu2(12, 24)
        A(f"s_or_b64 s[{sP+2}:{sP+3}], s[{sP+2}:{sP+3}], s[{sP+4}:{sP+5}]")
        A("v_cvt_pk_bf16_f32 v22, v12, v13")
        A(f"s_andn2_b64 s[{sP+2}:{sP+3}], s[{sP+2}:{sP+3}], {EVEN}", "count lanes that are not complete")
        unpack(12, 13, 22)
    A("v_pk_add_f32 v[40:41], v[20:21], v[24:25]")
    A("s_mov_b64 exec, -1")
    if not gmode & 10: gload(True)
    if f64:
        A("v_cvt_f64_f32 v[88:89], v40"); A("v_cvt_f64_f32 v[90:91], v41")
        A(f"buffer_atomic_add_f64 v[88:89], v17, {WS}, s{sG+1} offen sc0 sc1")
        A(f"buffer_atomic_add_f64 v[90:91], v17, {WS}, s{sG+1} offen offset:512 sc0 sc1")
    else:
        A(f"buffer_atomic_add_f32 v40, v17, {WS}, s{sG+1} offen sc0 sc1")
        A(f"buffer_atomic_add_f32 v41, v17, {WS}, s{sG+1} offen offset:256 sc0 sc1")
    if gmode & 2: gload(True)
    stamp("e5pub")
    if f64: A("v_cvt_f64_f32 v[92:93], v40"); A("v_cvt_f64_f32 v[94:95], v41")
    else: A("v_pk_add_f32 v[20:21], v[20:21], v[24:25]")
    A("v_lshlrev_b32 v14, 16, v14"); A("v_lshlrev_b32 v15, 16, v15")
    A(f"s_mov_b32 s{sSPIN}, {GTRIES}")
    if gmode & 8: A(f"s_mov_b64 s[{sP+2}:{sP+3}], -1")
    else:
        A("s_waitcnt vmcnt(0)" if gmode & 2 else "s_waitcnt vmcnt(2)")
        gcalc()
    A("s_waitcnt vmcnt(0)")
    stamp("atdone")
    if f64:
        A("v_add_f64 v[92:93], v[92:93], v[88:89]"); A("v_add_f64 v[94:95], v[94:95], v[90:91]")
        A("v_cmp_eq_u32 vcc, v89, v42"); A(f"v_cmp_eq_u32 s[{sP}:{sP+1}], v91, v42")
        A("v_cvt_f32_f64 v20, v[92:93]"); A("v_cvt_f32_f64 v21, v[94:95]")
    else:
        A("v_cmp_eq_f32 vcc, v40, v42"); A(f"v_cmp_eq_f32 s[{sP}:{sP+1}], v41, v42")
        A("v_pk_add_f32 v[20:21], v[20:21], v[40:41]")
    A("s_lshr_b64 vcc, vcc, 1"); A(f"s_lshr_b64 s[{sP}:{sP+1}], s[{sP}:{sP+1}], 1")
    A("v_cvt_pk_bf16_f32 v23, v20, v21")
    A(f"s_cmp_lg_u64 s[{sP+2}:{sP+3}], 0"); A("s_cbranch_scc1 L_glate")
    A("L_gok:")
    unpack(20, 21, 23)
    A("v_pk_mul_f32 v[20:21], v[20:21], v[12:13]")
    A("v_cvt_pk_bf16_f32 v22, v20, v21")
    unpack(20, 21, 22)
    A("v_pk_add_f32 v[20:21], v[20:21], v[14:15]")
    A("v_cvt_pk_bf16_f32 v22, v20, v21")
    if hold:
        A("L_hold:"); A("s_memrealtime s[96:97]"); A("s_waitcnt lgkmcnt(0)"); A("s_sub_u32 s96, s96, s90")
        A(f"s_cmp_lt_u32 s96, {hold}"); A("s_cbranch_scc1 L_hold")
    A(f"s_and_b64 exec, vcc, {EVEN}"); A("s_cbranch_execz L_no0")
    A(f"buffer_store_short v22, v16, {SC}, s{sG+2} offen")
    A("L_no0:")
    A(f"s_and_b64 exec, s[{sP}:{sP+1}], {EVEN}"); A("s_cbranch_execz L_no1")
    A(f"buffer_store_short_d16_hi v22, v16, {SC}, s{sG+2} offen offset:4")
    A(f"s_cmp_lg_u32 s{sC10}, 0"); A("s_cbranch_scc1 L_no1")
    A("s_and_b64 exec, exec, 1"); A("s_cbranch_execz L_no1")
    C("every wave of the launch has read the old word by now: leave this launch's tag for the next one to step past")
    A(f"v_mov_b32 v49, s{sTAG}")
    A(f"buffer_store_dword v49, v44, {WS}, 0 offen")
    A("L_no1:")
    if stamps: A("s_waitcnt vmcnt(0)")
    stamp("end")
    A("L_help_end:")
    dump_stamps()
    A("L_end:")
    A("s_endpgm")
    A("L_glate:")
    C("the gate sums are not complete yet: only a wave that finishes some column waits for them")
    A(f"s_or_b64 s[{sP+4}:{sP+5}], vcc, s[{sP}:{sP+1}]"); A(f"s_and_b64 s[{sP+4}:{sP+5}], s[{sP+4}:{sP+5}], {EVEN}")
    A("s_cbranch_scc0 L_help_end")
    A("L_gre:")
    gload()
    A("s_waitcnt vmcnt(0)")
    gcalc()
    A(f"s_cmp_eq_u64 s[{sP+2}:{sP+3}], 0"); A("s_cbranch_scc1 L_gok")
    A(f"s_sub_u32 s{sSPIN}, s{sSPIN}, 1")
    A("s_cbranch_scc0 L_gre")
    timeout("L_gre")
    if diag:
        A("v_lshlrev_b32 v166, 2, v1"); A("v_add_u32 v166, 1024, v166")
        gload(); A("s_waitcnt vmcnt(0)")
        A("global_store_dword v166, v12, s[100:101]"); A("global_store_dword v166, v13, s[100:101] offset:256")
        print(codes)
    A("s_endpgm")
    A("L_code_end:")
    A('.section .rodata,"a"'); A(".p2align 6")
    A(f".amdhsa_kernel {NAME}_kernel")
    A("  .amdhsa_next_free_vgpr 168"); A(f"  .amdhsa_next_free_sgpr {102 if diag else 100}"); A("  .amdhsa_accum_offset 168")
    A("  .amdhsa_group_segment_fixed_size 0"); A("  .amdhsa_kernarg_size 96"); A("  .amdhsa_user_sgpr_count 2")
    A("  .amdhsa_user_sgpr_kernarg_segment_ptr 1"); A("  .amdhsa_system_sgpr_workgroup_id_x 1")
    A("  .amdhsa_float_denorm_mode_32 3")
    A(".end_amdhsa_kernel")
    return "\n".join(L) + "\n"

SETS = {
  "A": dict(start=[(0,0)], e1pub=[(0,1)], qready=[(0,2)], e0pub=[(4,3),(11,4)], stats=[(2,5)], kissued=[(4,6),(11,12)], vissued=[(11,7)], e4pub=[(None,8)],
            woissued=[(0,9)], e4seen=[(0,10)], probe=[(3,11)], atdone=[(None,13)], lndone=[(0,14)]),
  "V": dict(start=[(0,0)], e4pub=[(None,1)], woissued=[(0,2)], e4seen=[(0,3),(1,4),(2,5),(3,6)], e5pub=[(None,7)], atdone=[(None,8)], end=[(None,9)], mfmadone=[(8,10),(9,11),(10,12),(11,13)], stats=[(2,14)]),
  "S": dict(start=[(0,0),(4,1)], karg=[(0,2),(3,3),(4,4),(11,5)], h1issued=[(0,6),(2,7),(3,8)], barrier=[(0,9),(4,10)], k3issued=[(4,11)], lndone=[(0,12)], e1pub=[(0,13)], kissued=[(4,14)]),
}
def build(out, **kw):
    import hazard, os
    ref = "cdna_kernels/" + NAME + ".s.ref"
    hdr = open(ref).read().split("; Override launch")[0] if os.path.exists(ref) else ""
    if kw.get("stamps"): kw["stamps"] = SETS[kw["stamps"]]
    t = gen(**kw)
    for x in hazard.check(t)[:30]: print("HAZARD", x)
    open(out, "w").write(hdr + t)
if __name__ == "__main__":
    import ast
    kw = {}
    for a in sys.argv[2:]:
        k, v = a.split("=", 1)
        try: kw[k] = ast.literal_eval(v)
        except Exception: kw[k] = v
    build(sys.argv[1], **kw)
```

```python
import sys, struct
NAME = "recurrent_scan__sliding_block_cached__glu_gated_swiglu__decode"

def f32(x): return "0x%08x" % struct.unpack("<I", struct.pack("<f", x))[0]

E0, ACC, RDY, E1, E2 = 0x1000, 0xA000, 0xF000, 0x10000, 0x70000
WS_BYTES = E2 + 24 * 10240
TAGK = 0x9E3779B0
L_QCNT, L_OCNT, L_SFLAG, L_XF, L_M, L_LOC, L_KCNT, L_VCNT, L_WCNT, L_PUB, L_ST = 0, 4, 8, 12, 16, 24, 28, 32, 36, 40, 64
L_Q, L_WACC, L_FACC, L_XN, L_OACC = 512, 1024, 2048, 2304, 3584
LDS_BYTES = L_OACC + 8 * 768
DPPF = "row_mask:0xf bank_mask:0xf"
LOG2E = 1.4426950408889634
GTRIES, LTRIES = 0x20000, 0x800000

DOC = """
One launch, 256 workgroups of 12 waves, one workgroup per CU; every byte of K, V and the weights is read once.
  workgroup id b: head = b & 31, split = b >> 5 (512 keys); group = b & 7 (32 workgroups, four heads).
  waves 4..11 : 64 keys each.  K rows -> registers, scores (v_dot2c), V rows -> same registers, P.V on the matrix core.
  waves 0..2  : 80 x 64 piece of wq -> partial q, exchanged inside the head; wave 2 also exchanges the softmax max / sum.
  wave 3      : 64 x 64 pieces of w1, w3 and w2 (workgroups < 240).
  waves 0..3  : 64 x 64 piece of wo each (workgroups < 240).
A row-major [8 rows][64 columns] tile is one 16-byte load per lane and one v_mfma_f32_16x16x32_bf16 whose A operand holds
the row weight in slot (lane & 7) only (masks v4..v7).  All intermediate values are rounded to bf16 where the reference does.
Hand-offs between workgroups go through d_ws as 8-byte {value, tag} granules.  The tag is the word at d_ws[0] plus a constant;
the launch leaves its tag there, so granules of an earlier launch never match.  Stores are plain only when the readers are
known to share this L2 (die ids travel in the tags of the q partials); otherwise they are written through (sc1).
The last two sums (wo and w2 partials) are f64 device-scope atomic adds of {value, 1.0} pairs on accumulators cleared in this
launch; the adder that sees all other arrivals finishes that output column.  Every wait is bounded.
"""
def gen(stamps=None, pol="nt", wo_early=2, hold=0, e1sleep=4, e0sleep=8, bar3=5, n1=24, forceslow=False, rotk=9,
        lnwave=8, pf=True, pvint=True, diag=False, tlb=0, rev=False, gmode=0, otouch=0, f64=True, holdmin=0):
    L = []
    def A(x, c=None): L.append(x if c is None else f"{x:<72}; {c}")
    def C(x): L.append("; " + x)
    sW, sTAG, sHEAD, sSPLIT = 28, 29, 30, 31
    WS, SA, SB, SC = "s[32:35]", "s[36:39]", "s[40:43]", "s[44:47]"
    sRB, sC10, sSPIN = 48, 49, 50
    sT = 51
    sG = 56
    sRBL, sTAGX = 66, 67
    sST = 68
    sTHR, sLOC = 88, 89
    sP = 92
    PUB, EVEN = "s[14:15]", "s[24:25]"
    nst = [0]; stl = []
    def stamp(name):
        if not stamps or name not in stamps: return
        r = sST + 2 * len(stl)
        assert len(stl) < 10
        stl.append(stamps[name])
        A(f"s_memrealtime s[{r}:{r+1}]")
    def dump_stamps():
        if not stamps: return
        A("s_waitcnt lgkmcnt(0)")
        A(f"s_lshl_b32 s{sT}, s2, 7"); A(f"s_add_u32 s{sT}, s{sT}, {64<<20}")
        A(f"s_add_u32 s{sT+1}, s26, s{sT}"); A(f"s_addc_u32 s{sT+2}, s27, 0")
        A("s_mov_b64 exec, 1")
        A("v_mov_b32 v0, 0")
        for k, pairs in enumerate(stl):
            r = sST + 2 * k
            for (wv, slot) in pairs:
                lab2 = f"L_nost{nst[0]}"; nst[0] += 1
                if wv is not None:
                    A(f"s_cmp_lg_u32 s{sW}, {wv}"); A(f"s_cbranch_scc1 {lab2}")
                else:
                    A(f"s_cmp_eq_u32 s{r}, 0"); A(f"s_cbranch_scc1 {lab2}")
                A(f"v_mov_b32 v2, s{r}"); A(f"v_mov_b32 v3, s{r+1}")
                A(f"global_store_dwordx2 v0, v[2:3], s[{sT+1}:{sT+2}] offset:{8*slot}")
                A(f"{lab2}:")
    codes = {}
    def timeout(label):
        if not diag: return
        c = codes.setdefault(label, len(codes))
        A("s_load_dwordx2 s[100:101], s[0:1], 80"); A("s_waitcnt lgkmcnt(0)")
        A(f"v_mov_b32 v166, {4*c}"); A(f"s_lshl_b32 s3, s2, 4"); A(f"s_add_u32 s3, s3, s{sW}"); A("s_add_u32 s3, s3, 0x10000"); A("v_mov_b32 v167, s3")
        A("global_store_dword v166, v167, s[100:101]"); A("s_waitcnt vmcnt(0)")
    def base(n): return int(n[2:n.index(":")])
    def srd_c(name, size):
        b = base(name); A(f"s_mov_b32 s{b+2}, {size}"); A(f"s_mov_b32 s{b+3}, 0x20000")
    def srd_p(name, lo, off=None):
        b = base(name)
        if off is None: A(f"s_mov_b64 s[{b}:{b+1}], s[{lo}:{lo+1}]")
        else: A(f"s_add_u32 s{b}, s{lo}, s{off}"); A(f"s_addc_u32 s{b+1}, s{lo+1}, 0")
    def srd(name, lo, size): srd_p(name, lo); srd_c(name, size)
    def masks():
        C("v4..v7: keep one bf16 slot (lane & 7) of the eight a lane supplies to the matrix core")
        A("v_and_b32 v3, 1, v1"); A("v_lshlrev_b32 v3, 4, v3"); A("v_mov_b32 v7, 0xffff"); A("v_lshlrev_b32 v3, v3, v7")
        A("v_bfe_u32 v7, v1, 1, 2")
        A("v_cmp_eq_u32 vcc, 0, v7"); A(f"v_cmp_eq_u32 s[{sP}:{sP+1}], 1, v7"); A(f"v_cmp_eq_u32 s[{sP+2}:{sP+3}], 2, v7")
        A("v_cndmask_b32 v4, 0, v3, vcc")
        A("v_cmp_eq_u32 vcc, 3, v7")
        A(f"v_cndmask_b32 v5, 0, v3, s[{sP}:{sP+1}]"); A(f"v_cndmask_b32 v6, 0, v3, s[{sP+2}:{sP+3}]")
        A("v_cndmask_b32 v7, 0, v3, vcc")
        A(f"s_mov_b32 s{base(PUB)}, 0x00ff00ff"); A(f"s_mov_b32 s{base(PUB)+1}, s{base(PUB)}")
    def allred(op, x, t, steps):
        dp = {1: "quad_perm:[1,0,3,2]", 2: "quad_perm:[2,3,0,1]", 4: "row_ror:4", 8: "row_ror:8"}
        for s in steps:
            if s in dp:
                A("s_nop 1"); A(f"{op}_dpp v{x}, v{x}, v{x} {dp[s]} {DPPF}")
            else:
                A(f"v_mov_b32 v{t}, v{x}"); A("s_nop 1"); A(f"v_permlane{s}_swap_b32 v{x}, v{t}"); A(f"{op} v{x}, v{x}, v{t}")
    ALL = [1, 2, 8, 4, 16, 32]
    def unpack(lo, hi, src):
        A(f"v_lshlrev_b32 v{lo}, 16, v{src}"); A(f"v_and_b32 v{hi}, 0xffff0000, v{src}")
    def gettag(x=False):
        A(f"s_and_b32 s{sTAG}, s{sTAG}, -16"); A(f"s_add_u32 s{sTAG}, s{sTAG}, {TAGK:#x}", "hand-off tag of this launch")
        if x:
            A(f"s_getreg_b32 s{sTAGX}, hwreg(HW_REG_XCC_ID, 0, 4)")
            if forceslow: A(f"s_lshr_b32 s{sTAGX}, s2, 4")
            A(f"s_or_b32 s{sTAGX}, s{sTAGX}, s{sTAG}", "tag that also names this die")
    def ortree(ts, dst=None):
        ts = list(ts)
        while len(ts) > 1:
            d = ts[0] if dst is None else dst
            if len(ts) >= 3:
                A(f"v_or3_b32 v{d}, v{ts[0]}, v{ts[1]}, v{ts[2]}"); ts = ts[3:] + [d]
            else:
                A(f"v_or_b32 v{d}, v{ts[0]}, v{ts[1]}"); ts = [d]
        return ts[0]
    def poll(label, loads, regs, sleep, tag=sTAG, tries=GTRIES, onfail=None):
        A(f"s_mov_b32 s{sSPIN}, {tries}")
        A(f"{label}:")
        for l in loads: A(l)
        A("s_waitcnt vmcnt(0)")
        for r in regs: A(f"v_bitop3_b32 v{r+1}, s{tag}, v{r+1}, v{r+3} bitop3:0x7e")
        t = ortree([r + 1 for r in regs])
        A(f"v_cmp_ne_u32 vcc, 0, v{t}")
        A(f"s_cbranch_vccz {label}_ok")
        if sleep: A(f"s_sleep {sleep}")
        A(f"s_sub_u32 s{sSPIN}, s{sSPIN}, 1")
        A(f"s_cbranch_scc0 {label}")
        timeout(label)
        if onfail: onfail()
        A(f"{label}_ok:")
    def gather8(label, soff, sleep, tag, thr="0", tries=GTRIES, onfail=None):
        loads = [f"buffer_load_dwordx4 v[{96+4*i}:{99+4*i}], v19, {WS}, s{soff} offen offset:{1024*i} sc1" for i in range(4)]
        A(f"s_mov_b32 s{sSPIN}, {tries}")
        for l in loads: A(l)
        A(f"{label}:")
        A("s_waitcnt vmcnt(0)")
        for k in range(4): A(f"v_bitop3_b32 v{112+k}, s{tag}, v{97+4*k}, v{99+4*k} bitop3:0x7e")
        ortree([112, 113, 114, 115], 116)
        A(f"v_cmp_lt_u32 vcc, {thr}, v116")
        A("v_add_f32 v116, v96, v100"); A("v_add_f32 v117, v98, v102"); A("v_add_f32 v118, v104, v108"); A("v_add_f32 v119, v106, v110")
        A(f"s_cbranch_vccz {label}_ok")
        for k in range(4): A(f"v_cmp_lt_u32 s[{sP+2*k}:{sP+2*k+1}], {thr}, v{112+k}")
        if sleep: A(f"s_sleep {sleep}")
        for k, l in enumerate(loads):
            A(f"s_mov_b64 exec, s[{sP+2*k}:{sP+2*k+1}]"); A(f"s_cbranch_execz {label}_s{k}")
            A(l)
            A(f"{label}_s{k}:")
        A("s_mov_b64 exec, -1")
        A(f"s_sub_u32 s{sSPIN}, s{sSPIN}, 1")
        A(f"s_cbranch_scc0 {label}")
        timeout(label)
        if onfail: onfail()
        A("s_waitcnt vmcnt(0)")
        A(f"{label}_ok:")
        A("v_pk_add_f32 v[116:117], v[116:117], v[118:119]")
        A("s_nop 1")
        A("v_add_f32_dpp v118, v116, v116 row_shl:4 row_mask:0xf bank_mask:0x5"); A("v_add_f32_dpp v119, v117, v117 row_shl:4 row_mask:0xf bank_mask:0x5")
        A("v_add_f32_dpp v118, v116, v116 row_shr:4 row_mask:0xf bank_mask:0xa"); A("v_add_f32_dpp v119, v117, v117 row_shr:4 row_mask:0xf bank_mask:0xa")
    def ldspoll(label, flag_off, want, reads, vz, vflag, cmp="ne"):
        A(f"s_mov_b32 s{sSPIN}, {LTRIES}")
        A(f"{label}:")
        A(f"ds_read_b32 v{vflag}, v{vz} offset:{flag_off}")
        for l in reads: A(l)
        A("s_waitcnt lgkmcnt(0)")
        A(f"v_cmp_{cmp}_u32 vcc, {want}, v{vflag}")
        A(f"s_cbranch_vccz {label}_ok")
        A("s_sleep 1")
        A(f"s_sub_u32 s{sSPIN}, s{sSPIN}, 1")
        A(f"s_cbranch_scc0 {label}")
        timeout("lds")
        A(f"{label}_ok:")
    def lds_signal(op, vz, vval, off):
        A("s_mov_b64 exec, 1"); A(f"{op} v{vz}, v{vval} offset:{off}"); A("s_mov_b64 exec, -1")
    def fold(acc, y0, y1, fill):
        A(f"v_permlane32_swap_b32 v{acc}, v{acc+2}")
        A(f"v_permlane32_swap_b32 v{acc+1}, v{acc+3}")
        for l in fill: A(l)
        A(f"v_add_f32_dpp v{y0}, v{acc+2}, v{acc} row_ror:8 {DPPF}")
        A(f"v_add_f32_dpp v{y1}, v{acc+3}, v{acc+1} row_ror:8 {DPPF}")
    nfl = [0]
    def flavoured(lines):
        lab = f"L_fl{nfl[0]}"; nfl[0] += 1
        A(f"s_cmp_eq_u32 s{sLOC}, 1"); A(f"s_cbranch_scc1 {lab}_p")
        for l in lines: A(l + " sc1")
        A(f"s_branch {lab}_e")
        A(f"{lab}_p:")
        for l in lines: A(l)
        A(f"{lab}_e:")
    def silu2(x, t):
        A(f"v_mul_f32 v{t}, {f32(-LOG2E)}, v{x}"); A(f"v_mul_f32 v{t+1}, {f32(-LOG2E)}, v{x+1}")
        A(f"v_exp_f32 v{t}, v{t}"); A(f"v_exp_f32 v{t+1}, v{t+1}")
        A(f"v_add_f32 v{t}, 1.0, v{t}"); A(f"v_add_f32 v{t+1}, 1.0, v{t+1}")
        A(f"v_rcp_f32 v{t}, v{t}"); A(f"v_rcp_f32 v{t+1}, v{t+1}")
        A(f"v_mul_f32 v{x}, v{x}, v{t}"); A(f"v_mul_f32 v{x+1}, v{x+1}, v{t+1}")
    def mfma(acc, a, b, first):
        A(f"v_mfma_f32_16x16x32_bf16 v[{acc}:{acc+3}], v[{a}:{a+3}], v[{b}:{b+3}], " + ("0" if first else f"v[{acc}:{acc+3}]"))
    def unit_mfma(tail):
        for G in range(8):
            a = 20 + 4 * (G & 1); k = G >> 1
            for j in range(4):
                A(f"v_and_b32_dpp v{a+j}, v{8 + (G & 1)}, v{4+j} quad_perm:[{k},{k},{k},{k}] {DPPF}")
            if G > 0: mfma(28, 20 + 4 * ((G - 1) & 1), 48 + 4 * (G - 1), G == 1)
        A("s_nop 0")
        mfma(28, 24, 76, False)
        for l in tail: A(l)
        A(f"s_nop {7 - len(tail)}")
    def xn_dups(n, addr_setup):
        for l in addr_setup: A(l)
        rd = [f"ds_read2_b32 v[{20+2*k}:{21+2*k}], v3 offset0:{2*k} offset1:{2*k+1}" for k in range(2)]
        if n == 10: rd.append("ds_read_b32 v24, v3 offset:16")
        ldspoll(f"L_gx{n}", L_XF, 1, rd, 44, 47)
        A(f"s_mov_b32 s{sT}, 0x01000100"); A(f"s_mov_b32 s{sT+1}, 0x03020302")
        for k in range(n): A(f"v_perm_b32 v{8+k}, v{20 + k//2}, v{20 + k//2}, s{sT + (k & 1)}")
    def roles():
        A(f"s_lshr_b32 s{sC10}, s2, 3"); A(f"s_mul_i32 s{sRBL}, s{sC10}, 26"); A(f"s_lshr_b32 s{sRBL}, s{sRBL}, 8", "row block inside the group = (id >> 3) / 10")
        A(f"s_mul_i32 s{sT}, s{sRBL}, 10"); A(f"s_sub_u32 s{sC10}, s{sC10}, s{sT}", "64-column block = (id >> 3) % 10")
        A(f"s_and_b32 s{sT}, s2, 7"); A(f"s_mul_i32 s{sT}, s{sT}, 3"); A(f"s_add_u32 s{sRB}, s{sT}, s{sRBL}", "FFN block 0..23")
    def helper_addrs():
        C("v18 = publish offset, v19 = gather offset, v0 = first row/column of this lane in publish order")
        A("v_lshrrev_b32 v18, 4, v1"); A("v_lshlrev_b32 v18, 7, v18"); A("v_lshl_add_u32 v18, v46, 4, v18")
        A("v_bfe_u32 v0, v1, 3, 1"); A("v_lshlrev_b32 v0, 5, v0"); A("v_bfe_u32 v3, v1, 4, 1"); A("v_lshl_add_u32 v0, v3, 2, v0")
        A("v_lshrrev_b32 v3, 5, v1"); A("v_lshl_add_u32 v0, v3, 1, v0")
        A("v_lshrrev_b32 v19, 2, v46"); A("v_lshlrev_b32 v19, 9, v19"); A("v_lshl_add_u32 v19, v45, 6, v19")
        A("v_and_b32 v3, 3, v1"); A("v_lshl_add_u32 v19, v3, 4, v19")
        A("v_mov_b32 v44, 0")
        srd(WS, 26, WS_BYTES)

    A(f"; @launch grid=(256,1,1) block=(768,1,1) lds={LDS_BYTES}")
    A('.amdgcn_target "amdgcn-amd-amdhsa--gfx950"')
    for l in DOC.strip("\n").split("\n"): C(l)
    A(".text"); A(f".globl {NAME}_kernel"); A(".p2align 8"); A(f".type {NAME}_kernel,@function")
    A(f"{NAME}_kernel:")
    A("s_load_dwordx16 s[4:19], s[0:1], 0")
    A("s_load_dwordx8 s[20:27], s[0:1], 64")
    A("s_cmpk_ge_u32 s2, 256"); A("s_cbranch_scc1 L_end")
    if stamps:
        for k in range(10): A(f"s_mov_b64 s[{sST+2*k}:{sST+2*k+1}], 0")
    stamp("start")
    if hold: A("s_memrealtime s[90:91]")
    A("v_lshrrev_b32 v2, 6, v0")
    A("v_and_b32 v1, 63, v0", "lane")
    A(f"v_readfirstlane_b32 s{sW}, v2", "wave")
    A("v_lshrrev_b32 v45, 3, v1", "row slot")
    A("v_and_b32 v46, 7, v1", "16-byte chunk")
    A(f"s_and_b32 s{sHEAD}, s2, 31"); A(f"s_lshr_b32 s{sSPLIT}, s2, 5")
    A(f"s_cmp_gt_u32 s{sW}, 2"); A("s_cbranch_scc1 L_w3up")
    C("---- waves 0..2: 80 rows x 64 columns of wq")
    A("s_setprio 3")
    A(f"s_mul_i32 s{sT}, s{sSPLIT}, {80*12288}"); A(f"s_mul_i32 s{sG}, s{sHEAD}, 3"); A(f"s_add_u32 s{sG}, s{sG}, s{sW}")
    A(f"s_lshl_b32 s{sG}, s{sG}, 7"); A(f"s_add_u32 s{sG}, s{sG}, s{sT}")
    A(f"v_mul_u32_u24 v8, {10*12288}, v45"); A("v_lshl_add_u32 v8, v46, 4, v8")
    srd_c(SB, 640 * 12288)
    A("s_waitcnt lgkmcnt(0)")
    st0 = list(stl)
    stamp("karg")
    srd_p(SB, 10)
    for G in range(10):
        A(f"buffer_load_dwordx4 v[{48+4*G}:{51+4*G}], v8, {SB}, s{sG} offen {pol}")
        if G < 9: A(f"s_addk_i32 s{sG}, 12288")
    stamp("h1issued")
    A("s_barrier")
    A(f"s_load_dword s{sTAG}, s[26:27], 0")
    stamp("barrier")
    A("s_branch L_h012b")
    st1 = list(stl); stl[:] = st0
    A("L_w3up:")
    A(f"s_cmp_gt_u32 s{sW}, 3"); A("s_cbranch_scc1 L_main")
    C("---- wave 3: 64 rows x 64 columns of w1 and w3")
    A("s_setprio 3")
    roles()
    A(f"s_mul_i32 s{sT}, s{sC10}, {64*3072}"); A(f"s_lshl_b32 s{sG}, s{sRB}, 7"); A(f"s_add_u32 s{sG}, s{sG}, s{sT}")
    A(f"v_mul_u32_u24 v8, {8*3072}, v45"); A("v_lshl_add_u32 v8, v46, 4, v8")
    srd_c(SB, 640 * 3072); srd_c(SC, 640 * 3072)
    if lnwave == 3:
        srd_c(SA, 1280); A("v_lshlrev_b32 v9, 4, v1"); A("v_lshlrev_b32 v3, 2, v1")
    A("s_waitcnt lgkmcnt(0)")
    stamp("karg")
    if lnwave == 3:
        srd_p(SA, 4)
        A(f"buffer_load_dwordx4 v[20:23], v9, {SA}, 0 offen"); A(f"buffer_load_dword v24, v3, {SA}, 0 offen offset:1024")
    A(f"s_load_dword s{sTAG}, s[26:27], 0")
    A("s_cmpk_ge_u32 s2, 240"); A("s_cbranch_scc1 L_h3skip")
    srd_p(SB, 16); srd_p(SC, 18)
    for G in range(8):
        A(f"buffer_load_dwordx4 v[{48+8*G}:{51+8*G}], v8, {SB}, s{sG} offen {pol}")
        A(f"buffer_load_dwordx4 v[{52+8*G}:{55+8*G}], v8, {SC}, s{sG} offen {pol}")
        if G < 7: A(f"s_addk_i32 s{sG}, 3072")
        if G == bar3 - 1: A("s_barrier")
    stamp("h1issued")
    if lnwave == 3:
        A("s_waitcnt vmcnt(16)")
        A("s_branch L_ln")
        A("L_h3skip:")
        A("s_barrier")
        A("s_waitcnt vmcnt(0)")
        A("s_branch L_ln")
    else:
        A("s_branch L_h3b")
        A("L_h3skip:")
        A("s_barrier")
        A("s_branch L_h3i")
    base_st = list(st1); stl[:] = st0

    D = 48
    A("L_main:")
    C("---- waves 4..11: 64 keys each, eight groups of eight rows")
    A("s_setprio 2")
    A("v_mov_b32 v36, 0")
    if pf:
        A(f"s_cmp_lg_u32 s{sW}, 5"); A("s_cbranch_scc1 L_nopf")
        C("pull this kernel's own code into L2: four lines per workgroup")
        A(f"s_getpc_b64 s[{sT+1}:{sT+2}]")
        A("L_pfbase:")
        A(f"s_lshr_b32 s{sT}, s2, 3"); A(f"s_lshl_b32 s{sT}, s{sT}, 7")
        A("v_and_b32 v2, 3, v1"); A(f"v_lshl_add_u32 v2, v2, 12, s{sT}")
        A("v_min_u32 v2, L_code_end-L_pfbase-4, v2")
        A(f"global_load_dword v47, v2, s[{sT+1}:{sT+2}]")
        A("L_nopf:")
    A("v_lshlrev_b32 v3, 2, v1")
    A("ds_write2st64_b32 v3, v36, v36 offset1:1", "clear the flag area")
    C("group index = 256*(wave>>3) + 32*g + ((8*(wave&3) + split + 9*g) & 31): one contiguous window per head")
    A(f"s_and_b32 s{sT}, s{sW}, 3"); A(f"s_lshl_b32 s{sT}, s{sT}, 3"); A(f"s_add_u32 s{sT}, s{sT}, s{sSPLIT}")
    A(f"s_lshr_b32 s{sT+1}, s{sW}, 3"); A(f"s_lshl_b32 s{sT+1}, s{sT+1}, 8")
    if rev: A(f"s_sub_u32 s{sT+1}, 480, s{sT+1}")
    A(f"s_add_u32 s{sG}, s{sT}, s{sT+1}"); A(f"s_mulk_i32 s{sG}, 3072")
    A(f"s_mul_i32 s{sT+3}, s{sHEAD}, 12582912"); A(f"s_add_u32 s{sT+3}, s{sT+3}, 11010048")
    A("v_mul_u32_u24 v2, 384, v45"); A("v_lshl_add_u32 v2, v46, 4, v2")
    srd_c(SA, 4096 * 384)
    A("s_waitcnt lgkmcnt(0)")
    stamp("karg")
    if lnwave != 3:
        A(f"s_cmp_lg_u32 s{sW}, {lnwave}"); A("s_cbranch_scc1 L_nox")
        srd(SB, 4, 1280)
        A("v_lshlrev_b32 v8, 4, v1")
        A(f"buffer_load_dwordx4 v[20:23], v8, {SB}, 0 offen"); A(f"buffer_load_dword v24, v3, {SB}, 0 offen offset:1024")
        A("s_barrier")
        A("s_branch L_ln")
        A("L_nox:")
        A("s_barrier")
        A("L_lnback:")
    else:
        A("s_barrier")
    srd_p(SA, 6, sT + 3)
    A(f"s_load_dword s{sTAG}, s[26:27], 0")
    if tlb:
        A(f"s_cmp_lg_u32 s{sW}, 9"); A("s_cbranch_scc1 L_notlb")
        A(f"s_add_u32 s{sT+4}, s{sT+3}, s{sG}")
        A(f"s_load_dword s3, s[8:9], s{sT+4}")
        if tlb > 1:
            A(f"s_mul_i32 s{sT+4}, s2, {24*1280}"); A(f"s_load_dword s3, s[12:13], s{sT+4}")
            A(f"s_mul_i32 s{sT+4}, s2, {6*1280}"); A(f"s_load_dword s3, s[20:21], s{sT+4}")
        A("L_notlb:")
    stamp("barrier")
    for g in range(8):
        for j in range(3):
            r = D + 12 * g + 4 * j
            A(f"buffer_load_dwordx4 v[{r}:{r+3}], v2, {SA}, s{sG+g} offen offset:{128*j} {pol}")
            if g < 7:
                if j == 0: A(f"s_add_u32 s{sT}, s{sT}, {rotk}"); A(f"s_{'sub' if rev else 'add'}_u32 s{sT+1}, s{sT+1}, 32")
                if j == 1: A(f"s_and_b32 s{sT+2}, s{sT}, 31"); A(f"s_add_u32 s{sG+g+1}, s{sT+2}, s{sT+1}")
                if j == 2: A(f"s_mulk_i32 s{sG+g+1}, 3072")
            else:
                if j == 0: srd_p(SB, 8, sT + 3)
                if j == 1: srd_c(SB, 4096 * 384)
        if g == 0: stamp("k3issued")
    A("s_setprio 3")
    stamp("kissued")
    srd(WS, 26, WS_BYTES)
    masks()
    A("v_lshlrev_b32 v37, 4, v46")
    for g in range(8): A(f"v_mov_b32 v{8+g}, 0")
    ldspoll("L_mq", L_QCNT, 3, [f"ds_read_b128 v[{16+4*j}:{19+4*j}], v37 offset:{L_Q+128*j}" for j in range(3)], 36, 38)
    gettag()
    stamp("qseen")
    C("scores")
    for g in range(0, 8, 2):
        A(f"s_waitcnt vmcnt({18 - 3*g})")
        for k in range(12):
            for gg in (g, g + 1):
                A(f"v_dot2c_f32_bf16 v{8+gg}, v{D+12*gg+k}, v{16+k}")
    stamp("kdone")
    for dp in ("quad_perm:[1,0,3,2]", "quad_perm:[2,3,0,1]", "row_half_mirror"):
        for g in range(8): A(f"v_add_f32_dpp v{8+g}, v{8+g}, v{8+g} {dp} {DPPF}")
    for k in range(4): A(f"v_cvt_pk_bf16_f32 v{28+k}, v{8+2*k}, v{9+2*k}")
    for k in range(4): unpack(8 + 2 * k, 9 + 2 * k, 28 + k)
    for g in range(8): A(f"v_mul_f32 v{8+g}, {f32(192 ** -0.5)}, v{8+g}")
    for k in range(4): A(f"v_cvt_pk_bf16_f32 v{28+k}, v{8+2*k}, v{9+2*k}")
    for k in range(4): unpack(8 + 2 * k, 9 + 2 * k, 28 + k)
    C("maximum and sum of exponentials of this wave's 64 keys")
    A("v_max3_f32 v40, v8, v9, v10"); A("v_max3_f32 v41, v11, v12, v13"); A("v_max3_f32 v40, v40, v14, v15"); A("v_max_f32 v40, v40, v41")
    allred("v_max_f32", 40, 41, [8, 16, 32])
    for g in range(8): A(f"v_sub_f32 v{28+g}, v{8+g}, v40")
    for g in range(8): A(f"v_mul_f32 v{28+g}, {f32(LOG2E)}, v{28+g}")
    for g in range(8): A(f"v_exp_f32 v{28+g}, v{28+g}")
    for k in range(4): A(f"v_add_f32 v{28+k}, v{28+k}, v{32+k}")
    A("v_add_f32 v28, v28, v29"); A("v_add_f32 v30, v30, v31"); A("v_add_f32 v41, v28, v30")
    allred("v_add_f32", 41, 42, [8, 16, 32])
    A(f"s_lshl_b32 s{sT}, s{sW}, 3"); A(f"v_mov_b32 v3, s{sT}"); A("v_mov_b32 v38, 1")
    A("s_mov_b64 exec, 1")
    A(f"ds_write_b64 v3, v[40:41] offset:{L_ST - 32}")
    A(f"ds_add_u32 v36, v38 offset:{L_KCNT}")
    A("s_mov_b64 exec, -1")
    stamp("e0pub")
    C("V rows of the same keys into the same registers")
    A("s_setprio 1")
    for g in range(8):
        for j in range(3):
            r = D + 12 * g + 4 * j
            A(f"buffer_load_dwordx4 v[{r}:{r+3}], v2, {SB}, s{sG} offen {pol}")
            if j < 2: A(f"s_addk_i32 s{sG}, 128")
            elif g < 7: A(f"s_mov_b32 s{sG}, s{sG+g+1}")
    lds_signal("ds_add_u32", 36, 38, L_VCNT)
    A("s_setprio 3")
    stamp("vissued")
    C("v39 = partial write offset, v37 / v0 = partial read offsets, v3 = publish offset")
    A("v_bfe_u32 v39, v1, 4, 1"); A("v_lshlrev_b32 v39, 4, v39"); A("v_lshl_add_u32 v39, v46, 5, v39")
    A("v_lshrrev_b32 v3, 5, v1"); A("v_lshl_add_u32 v39, v3, 3, v39")
    A(f"s_mul_i32 s{sT}, s{sW}, 768"); A(f"v_add_u32 v39, s{sT}, v39")
    A("v_mul_u32_u24 v0, 3072, v3"); A("v_and_b32 v37, 31, v1"); A("v_lshl_add_u32 v0, v37, 3, v0")
    A("v_lshlrev_b32 v3, 12, v3"); A("v_lshl_add_u32 v3, v37, 4, v3")
    A("v_lshlrev_b32 v37, 3, v1")
    A(f"s_mul_i32 s{sT}, s{sHEAD}, {3*4096}"); A(f"s_lshl_b32 s{sT+1}, s{sSPLIT}, 9"); A(f"s_add_u32 s{sT}, s{sT}, s{sT+1}")
    A(f"s_add_u32 s{sT}, s{sT}, {E1}"); A(f"s_add_u32 s{sT+1}, s{sT}, 8192")
    C("softmax weights with the maximum and the sum of the whole head")
    ldspoll("L_ms", L_SFLAG, 1, [f"ds_read_b96 v[40:42], v36 offset:{L_M}"], 36, 38)
    stamp("sseen")
    A(f"v_readfirstlane_b32 s{sLOC}, v42")
    for g in range(8): A(f"v_sub_f32 v{8+g}, v{8+g}, v40")
    for g in range(8): A(f"v_mul_f32 v{8+g}, {f32(LOG2E)}, v{8+g}")
    for g in range(8): A(f"v_exp_f32 v{8+g}, v{8+g}")
    for g in range(8): A(f"v_mul_f32 v{8+g}, v{8+g}, v41")
    for g in range(8): A(f"v_cvt_pk_bf16_f32 v{8+g}, v{8+g}, v{8+g}")
    A(f"s_add_u32 s{sTAGX}, s{sTAG}, 16", "second use of the q lines: another tag")
    for r in (41, 43, 45, 47): A(f"v_mov_b32 v{r}, s{sTAGX}")
    def pv_out(j):
        a = 16 + 4 * j
        fold(a, a, a + 1, ["s_nop 0"])
        A(f"s_mov_b64 exec, {PUB}")
        A(f"ds_write_b64 v39, v[{a}:{a+1}] offset:{L_OACC - 4*768 + 256*j}")
        if j < 2: A("s_mov_b64 exec, -1")
    for g in range(8):
        a = 28 + 4 * (g & 1)
        for j in range(4): A(f"v_and_b32 v{a+j}, v{8+g}, v{4+j}")
        for j in range(3):
            A(f"s_waitcnt vmcnt({3 * (7 - g) + (2 - j)})")
            if j == 0: A("s_nop 0")
            mfma(16 + 4 * j, a, D + 12 * g + 4 * j, g == 0)
            if pvint and g == 7 and j == 1:
                A("s_nop 5"); pv_out(0)
    stamp("mfmadone")
    if pvint:
        pv_out(1); pv_out(2)
    else:
        A("s_nop 3")
        for j in range(3):
            a = 16 + 4 * j
            A(f"v_permlane32_swap_b32 v{a}, v{a+2}"); A(f"v_permlane32_swap_b32 v{a+1}, v{a+3}")
        for j in range(3):
            a = 16 + 4 * j
            A(f"v_add_f32_dpp v{a}, v{a+2}, v{a} row_ror:8 {DPPF}"); A(f"v_add_f32_dpp v{a+1}, v{a+3}, v{a+1} row_ror:8 {DPPF}")
        A(f"s_mov_b64 exec, {PUB}")
        for j in range(3):
            A(f"ds_write_b64 v39, v[{16+4*j}:{17+4*j}] offset:{L_OACC - 4*768 + 256*j}")
    A("s_mov_b64 exec, 1")
    A(f"ds_add_rtn_u32 v38, v36, v38 offset:{L_OCNT}")
    A("s_mov_b64 exec, -1")
    C("the wave that arrives last adds the eight partials and publishes them")
    for w in range(8): A(f"ds_read_b64 v[{48+2*w}:{49+2*w}], v37 offset:{L_OACC + 768*w}")
    for w in range(4): A(f"ds_read_b64 v[{64+2*w}:{65+2*w}], v0 offset:{L_OACC + 768*w + 512}")
    A("s_waitcnt lgkmcnt(4)" if not stamps else "s_waitcnt lgkmcnt(0)")
    A(f"v_readfirstlane_b32 s{sT+2}, v38")
    for (x, y) in ((48, 50), (52, 54), (56, 58), (60, 62), (48, 52), (56, 60)):
        A(f"v_pk_add_f32 v[{x}:{x+1}], v[{x}:{x+1}], v[{y}:{y+1}]")
    A(f"s_cmp_lg_u32 s{sT+2}, 7"); A("s_cbranch_scc1 L_main_end")
    A("v_add_f32 v40, v48, v56"); A("v_add_f32 v42, v49, v57")
    def third():
        A("s_waitcnt lgkmcnt(0)")
        A("v_pk_add_f32 v[64:65], v[64:65], v[66:67]"); A("v_pk_add_f32 v[68:69], v[68:69], v[70:71]")
        A("v_pk_add_f32 v[64:65], v[64:65], v[68:69]")
        A("s_nop 1")
        A("v_permlane32_swap_b32 v64, v66"); A("v_permlane32_swap_b32 v65, v67")
        A("v_add_f32 v44, v64, v66"); A("v_add_f32 v46, v65, v67")
        A("s_mov_b32 exec_hi, 0")
    A(f"s_cmp_lg_u32 s{sLOC}, 1"); A("s_cbranch_scc1 L_e4far")
    A(f"buffer_store_dwordx4 v[40:43], v3, {WS}, s{sT} offen")
    third()
    A(f"buffer_store_dwordx4 v[44:47], v3, {WS}, s{sT+1} offen")
    A("L_e4done:")
    A("s_mov_b64 exec, 1")
    A(f"ds_write_b32 v36, v38 offset:{L_PUB}")
    stamp("e4pub")
    A("L_main_end:")
    dump_stamps()
    A("s_endpgm")
    A("L_e4far:")
    A(f"buffer_store_dwordx4 v[40:43], v3, {WS}, s{sT} offen sc1")
    third()
    A(f"buffer_store_dwordx4 v[44:47], v3, {WS}, s{sT+1} offen sc1")
    A("s_branch L_e4done")

    A("L_ln:")
    C("---- layer norm of x, rounded step by step to bf16, into LDS")
    if lnwave != 3: A("s_waitcnt vmcnt(0)")
    X1, X2 = (112, 124) if lnwave == 3 else (48, 60)
    for k in range(5): unpack(X1 + 2 * k, X1 + 1 + 2 * k, 20 + k)
    for k in range(4): A(f"v_pk_add_f32 v[40:41], v[{40 if k else X1}:{41 if k else X1+1}], v[{X1+2+2*k}:{X1+3+2*k}]")
    A("v_add_f32 v40, v40, v41")
    allred("v_add_f32", 40, 41, ALL)
    A(f"v_mul_f32 v40, {f32(1/640)}, v40")
    for k in range(10): A(f"v_sub_f32 v{X2+k}, v{X1+k}, v40")
    A(f"v_mul_f32 v42, v{X2}, v{X2}"); A(f"v_mul_f32 v43, v{X2+1}, v{X2+1}")
    for k in range(2, 10): A(f"v_fmac_f32 v{42 + k % 2}, v{X2+k}, v{X2+k}")
    A("v_add_f32 v42, v42, v43")
    allred("v_add_f32", 42, 41, ALL)
    A(f"v_mul_f32 v42, {f32(1/640)}, v42")
    A("v_cvt_pk_bf16_f32 v41, v40, v42")
    unpack(40, 42, 41)
    A(f"v_add_f32 v42, {f32(1e-5)}, v42")
    A("v_cvt_pk_bf16_f32 v42, v42, v42"); A("v_lshlrev_b32 v42, 16, v42")
    A("v_sqrt_f32 v42, v42")
    for k in range(10): A(f"v_sub_f32 v{X1+k}, v{X1+k}, v40")
    A("v_cvt_pk_bf16_f32 v42, v42, v42"); A("v_lshlrev_b32 v42, 16, v42")
    A("v_rcp_f32 v42, v42")
    for k in range(5): A(f"v_cvt_pk_bf16_f32 v{20+k}, v{X1+2*k}, v{X1+1+2*k}")
    for k in range(5): unpack(X1 + 2 * k, X1 + 1 + 2 * k, 20 + k)
    for k in range(10): A(f"v_mul_f32 v{X1+k}, v{X1+k}, v42")
    for k in range(5): A(f"v_cvt_pk_bf16_f32 v{20+k}, v{X1+2*k}, v{X1+1+2*k}")
    A("v_mov_b32 v38, 1")
    if lnwave == 3: A("v_mov_b32 v36, 0")
    A(f"ds_write_b128 v{9 if lnwave == 3 else 8}, v[20:23] offset:{L_XN}"); A(f"ds_write_b32 v3, v24 offset:{L_XN + 1024}")
    lds_signal("ds_write_b32", 36, 38, L_XF)
    if lnwave == 3:
        A("s_cmpk_ge_u32 s2, 240"); A("s_cbranch_scc1 L_h3i")
        A("s_branch L_h3b")
    else:
        A("s_branch L_lnback")

    stl[:] = base_st
    A("L_h012b:")
    C("---- waves 0..2: partial q, exchange inside the head, q into LDS")
    roles()
    masks()
    helper_addrs()
    xn_dups(10, [f"s_mul_i32 s{sT}, s{sSPLIT}, 160", f"s_add_u32 s{sT}, s{sT}, {L_XN}", "v_mul_u32_u24 v3, 20, v45", f"v_add_u32 v3, s{sT}, v3"])
    gettag(True)
    stamp("lndone")
    for G in range(10):
        a = 20 + 4 * (G & 1)
        for j in range(4): A(f"v_and_b32 v{a+j}, v{8+G}, v{4+j}")
        A(f"s_waitcnt vmcnt({9-G})"); A("s_nop 0")
        mfma(28, a, 48 + 4 * G, G == 0)
    A(f"s_mul_i32 s{sT}, s{sHEAD}, 3"); A(f"s_add_u32 s{sT}, s{sT}, s{sW}"); A(f"s_lshl_b32 s{sT}, s{sT}, 12"); A(f"s_add_u32 s{sT}, s{sT}, {E1}")
    A(f"s_lshl_b32 s{sT+1}, s{sSPLIT}, 9"); A(f"s_add_u32 s{sT+1}, s{sT+1}, s{sT}")
    A(f"s_mov_b32 s{sTHR}, 0")
    A(f"v_mov_b32 v33, s{sTAGX}")
    fold(28, 32, 34, [f"v_mov_b32 v35, s{sTAGX}"])
    A(f"s_mov_b64 exec, {PUB}")
    A(f"buffer_store_dwordx4 v[32:35], v18, {WS}, s{sT+1} offen")
    A("s_mov_b64 exec, -1")
    stamp("e1pub")
    def e1slow():
        C("some producer of this head is (or may be) on another die: write through and accept any die id")
        A(f"s_cmp_lg_u32 s{sTHR}, 0"); A("s_cbranch_scc1 L_p1_giveup")
        A(f"s_mov_b32 s{sTHR}, 15"); A(f"s_mov_b32 s{sSPIN}, {GTRIES}")
        A(f"s_mov_b64 exec, {PUB}")
        A(f"buffer_store_dwordx4 v[32:35], v18, {WS}, s{sT+1} offen sc1")
        A("s_mov_b64 exec, -1")
        A("s_branch L_p1")
        A("L_p1_giveup:")
    gather8("L_p1", sT, e1sleep, sTAGX, thr=f"s{sTHR}", tries=n1, onfail=e1slow)
    A("v_cvt_pk_bf16_f32 v96, v118, v119")
    A("v_and_b32 v3, 3, v1"); A("v_lshlrev_b32 v3, 4, v3"); A("v_lshl_add_u32 v3, v0, 1, v3")
    A(f"s_lshl_b32 s{sT}, s{sW}, 7"); A(f"v_add_u32 v3, s{sT}, v3")
    A(f"ds_write_b32 v3, v96 offset:{L_Q}")
    A("v_mov_b32 v38, 1")
    lds_signal("ds_add_u32", 44, 38, L_QCNT)
    stamp("qready")
    A(f"s_cmp_lg_u32 s{sW}, 2"); A("s_cbranch_scc1 L_wo")
    C("---- wave 2: softmax maximum and sum of the head")
    A("v_lshlrev_b32 v3, 4, v1"); A(f"s_lshl_b32 s{sT}, s{sHEAD}, 10"); A(f"s_add_u32 s{sT}, s{sT}, {E0}")
    A("v_lshlrev_b32 v39, 3, v46")
    A(f"v_mov_b32 v41, s{sTAG}"); A(f"v_mov_b32 v43, s{sTAG}")
    A(f"s_lshl_b32 s{sT+1}, s{sSPLIT}, 7"); A(f"s_add_u32 s{sT+1}, s{sT+1}, s{sT}")
    ldspoll("L_gl", L_LOC, 0, [], 44, 37, cmp="eq")
    A(f"v_readfirstlane_b32 s{sLOC}, v37")
    ldspoll("L_gk", L_KCNT, 8, [f"ds_read_b32 v40, v39 offset:{L_ST}", f"ds_read_b32 v42, v39 offset:{L_ST+4}"], 44, 37)
    A("s_mov_b64 exec, 0xff")
    flavoured([f"buffer_store_dwordx4 v[40:43], v3, {WS}, s{sT+1} offen"])
    A("s_mov_b64 exec, -1")
    poll("L_p0", [f"buffer_load_dwordx4 v[96:99], v3, {WS}, s{sT} offen sc1"], [96], e0sleep)
    A("v_mov_b32 v40, v96")
    allred("v_max_f32", 40, 41, ALL)
    A("v_sub_f32 v96, v96, v40"); A(f"v_mul_f32 v96, {f32(LOG2E)}, v96"); A("v_exp_f32 v96, v96"); A("s_nop 0")
    A("v_mul_f32 v42, v96, v98")
    allred("v_add_f32", 42, 41, ALL)
    A("v_rcp_f32 v41, v42")
    A("s_mov_b64 exec, 1")
    A(f"ds_write_b64 v44, v[40:41] offset:{L_M}")
    A(f"ds_write_b32 v44, v38 offset:{L_SFLAG}")
    A("s_mov_b64 exec, -1")
    stamp("stats")
    A("s_branch L_wo")
    A("L_h3i:")
    C("---- wave 3 of workgroups 240..249: clear the accumulators of one column block, then say so")
    helper_addrs()
    A("s_cmpk_ge_u32 s2, 250"); A("s_cbranch_scc1 L_h3c")
    A(f"s_sub_u32 s{sT}, s2, 240"); A(f"s_lshl_b32 s{sT+1}, s{sT}, 7"); A(f"s_add_u32 s{sT+1}, s{sT+1}, {RDY}")
    A(f"s_lshl_b32 s{sT}, s{sT}, {11 if f64 else 10}"); A(f"s_add_u32 s{sT}, s{sT}, {ACC}")
    for k in range(4): A(f"v_mov_b32 v{20+k}, 0")
    A("v_lshlrev_b32 v3, 4, v1")
    A(f"buffer_store_dwordx4 v[20:23], v3, {WS}, s{sT} offen sc1")
    if f64: A(f"buffer_store_dwordx4 v[20:23], v3, {WS}, s{sT} offen offset:1024 sc1")
    A("s_waitcnt vmcnt(0) lgkmcnt(0)")
    A(f"s_and_b32 s{sT}, s{sTAG}, -16"); A(f"s_add_u32 s{sT}, s{sT}, {TAGK:#x}")
    for k in range(4): A(f"v_mov_b32 v{24+k}, s{sT}")
    A("s_mov_b64 exec, 0xff")
    A(f"buffer_store_dwordx4 v[24:27], v3, {WS}, s{sT+1} offen sc1")
    A("s_mov_b64 exec, -1")
    A("s_branch L_h3c")
    A("L_h3b:")
    C("---- wave 3: partial gate / up")
    masks()
    helper_addrs()
    xn_dups(8, [f"s_lshl_b32 s{sT}, s{sC10}, 7", f"s_add_u32 s{sT}, s{sT}, {L_XN}", f"v_lshl_add_u32 v3, v45, 4, s{sT}"])
    for G in range(8):
        a = 20 + 4 * (G & 1)
        for j in range(4): A(f"v_and_b32 v{a+j}, v{8+G}, v{4+j}")
        A(f"s_waitcnt vmcnt({14-2*G})"); A("s_nop 0")
        for m in range(2): mfma(28 + 4 * m, a, 48 + 8 * G + 4 * m, G == 0)
    A("L_h3c:")
    if holdmin:
        A("s_waitcnt lgkmcnt(0)")
        A("s_not_b32 s3, s90" if holdmin == 1 else "s_mov_b32 s3, s90"); A("v_mov_b32 v2, s3"); A("v_mov_b32 v3, 0")
        A("s_mov_b64 exec, 1"); A("global_atomic_umax v3, v2, s[24:25] sc1"); A("s_mov_b64 exec, -1")
    C("do all 32 workgroups with this id & 7 sit on this die?  Their q partials carry their die ids")
    A("v_and_b32 v3, 3, v1"); A(f"v_mul_u32_u24 v3, {8*3*4096}, v3"); A("v_lshrrev_b32 v2, 2, v1"); A("v_lshl_add_u32 v3, v2, 9, v3")
    A(f"s_and_b32 s{sT}, s2, 7"); A(f"s_mul_i32 s{sT}, s{sT}, {3*4096}"); A(f"s_add_u32 s{sT}, s{sT}, {E1}")
    ldspoll("L_gq", L_QCNT, 3, [], 44, 47)
    gettag(True)
    A(f"s_mov_b32 s{sLOC}, 1")
    A("s_mov_b32 exec_hi, 0")
    poll("L_pl", [f"buffer_load_dwordx4 v[96:99], v3, {WS}, s{sT} offen sc1"], [96], 8, tag=sTAGX, tries=6, onfail=lambda: A(f"s_mov_b32 s{sLOC}, 2"))
    A(f"v_mov_b32 v47, s{sLOC}")
    lds_signal("ds_write_b32", 44, 47, L_LOC)
    stamp("probe")
    A("s_cmpk_ge_u32 s2, 240"); A("s_cbranch_scc1 L_help_end")
    A(f"s_mul_i32 s{sG}, s{sRB}, 10240"); A(f"s_add_u32 s{sG}, s{sG}, {E2}")
    A(f"s_add_u32 s{sG+1}, s{sG}, 4096"); A(f"s_add_u32 s{sG+2}, s{sG}, 8192")
    A(f"s_lshl_b32 s{sT}, s{sC10}, 10"); A(f"s_add_u32 s{sT}, s{sT}, s{sG}")
    fold(28, 36, 38, [f"v_mov_b32 v37, s{sTAG}", f"v_mov_b32 v39, s{sTAG}"])
    fold(32, 40, 42, [f"v_mov_b32 v41, s{sTAG}", f"v_mov_b32 v43, s{sTAG}"])
    A(f"s_mov_b64 exec, {PUB}")
    flavoured([f"buffer_store_dwordx4 v[36:39], v18, {WS}, s{sT} offen", f"buffer_store_dwordx4 v[40:43], v18, {WS}, s{sT} offen offset:512"])
    A("s_mov_b64 exec, -1")
    C("hidden block and its 64 x 64 piece of w2")
    A(f"s_mul_i32 s{sT}, s{sRB}, {64*1280}"); A(f"s_lshl_b32 s{sT+1}, s{sC10}, 7"); A(f"s_add_u32 s{sT}, s{sT}, s{sT+1}")
    srd(SB, 20, 1536 * 1280)
    A(f"v_mul_u32_u24 v2, 1280, v0"); A("v_lshl_add_u32 v2, v46, 4, v2")
    ldspoll("L_gk3", L_KCNT, 8, [], 44, 47)
    for G in range(8):
        A(f"buffer_load_dwordx4 v[{48+4*G}:{51+4*G}], v2, {SB}, s{sT} offen {pol}")
        if G < 7: A(f"s_addk_i32 s{sT}, {1280 if G % 2 == 0 else 7*1280}")
    poll("L_p2", [f"buffer_load_dwordx4 v[{96+4*i}:{99+4*i}], v19, {WS}, s{sG + (i>>2)} offen offset:{1024*(i&3)} sc1" for i in range(10)],
         [96 + 4 * i for i in range(10)], 16)
    for (x, y) in ((0, 1), (2, 3), (4, 5), (6, 7), (8, 9), (0, 2), (4, 6), (0, 8), (0, 4)):
        A(f"v_add_f32 v{96+4*x}, v{96+4*x}, v{96+4*y}"); A(f"v_add_f32 v{98+4*x}, v{98+4*x}, v{98+4*y}")
    A("v_cvt_pk_bf16_f32 v96, v96, v98")
    A("v_mov_b32 v97, v96"); A("v_mov_b32 v98, v96")
    A("v_mov_b32_dpp v97, v96 row_shr:4 row_mask:0xf bank_mask:0xa", "gate pair")
    A("v_mov_b32_dpp v98, v96 row_shl:4 row_mask:0xf bank_mask:0x5", "up pair")
    unpack(100, 101, 97); unpack(102, 103, 98)
    silu2(100, 104)
    A("v_cvt_pk_bf16_f32 v97, v100, v101"); unpack(100, 101, 97)
    A("v_mul_f32 v100, v100, v102"); A("v_mul_f32 v101, v101, v103")
    A("v_cvt_pk_bf16_f32 v8, v100, v100"); A("v_cvt_pk_bf16_f32 v9, v101, v101")
    A(f"s_add_u32 s{sT+1}, s{sT+1}, {RDY}")
    unit_mfma(["v_lshrrev_b32 v36, 1, v18", "v_lshrrev_b32 v3, 1, v1", "v_lshlrev_b32 v3, 2, v3", f"v_add_u32 v3, {L_FACC}, v3", "v_mov_b32 v10, 1.0", "v_mov_b32 v11, 1.0"])
    fold(28, 28, 29, ["s_nop 0"])
    A(f"s_mov_b64 exec, {PUB}")
    A(f"ds_write_b64 v36, v[28:29] offset:{L_FACC}")
    A("s_mov_b32 exec_lo, 0x55555555"); A("s_mov_b32 exec_hi, 0x55555555")
    A("ds_read2_b32 v[10:11], v3 offset1:32", "even lanes: value, odd lanes: 1.0 (arrival count)")
    A("s_mov_b64 exec, -1")
    C("the accumulators must have been cleared in this launch")
    A(f"s_mov_b32 s{sSPIN}, {GTRIES}")
    A("L_pr:")
    A(f"s_load_dwordx2 s[{sP}:{sP+1}], s[26:27], s{sT+1} glc")
    A("s_waitcnt lgkmcnt(0)")
    A(f"s_xor_b32 s{sP}, s{sP}, s{sTAG}"); A(f"s_xor_b32 s{sP+1}, s{sP+1}, s{sTAG}"); A(f"s_or_b32 s{sP}, s{sP}, s{sP+1}")
    A("s_cbranch_scc0 L_wo")
    A("s_sleep 4")
    A(f"s_sub_u32 s{sSPIN}, s{sSPIN}, 1")
    A("s_cbranch_scc0 L_pr")
    timeout("L_pr")
    A("L_wo:")
    C("---- waves 0..3: a 64 x 64 piece of wo each")
    A("s_cmpk_ge_u32 s2, 240"); A("s_cbranch_scc1 L_help_end")
    A(f"s_lshl_b32 s{sT+2}, s{sRBL}, 2"); A(f"s_add_u32 s{sT+2}, s{sT+2}, s{sW}", "b = 4*rbl + wave")
    A(f"s_mul_i32 s{sT}, s{sT+2}, 86"); A(f"s_lshr_b32 s{sT}, s{sT}, 8")
    A(f"s_mul_i32 s{sT}, s{sT}, 21"); A(f"s_add_u32 s{sT+2}, s{sT+2}, s{sT}")
    A(f"s_and_b32 s{sT}, s2, 7"); A(f"s_mul_i32 s{sT}, s{sT}, 3"); A(f"s_add_u32 s{sT+2}, s{sT+2}, s{sT}", "64-row block = 3*head + b % 3")
    A(f"s_mul_i32 s{sT}, s{sT+2}, {64*1280}"); A(f"s_lshl_b32 s{sG+2}, s{sC10}, 7"); A(f"s_add_u32 s{sT}, s{sT}, s{sG+2}")
    srd(SB, 12, 6144 * 1280); srd(SA, 4, 1280); srd(SC, 22, 1280)
    A(f"v_mul_u32_u24 v2, {8*1280}, v45"); A("v_lshl_add_u32 v2, v46, 4, v2")
    A(f"s_lshl_b32 s{sG}, s{sT+2}, 12"); A(f"s_add_u32 s{sG}, s{sG}, {E1}")
    A(f"s_lshl_b32 s{sG+1}, s{sC10}, {11 if f64 else 10}"); A(f"s_add_u32 s{sG+1}, s{sG+1}, {ACC}")
    A("v_lshrrev_b32 v37, 1, v18"); A(f"s_lshl_b32 s{sT+2}, s{sW}, 8"); A(f"v_add_u32 v37, s{sT+2}, v37")
    A("v_lshrrev_b32 v36, 1, v1"); A("v_lshlrev_b32 v36, 2, v36"); A(f"v_add_u32 v36, {L_WACC}, v36")
    C("v16 = byte offset of this lane pair's first output column, v17 = accumulator offset")
    A("v_bfe_u32 v16, v1, 2, 3"); A("v_lshlrev_b32 v16, 4, v16"); A("v_lshrrev_b32 v17, 5, v1"); A("v_lshl_add_u32 v16, v17, 3, v16")
    A("v_and_b32 v17, 2, v1"); A("v_add_u32 v16, v16, v17")
    A(f"v_lshlrev_b32 v17, {3 if f64 else 2}, v1")
    A(f"s_add_u32 s{sTAGX}, s{sTAG}, 16")
    A(f"s_mov_b32 s{base(EVEN)}, 0x55555555"); A(f"s_mov_b32 s{base(EVEN)+1}, s{base(EVEN)}")
    A("v_mov_b32 v40, 1.0"); A("v_mov_b32 v41, 1.0")
    if gmode & 1: A("v_mov_b32 v12, 0"); A("v_mov_b32 v13, 0")
    if f64: A("v_mov_b32 v42, 0x40370000", "high word of 23.0"); A("v_mov_b32 v43, 0x40380000", "high word of 24.0")
    else: A(f"v_mov_b32 v42, {f32(23.0)}"); A(f"v_mov_b32 v43, {f32(24.0)}")
    def woload(G):
        A(f"buffer_load_dwordx4 v[{48+4*G}:{51+4*G}], v2, {SB}, s{sT} offen {pol}")
        if G < 7: A(f"s_addk_i32 s{sT}, 1280")
    ldspoll("L_gk4", L_KCNT, 8, [], 44, 47)
    A(f"buffer_load_ushort v14, v16, {SA}, s{sG+2} offen"); A(f"buffer_load_ushort v15, v16, {SA}, s{sG+2} offen offset:4")
    if otouch:
        A(f"s_cmp_lg_u32 s{sW}, 0"); A("s_cbranch_scc1 L_noot")
        A("s_mov_b64 exec, 1")
        A(f"buffer_load_ushort v39, v16, {SC}, s{sG+2} offen", "translation of the output page")
        A("s_mov_b64 exec, -1")
        A("L_noot:")
    for G in range(wo_early): woload(G)
    ldspoll("L_gv", L_VCNT, 8, [], 44, 47)
    for G in range(wo_early, 8): woload(G)
    stamp("woissued")
    A(f"s_cmp_lg_u32 s{sW}, 3"); A("s_cbranch_scc1 L_nof3")
    if f64:
        A("v_cvt_f64_f32 v[80:81], v10"); A("v_cvt_f64_f32 v[82:83], v11")
        A(f"buffer_atomic_add_f64 v[80:81], v17, {WS}, s{sG+1} offen offset:1024 sc1")
        A(f"buffer_atomic_add_f64 v[82:83], v17, {WS}, s{sG+1} offen offset:1536 sc1")
    else:
        A(f"buffer_atomic_add_f32 v10, v17, {WS}, s{sG+1} offen offset:512 sc1")
        A(f"buffer_atomic_add_f32 v11, v17, {WS}, s{sG+1} offen offset:768 sc1")
    A("L_nof3:")
    ldspoll("L_go", L_PUB, 7, [], 44, 47)
    A("v_mov_b32 v47, 1")
    gather8("L_p4", sG, 0, sTAGX)
    stamp("e4seen")
    A("v_cvt_pk_bf16_f32 v8, v118, v118"); A("v_cvt_pk_bf16_f32 v9, v119, v119")
    A("s_nop 0")
    unit_mfma([])
    fold(28, 28, 29, ["s_nop 0"])
    A(f"s_mov_b64 exec, {PUB}")
    A(f"ds_write_b64 v37, v[28:29] offset:{L_WACC}")
    A("s_mov_b64 exec, 1")
    A(f"ds_add_rtn_u32 v47, v44, v47 offset:{L_WCNT}")
    A(f"s_mov_b64 exec, {EVEN}")
    for w in range(4): A(f"ds_read2_b32 v[{20+2*w}:{21+2*w}], v36 offset0:{64*w} offset1:{64*w+32}")
    A("s_waitcnt lgkmcnt(0)")
    A(f"v_readfirstlane_b32 s{sT}, v47")
    A("v_pk_add_f32 v[20:21], v[20:21], v[22:23]"); A("v_pk_add_f32 v[24:25], v[24:25], v[26:27]")
    A(f"s_cmp_lg_u32 s{sT}, 3"); A("s_cbranch_scc1 L_help_end")
    C("last wave of the workgroup: add {value, 1.0} pairs to the accumulators; whoever sees 23 earlier arrivals finishes the column")
    def gload(first=False):
        if f64:
            A(f"buffer_load_dwordx2 v[84:85], v17, {WS}, s{sG+1} offen offset:1024 sc1"); A(f"buffer_load_dwordx2 v[86:87], v17, {WS}, s{sG+1} offen offset:1536 sc1")
        elif gmode & 1:
            if not first: A("v_mov_b32 v12, 0"); A("v_mov_b32 v13, 0")
            A(f"buffer_atomic_add_f32 v12, v17, {WS}, s{sG+1} offen offset:512 sc0 sc1"); A(f"buffer_atomic_add_f32 v13, v17, {WS}, s{sG+1} offen offset:768 sc0 sc1")
        else:
            p = "sc0 sc1 nt" if gmode & 4 else "sc1"
            A(f"buffer_load_dword v12, v17, {WS}, s{sG+1} offen offset:512 {p}"); A(f"buffer_load_dword v13, v17, {WS}, s{sG+1} offen offset:768 {p}")
    def gcalc():
        if f64:
            A("v_cvt_f32_f64 v12, v[84:85]"); A("v_cvt_f32_f64 v13, v[86:87]")
            A(f"v_cmp_ne_u32 s[{sP+2}:{sP+3}], v85, v43"); A(f"v_cmp_ne_u32 s[{sP+4}:{sP+5}], v87, v43")
        else:
            A(f"v_cmp_ne_u32 s[{sP+2}:{sP+3}], v12, v43"); A(f"v_cmp_ne_u32 s[{sP+4}:{sP+5}], v13, v43")
        A("v_cvt_pk_bf16_f32 v22, v12, v13")
        unpack(12, 13, 22)
        silu2(12, 24)
        A(f"s_or_b64 s[{sP+2}:{sP+3}], s[{sP+2}:{sP+3}], s[{sP+4}:{sP+5}]")
        A("v_cvt_pk_bf16_f32 v22, v12, v13")
        A(f"s_andn2_b64 s[{sP+2}:{sP+3}], s[{sP+2}:{sP+3}], {EVEN}", "count lanes that are not complete")
        unpack(12, 13, 22)
    A("v_pk_add_f32 v[40:41], v[20:21], v[24:25]")
    A("s_mov_b64 exec, -1")
    if not gmode & 10: gload(True)
    if f64:
        A("v_cvt_f64_f32 v[88:89], v40"); A("v_cvt_f64_f32 v[90:91], v41")
        A(f"buffer_atomic_add_f64 v[88:89], v17, {WS}, s{sG+1} offen sc0 sc1")
        A(f"buffer_atomic_add_f64 v[90:91], v17, {WS}, s{sG+1} offen offset:512 sc0 sc1")
    else:
        A(f"buffer_atomic_add_f32 v40, v17, {WS}, s{sG+1} offen sc0 sc1")
        A(f"buffer_atomic_add_f32 v41, v17, {WS}, s{sG+1} offen offset:256 sc0 sc1")
    if gmode & 2: gload(True)
    stamp("e5pub")
    if f64: A("v_cvt_f64_f32 v[92:93], v40"); A("v_cvt_f64_f32 v[94:95], v41")
    else: A("v_pk_add_f32 v[20:21], v[20:21], v[24:25]")
    A("v_lshlrev_b32 v14, 16, v14"); A("v_lshlrev_b32 v15, 16, v15")
    A(f"s_mov_b32 s{sSPIN}, {GTRIES}")
    if gmode & 8: A(f"s_mov_b64 s[{sP+2}:{sP+3}], -1")
    else:
        A("s_waitcnt vmcnt(0)" if gmode & 2 else "s_waitcnt vmcnt(2)")
        gcalc()
    A("s_waitcnt vmcnt(0)")
    stamp("atdone")
    if f64:
        A("v_add_f64 v[92:93], v[92:93], v[88:89]"); A("v_add_f64 v[94:95], v[94:95], v[90:91]")
        A("v_cmp_eq_u32 vcc, v89, v42"); A(f"v_cmp_eq_u32 s[{sP}:{sP+1}], v91, v42")
        A("v_cvt_f32_f64 v20, v[92:93]"); A("v_cvt_f32_f64 v21, v[94:95]")
    else:
        A("v_cmp_eq_f32 vcc, v40, v42"); A(f"v_cmp_eq_f32 s[{sP}:{sP+1}], v41, v42")
        A("v_pk_add_f32 v[20:21], v[20:21], v[40:41]")
    A("s_lshr_b64 vcc, vcc, 1"); A(f"s_lshr_b64 s[{sP}:{sP+1}], s[{sP}:{sP+1}], 1")
    A("v_cvt_pk_bf16_f32 v23, v20, v21")
    A(f"s_cmp_lg_u64 s[{sP+2}:{sP+3}], 0"); A("s_cbranch_scc1 L_glate")
    A("L_gok:")
    unpack(20, 21, 23)
    A("v_pk_mul_f32 v[20:21], v[20:21], v[12:13]")
    A("v_cvt_pk_bf16_f32 v22, v20, v21")
    unpack(20, 21, 22)
    A("v_pk_add_f32 v[20:21], v[20:21], v[14:15]")
    A("v_cvt_pk_bf16_f32 v22, v20, v21")
    if holdmin:
        A("s_load_dwordx2 s[96:97], s[0:1], 80"); A("s_waitcnt lgkmcnt(0)")
        A("s_load_dword s90, s[96:97], 0 glc"); A("s_waitcnt lgkmcnt(0)")
        if holdmin == 1: A("s_not_b32 s90, s90")
    if hold:
        A("L_hold:"); A("s_memrealtime s[96:97]"); A("s_waitcnt lgkmcnt(0)"); A("s_sub_u32 s96, s96, s90")
        A(f"s_cmp_lt_u32 s96, {hold}"); A("s_cbranch_scc1 L_hold")
    A(f"s_and_b64 exec, vcc, {EVEN}"); A("s_cbranch_execz L_no0")
    A(f"buffer_store_short v22, v16, {SC}, s{sG+2} offen")
    A("L_no0:")
    A(f"s_and_b64 exec, s[{sP}:{sP+1}], {EVEN}"); A("s_cbranch_execz L_no1")
    A(f"buffer_store_short_d16_hi v22, v16, {SC}, s{sG+2} offen offset:4")
    A(f"s_cmp_lg_u32 s{sC10}, 0"); A("s_cbranch_scc1 L_no1")
    A("s_and_b64 exec, exec, 1"); A("s_cbranch_execz L_no1")
    C("every wave of the launch has read the old word by now: leave this launch's tag for the next one to step past")
    A(f"v_mov_b32 v49, s{sTAG}")
    A(f"buffer_store_dword v49, v44, {WS}, 0 offen")
    A("L_no1:")
    if stamps: A("s_waitcnt vmcnt(0)")
    stamp("end")
    A("L_help_end:")
    dump_stamps()
    A("L_end:")
    A("s_endpgm")
    A("L_glate:")
    C("the gate sums are not complete yet: only a wave that finishes some column waits for them")
    A(f"s_or_b64 s[{sP+4}:{sP+5}], vcc, s[{sP}:{sP+1}]"); A(f"s_and_b64 s[{sP+4}:{sP+5}], s[{sP+4}:{sP+5}], {EVEN}")
    A("s_cbranch_scc0 L_help_end")
    A("L_gre:")
    gload()
    A("s_waitcnt vmcnt(0)")
    gcalc()
    A(f"s_cmp_eq_u64 s[{sP+2}:{sP+3}], 0"); A("s_cbranch_scc1 L_gok")
    A(f"s_sub_u32 s{sSPIN}, s{sSPIN}, 1")
    A("s_cbranch_scc0 L_gre")
    timeout("L_gre")
    if diag:
        A("v_lshlrev_b32 v166, 2, v1"); A("v_add_u32 v166, 1024, v166")
        gload(); A("s_waitcnt vmcnt(0)")
        A("global_store_dword v166, v12, s[100:101]"); A("global_store_dword v166, v13, s[100:101] offset:256")
        print(codes)
    A("s_endpgm")
    A("L_code_end:")
    A('.section .rodata,"a"'); A(".p2align 6")
    A(f".amdhsa_kernel {NAME}_kernel")
    A("  .amdhsa_next_free_vgpr 168"); A(f"  .amdhsa_next_free_sgpr {102 if diag else 100}"); A("  .amdhsa_accum_offset 168")
    A("  .amdhsa_group_segment_fixed_size 0"); A("  .amdhsa_kernarg_size 96"); A("  .amdhsa_user_sgpr_count 2")
    A("  .amdhsa_user_sgpr_kernarg_segment_ptr 1"); A("  .amdhsa_system_sgpr_workgroup_id_x 1")
    A("  .amdhsa_float_denorm_mode_32 3")
    A(".end_amdhsa_kernel")
    return "\n".join(L) + "\n"

SETS = {
  "A": dict(start=[(0,0)], e1pub=[(0,1)], qready=[(0,2)], e0pub=[(4,3),(11,4)], stats=[(2,5)], kissued=[(4,6),(11,12)], vissued=[(11,7)], e4pub=[(None,8)],
            woissued=[(0,9)], e4seen=[(0,10)], probe=[(3,11)], atdone=[(None,13)], lndone=[(0,14)]),
  "V": dict(start=[(0,0)], e4pub=[(None,1)], woissued=[(0,2)], e4seen=[(0,3),(1,4),(2,5),(3,6)], e5pub=[(None,7)], atdone=[(None,8)], end=[(None,9)], mfmadone=[(8,10),(9,11),(10,12),(11,13)], stats=[(2,14)]),
  "S": dict(start=[(0,0),(4,1)], karg=[(0,2),(3,3),(4,4),(11,5)], h1issued=[(0,6),(2,7),(3,8)], barrier=[(0,9),(4,10)], k3issued=[(4,11)], lndone=[(0,12)], e1pub=[(0,13)], kissued=[(4,14)]),
}
def build(out, **kw):
    import hazard, os
    ref = "cdna_kernels/" + NAME + ".s.ref"
    hdr = open(ref).read().split("; Override launch")[0] if os.path.exists(ref) else ""
    if kw.get("stamps"): kw["stamps"] = SETS[kw["stamps"]]
    t = gen(**kw)
    for x in hazard.check(t)[:30]: print("HAZARD", x)
    open(out, "w").write(hdr + t)
if __name__ == "__main__":
    import ast
    kw = {}
    for a in sys.argv[2:]:
        k, v = a.split("=", 1)
        try: kw[k] = ast.literal_eval(v)
        except Exception: kw[k] = v
    build(sys.argv[1], **kw)
```

```python
import sys, struct
NAME = "recurrent_scan__sliding_block_cached__glu_gated_swiglu__decode"

def f32(x): return "0x%08x" % struct.unpack("<I", struct.pack("<f", x))[0]

E0, ACC, RDY, E1, E2 = 0x1000, 0xA000, 0xF000, 0x10000, 0x70000
E3 = E2 + 24 * 10240
WS_BYTES = E3 + 240 * 512
TAGK = 0x9E3779B0
L_QCNT, L_OCNT, L_SFLAG, L_XF, L_M, L_LOC, L_KCNT, L_VCNT, L_WCNT, L_PUB, L_TAG, L_ST = 0, 4, 8, 12, 16, 24, 28, 32, 36, 40, 44, 64
L_Q, L_WACC, L_FACC, L_XN, L_OACC = 512, 1024, 2048, 2304, 3584
L_XR = L_OACC + 8 * 768
LDS_BYTES = L_XR + 1280
DPPF = "row_mask:0xf bank_mask:0xf"
LOG2E = 1.4426950408889634
GTRIES, LTRIES = 0x20000, 0x800000

DOC = """
One launch, 256 workgroups of 12 waves, one workgroup per CU; every byte of K, V and the weights is read once.
  workgroup id b: head = b & 31, split = b >> 5 (512 keys); group = b & 7 (32 workgroups, four heads).
  waves 4..11 : 64 keys each.  K rows -> registers, scores (v_dot2c), V rows -> same registers, P.V on the matrix core.
  waves 0..2  : 80 x 64 piece of wq -> partial q, exchanged inside the head; wave 2 also exchanges the softmax max / sum.
  wave 3      : 64 x 64 pieces of w1, w3 and w2 (workgroups < 240).
  waves 0..3  : 64 x 64 piece of wo each (workgroups < 240).
A row-major [8 rows][64 columns] tile is one 16-byte load per lane and one v_mfma_f32_16x16x32_bf16 whose A operand holds
the row weight in slot (lane & 7) only (masks v4..v7).  All intermediate values are rounded to bf16 where the reference does.
Hand-offs between workgroups go through d_ws as 8-byte {value, tag} granules.  The tag is the word at d_ws[0] plus a constant;
the launch leaves its tag there, so granules of an earlier launch never match.  Stores are plain only when the readers are
known to share this L2 (die ids travel in the tags of the q partials); otherwise they are written through (sc1).
The last two sums (wo and w2 partials) are f64 device-scope atomic adds of {value, 1.0} pairs on accumulators cleared in this
launch; the adder that sees all other arrivals finishes that output column.  Every wait is bounded.
"""
def gen(stamps=None, pol="nt", wo_early=2, hold=0, e1sleep=4, e0sleep=8, bar3=5, n1=24, forceslow=False, rotk=9,
        lnwave=8, pf=True, pvint=True, diag=False, tlb=0, rev=False, gmode=0, otouch=0, f64=True, holdmin=0, lred=False, lgate="s", xlds=True, pad=0, al=12, tal=0, earlybar=False, xlate=True, xpol="", pfw=5, probe_gate="q", nox=False, tagl=False, skip="", ackw=True, hoff=0, lay=0):
    L = []
    def A(x, c=None): L.append(x if c is None else f"{x:<72}; {c}")
    def C(x): L.append("; " + x)
    sW, sTAG, sHEAD, sSPLIT = 28, 29, 30, 31
    WS, SA, SB, SC = "s[32:35]", "s[36:39]", "s[40:43]", "s[44:47]"
    sRB, sC10, sSPIN = 48, 49, 50
    sT = 51
    sG = 56
    sRBL, sTAGX = 66, 67
    sST = 68
    sTHR, sLOC = 88, 89
    sP = 92
    PUB, EVEN = "s[14:15]", "s[24:25]"
    nst = [0]; stl = []
    def stamp(name):
        if not stamps or name not in stamps: return
        r = sST + 2 * len(stl)
        assert len(stl) < 10
        stl.append(stamps[name])
        A(f"s_memrealtime s[{r}:{r+1}]")
    def dump_stamps():
        if not stamps: return
        A("s_waitcnt lgkmcnt(0)")
        A(f"s_lshl_b32 s{sT}, s2, 7"); A(f"s_add_u32 s{sT}, s{sT}, {64<<20}")
        A(f"s_add_u32 s{sT+1}, s26, s{sT}"); A(f"s_addc_u32 s{sT+2}, s27, 0")
        A("s_mov_b64 exec, 1")
        A("v_mov_b32 v0, 0")
        for k, pairs in enumerate(stl):
            r = sST + 2 * k
            for (wv, slot) in pairs:
                lab2 = f"L_nost{nst[0]}"; nst[0] += 1
                if wv is not None:
                    A(f"s_cmp_lg_u32 s{sW}, {wv}"); A(f"s_cbranch_scc1 {lab2}")
                else:
                    A(f"s_cmp_eq_u32 s{r}, 0"); A(f"s_cbranch_scc1 {lab2}")
                A(f"v_mov_b32 v2, s{r}"); A(f"v_mov_b32 v3, s{r+1}")
                A(f"global_store_dwordx2 v0, v[2:3], s[{sT+1}:{sT+2}] offset:{8*slot}")
                A(f"{lab2}:")
    codes = {}
    def timeout(label):
        if not diag: return
        c = codes.setdefault(label, len(codes))
        A("s_load_dwordx2 s[100:101], s[0:1], 80"); A("s_waitcnt lgkmcnt(0)")
        A(f"v_mov_b32 v166, {4*c}"); A(f"s_lshl_b32 s3, s2, 4"); A(f"s_add_u32 s3, s3, s{sW}"); A("s_add_u32 s3, s3, 0x10000"); A("v_mov_b32 v167, s3")
        A("global_store_dword v166, v167, s[100:101]"); A("s_waitcnt vmcnt(0)")
    def base(n): return int(n[2:n.index(":")])
    def srd_c(name, size):
        b = base(name); A(f"s_mov_b32 s{b+2}, {size}"); A(f"s_mov_b32 s{b+3}, 0x20000")
    def srd_p(name, lo, off=None):
        b = base(name)
        if off is None: A(f"s_mov_b64 s[{b}:{b+1}], s[{lo}:{lo+1}]")
        else: A(f"s_add_u32 s{b}, s{lo}, s{off}"); A(f"s_addc_u32 s{b+1}, s{lo+1}, 0")
    def srd(name, lo, size): srd_p(name, lo); srd_c(name, size)
    def masks():
        C("v4..v7: keep one bf16 slot (lane & 7) of the eight a lane supplies to the matrix core")
        A("v_and_b32 v3, 1, v1"); A("v_lshlrev_b32 v3, 4, v3"); A("v_mov_b32 v7, 0xffff"); A("v_lshlrev_b32 v3, v3, v7")
        A("v_bfe_u32 v7, v1, 1, 2")
        A("v_cmp_eq_u32 vcc, 0, v7"); A(f"v_cmp_eq_u32 s[{sP}:{sP+1}], 1, v7"); A(f"v_cmp_eq_u32 s[{sP+2}:{sP+3}], 2, v7")
        A("v_cndmask_b32 v4, 0, v3, vcc")
        A("v_cmp_eq_u32 vcc, 3, v7")
        A(f"v_cndmask_b32 v5, 0, v3, s[{sP}:{sP+1}]"); A(f"v_cndmask_b32 v6, 0, v3, s[{sP+2}:{sP+3}]")
        A("v_cndmask_b32 v7, 0, v3, vcc")
        A(f"s_mov_b32 s{base(PUB)}, 0x00ff00ff"); A(f"s_mov_b32 s{base(PUB)+1}, s{base(PUB)}")
    def allred(op, x, t, steps):
        dp = {1: "quad_perm:[1,0,3,2]", 2: "quad_perm:[2,3,0,1]", 4: "row_ror:4", 8: "row_ror:8"}
        for s in steps:
            if s in dp:
                A("s_nop 1"); A(f"{op}_dpp v{x}, v{x}, v{x} {dp[s]} {DPPF}")
            else:
                A(f"v_mov_b32 v{t}, v{x}"); A("s_nop 1"); A(f"v_permlane{s}_swap_b32 v{x}, v{t}"); A(f"{op} v{x}, v{x}, v{t}")
    ALL = [1, 2, 8, 4, 16, 32]
    def unpack(lo, hi, src):
        A(f"v_lshlrev_b32 v{lo}, 16, v{src}"); A(f"v_and_b32 v{hi}, 0xffff0000, v{src}")
    def gettag(x=False):
        A(f"s_and_b32 s{sTAG}, s{sTAG}, -16"); A(f"s_add_u32 s{sTAG}, s{sTAG}, {TAGK:#x}", "hand-off tag of this launch")
        if x:
            A(f"s_getreg_b32 s{sTAGX}, hwreg(HW_REG_XCC_ID, 0, 4)")
            if forceslow: A(f"s_lshr_b32 s{sTAGX}, s2, 4")
            A(f"s_or_b32 s{sTAGX}, s{sTAGX}, s{sTAG}", "tag that also names this die")
    def ortree(ts, dst=None):
        ts = list(ts)
        while len(ts) > 1:
            d = ts[0] if dst is None else dst
            if len(ts) >= 3:
                A(f"v_or3_b32 v{d}, v{ts[0]}, v{ts[1]}, v{ts[2]}"); ts = ts[3:] + [d]
            else:
                A(f"v_or_b32 v{d}, v{ts[0]}, v{ts[1]}"); ts = [d]
        return ts[0]
    def poll(label, loads, regs, sleep, tag=sTAG, tries=GTRIES, onfail=None):
        if label[-1] in skip:
            A("s_waitcnt vmcnt(0)"); return
        A(f"s_mov_b32 s{sSPIN}, {tries}")
        A(f"{label}:")
        for l in loads: A(l)
        A("s_waitcnt vmcnt(0)")
        for r in regs: A(f"v_bitop3_b32 v{r+1}, s{tag}, v{r+1}, v{r+3} bitop3:0x7e")
        t = ortree([r + 1 for r in regs])
        A(f"v_cmp_ne_u32 vcc, 0, v{t}")
        A(f"s_cbranch_vccz {label}_ok")
        if sleep: A(f"s_sleep {sleep}")
        A(f"s_sub_u32 s{sSPIN}, s{sSPIN}, 1")
        A(f"s_cbranch_scc0 {label}")
        timeout(label)
        if onfail: onfail()
        A(f"{label}_ok:")
    def gather8(label, soff, sleep, tag, thr="0", tries=GTRIES, onfail=None):
        loads = [f"buffer_load_dwordx4 v[{96+4*i}:{99+4*i}], v19, {WS}, s{soff} offen offset:{1024*i} sc1" for i in range(4)]
        if label[-1] in skip:
            A("s_waitcnt vmcnt(0)"); return
        if ackw and label == "L_p1": A("s_waitcnt vmcnt(0)")
        A(f"s_mov_b32 s{sSPIN}, {tries}")
        for l in loads: A(l)
        A(f"{label}:")
        A("s_waitcnt vmcnt(0)")
        for k in range(4): A(f"v_bitop3_b32 v{112+k}, s{tag}, v{97+4*k}, v{99+4*k} bitop3:0x7e")
        ortree([112, 113, 114, 115], 116)
        A(f"v_cmp_lt_u32 vcc, {thr}, v116")
        A("v_add_f32 v116, v96, v100"); A("v_add_f32 v117, v98, v102"); A("v_add_f32 v118, v104, v108"); A("v_add_f32 v119, v106, v110")
        A(f"s_cbranch_vccz {label}_ok")
        for k in range(4): A(f"v_cmp_lt_u32 s[{sP+2*k}:{sP+2*k+1}], {thr}, v{112+k}")
        if sleep: A(f"s_sleep {sleep}")
        for k, l in enumerate(loads):
            A(f"s_mov_b64 exec, s[{sP+2*k}:{sP+2*k+1}]"); A(f"s_cbranch_execz {label}_s{k}")
            A(l)
            A(f"{label}_s{k}:")
        A("s_mov_b64 exec, -1")
        A(f"s_sub_u32 s{sSPIN}, s{sSPIN}, 1")
        A(f"s_cbranch_scc0 {label}")
        timeout(label)
        if onfail: onfail()
        A("s_waitcnt vmcnt(0)")
        A(f"{label}_ok:")
        A("v_pk_add_f32 v[116:117], v[116:117], v[118:119]")
        A("s_nop 1")
        A("v_add_f32_dpp v118, v116, v116 row_shl:4 row_mask:0xf bank_mask:0x5"); A("v_add_f32_dpp v119, v117, v117 row_shl:4 row_mask:0xf bank_mask:0x5")
        A("v_add_f32_dpp v118, v116, v116 row_shr:4 row_mask:0xf bank_mask:0xa"); A("v_add_f32_dpp v119, v117, v117 row_shr:4 row_mask:0xf bank_mask:0xa")
    def ldspoll(label, flag_off, want, reads, vz, vflag, cmp="ne"):
        A(f"s_mov_b32 s{sSPIN}, {LTRIES}")
        A(f"{label}:")
        A(f"ds_read_b32 v{vflag}, v{vz} offset:{flag_off}")
        for l in reads: A(l)
        A("s_waitcnt lgkmcnt(0)")
        A(f"v_cmp_{cmp}_u32 vcc, {want}, v{vflag}")
        A(f"s_cbranch_vccz {label}_ok")
        A("s_sleep 1")
        A(f"s_sub_u32 s{sSPIN}, s{sSPIN}, 1")
        A(f"s_cbranch_scc0 {label}")
        timeout("lds")
        A(f"{label}_ok:")
    def lds_signal(op, vz, vval, off):
        A("s_mov_b64 exec, 1"); A(f"{op} v{vz}, v{vval} offset:{off}"); A("s_mov_b64 exec, -1")
    def fold(acc, y0, y1, fill):
        A(f"v_permlane32_swap_b32 v{acc}, v{acc+2}")
        A(f"v_permlane32_swap_b32 v{acc+1}, v{acc+3}")
        for l in fill: A(l)
        A(f"v_add_f32_dpp v{y0}, v{acc+2}, v{acc} row_ror:8 {DPPF}")
        A(f"v_add_f32_dpp v{y1}, v{acc+3}, v{acc+1} row_ror:8 {DPPF}")
    nfl = [0]
    def flavoured(lines):
        lab = f"L_fl{nfl[0]}"; nfl[0] += 1
        A(f"s_cmp_eq_u32 s{sLOC}, 1"); A(f"s_cbranch_scc1 {lab}_p")
        for l in lines: A(l + " sc1")
        A(f"s_branch {lab}_e")
        A(f"{lab}_p:")
        for l in lines: A(l)
        A(f"{lab}_e:")
    def silu2(x, t):
        A(f"v_mul_f32 v{t}, {f32(-LOG2E)}, v{x}"); A(f"v_mul_f32 v{t+1}, {f32(-LOG2E)}, v{x+1}")
        A(f"v_exp_f32 v{t}, v{t}"); A(f"v_exp_f32 v{t+1}, v{t+1}")
        A(f"v_add_f32 v{t}, 1.0, v{t}"); A(f"v_add_f32 v{t+1}, 1.0, v{t+1}")
        A(f"v_rcp_f32 v{t}, v{t}"); A(f"v_rcp_f32 v{t+1}, v{t+1}")
        A(f"v_mul_f32 v{x}, v{x}, v{t}"); A(f"v_mul_f32 v{x+1}, v{x+1}, v{t+1}")
    def mfma(acc, a, b, first):
        A(f"v_mfma_f32_16x16x32_bf16 v[{acc}:{acc+3}], v[{a}:{a+3}], v[{b}:{b+3}], " + ("0" if first else f"v[{acc}:{acc+3}]"))
    def unit_mfma(tail):
        for G in range(8):
            a = 20 + 4 * (G & 1); k = G >> 1
            for j in range(4):
                A(f"v_and_b32_dpp v{a+j}, v{8 + (G & 1)}, v{4+j} quad_perm:[{k},{k},{k},{k}] {DPPF}")
            if G > 0: mfma(28, 20 + 4 * ((G - 1) & 1), 48 + 4 * (G - 1), G == 1)
        A("s_nop 0")
        mfma(28, 24, 76, False)
        for l in tail: A(l)
        A(f"s_nop {7 - len(tail)}")
    def xn_dups(n, addr_setup):
        for l in addr_setup: A(l)
        rd = [f"ds_read2_b32 v[{20+2*k}:{21+2*k}], v3 offset0:{2*k} offset1:{2*k+1}" for k in range(2)]
        if n == 10: rd.append("ds_read_b32 v24, v3 offset:16")
        ldspoll(f"L_gx{n}", L_XF, 1, rd, 44, 47)
        A(f"s_mov_b32 s{sT}, 0x01000100"); A(f"s_mov_b32 s{sT+1}, 0x03020302")
        for k in range(n): A(f"v_perm_b32 v{8+k}, v{20 + k//2}, v{20 + k//2}, s{sT + (k & 1)}")
    def roles():
        A(f"s_lshr_b32 s{sC10}, s2, 3"); A(f"s_mul_i32 s{sRBL}, s{sC10}, 26"); A(f"s_lshr_b32 s{sRBL}, s{sRBL}, 8", "row block inside the group = (id >> 3) / 10")
        A(f"s_mul_i32 s{sT}, s{sRBL}, 10"); A(f"s_sub_u32 s{sC10}, s{sC10}, s{sT}", "64-column block = (id >> 3) % 10")
        A(f"s_and_b32 s{sT}, s2, 7"); A(f"s_mul_i32 s{sT}, s{sT}, 3"); A(f"s_add_u32 s{sRB}, s{sT}, s{sRBL}", "FFN block 0..23")
    def helper_addrs():
        C("v18 = publish offset, v19 = gather offset, v0 = first row/column of this lane in publish order")
        A("v_lshrrev_b32 v18, 4, v1"); A("v_lshlrev_b32 v18, 7, v18"); A("v_lshl_add_u32 v18, v46, 4, v18")
        A("v_bfe_u32 v0, v1, 3, 1"); A("v_lshlrev_b32 v0, 5, v0"); A("v_bfe_u32 v3, v1, 4, 1"); A("v_lshl_add_u32 v0, v3, 2, v0")
        A("v_lshrrev_b32 v3, 5, v1"); A("v_lshl_add_u32 v0, v3, 1, v0")
        A("v_lshrrev_b32 v19, 2, v46"); A("v_lshlrev_b32 v19, 9, v19"); A("v_lshl_add_u32 v19, v45, 6, v19")
        A("v_and_b32 v3, 3, v1"); A("v_lshl_add_u32 v19, v3, 4, v19")
        A("v_mov_b32 v44, 0")
        srd(WS, 26, WS_BYTES)

    A(f"; @launch grid=(256,1,1) block=(768,1,1) lds={LDS_BYTES}")
    A('.amdgcn_target "amdgcn-amd-amdhsa--gfx950"')
    for l in DOC.strip("\n").split("\n"): C(l)
    A(".text")
    if al != 8: A(f".p2align {al}")
    if pad: A(f".fill {pad // 4}, 4, 0xbf810000")
    A(f".globl {NAME}_kernel"); A(".p2align 8"); A(f".type {NAME}_kernel,@function")
    A(f"{NAME}_kernel:")
    A("s_load_dwordx16 s[4:19], s[0:1], 0")
    A("s_load_dwordx8 s[20:27], s[0:1], 64")
    A("s_cmpk_ge_u32 s2, 256"); A("s_cbranch_scc1 L_end")
    if stamps:
        for k in range(10): A(f"s_mov_b64 s[{sST+2*k}:{sST+2*k+1}], 0")
    stamp("start")
    if hold: A("s_memrealtime s[90:91]")
    A("v_lshrrev_b32 v2, 6, v0")
    A("v_and_b32 v1, 63, v0", "lane")
    A(f"v_readfirstlane_b32 s{sW}, v2", "wave")
    A("v_lshrrev_b32 v45, 3, v1", "row slot")
    A("v_and_b32 v46, 7, v1", "16-byte chunk")
    A(f"s_and_b32 s{sHEAD}, s2, 31"); A(f"s_lshr_b32 s{sSPLIT}, s2, 5")
    A(f"s_cmp_gt_u32 s{sW}, 2"); A("s_cbranch_scc1 L_w3up")
    C("---- waves 0..2: 80 rows x 64 columns of wq")
    A("s_setprio 3")
    A(f"s_mul_i32 s{sT}, s{sSPLIT}, {80*12288}"); A(f"s_mul_i32 s{sG}, s{sHEAD}, 3"); A(f"s_add_u32 s{sG}, s{sG}, s{sW}")
    A(f"s_lshl_b32 s{sG}, s{sG}, 7"); A(f"s_add_u32 s{sG}, s{sG}, s{sT}")
    A(f"v_mul_u32_u24 v8, {10*12288}, v45"); A("v_lshl_add_u32 v8, v46, 4, v8")
    srd_c(SB, 640 * 12288)
    A("s_waitcnt lgkmcnt(0)")
    if earlybar: A("s_barrier")
    st0 = list(stl)
    stamp("karg")
    srd_p(SB, 10)
    for G in range(10):
        A(f"buffer_load_dwordx4 v[{48+4*G}:{51+4*G}], v8, {SB}, s{sG} offen {pol}")
        if G < 9: A(f"s_addk_i32 s{sG}, 12288")
    stamp("h1issued")
    if not earlybar: A("s_barrier")
    A(f"s_load_dword s{sTAG}, s[26:27], 0")
    stamp("barrier")
    A("s_branch L_h012b")
    st1 = list(stl); stl[:] = st0
    A("L_w3up:")
    A(f"s_cmp_gt_u32 s{sW}, 3"); A("s_cbranch_scc1 L_main")
    C("---- wave 3: 64 rows x 64 columns of w1 and w3")
    A("s_setprio 3")
    roles()
    A(f"s_mul_i32 s{sT}, s{sC10}, {64*3072}"); A(f"s_lshl_b32 s{sG}, s{sRB}, 7"); A(f"s_add_u32 s{sG}, s{sG}, s{sT}")
    A(f"v_mul_u32_u24 v8, {8*3072}, v45"); A("v_lshl_add_u32 v8, v46, 4, v8")
    srd_c(SB, 640 * 3072); srd_c(SC, 640 * 3072)
    if lnwave == 3:
        srd_c(SA, 1280); A("v_lshlrev_b32 v9, 4, v1"); A("v_lshlrev_b32 v3, 2, v1")
    A("s_waitcnt lgkmcnt(0)")
    stamp("karg")
    if lnwave == 3:
        srd_p(SA, 4)
        A(f"buffer_load_dwordx4 v[20:23], v9, {SA}, 0 offen"); A(f"buffer_load_dword v24, v3, {SA}, 0 offen offset:1024")
    A(f"s_load_dword s{sTAG}, s[26:27], 0")
    A("s_cmpk_ge_u32 s2, 240"); A("s_cbranch_scc1 L_h3skip")
    if earlybar: A("s_barrier")
    srd_p(SB, 16); srd_p(SC, 18)
    for G in range(8):
        A(f"buffer_load_dwordx4 v[{48+8*G}:{51+8*G}], v8, {SB}, s{sG} offen {pol}")
        A(f"buffer_load_dwordx4 v[{52+8*G}:{55+8*G}], v8, {SC}, s{sG} offen {pol}")
        if G < 7: A(f"s_addk_i32 s{sG}, 3072")
        if G == bar3 - 1 and not earlybar: A("s_barrier")
    stamp("h1issued")
    if lnwave == 3:
        A("s_waitcnt vmcnt(16)")
        A("s_branch L_ln")
        A("L_h3skip:")
        A("s_barrier")
        A("s_waitcnt vmcnt(0)")
        A("s_branch L_ln")
    else:
        A("s_branch L_h3b")
        A("L_h3skip:")
        A("s_barrier")
        A("s_branch L_h3i")
    base_st = list(st1); stl[:] = st0

    D = 48
    A("L_main:")
    C("---- waves 4..11: 64 keys each, eight groups of eight rows")
    A("s_setprio 2")
    A("v_mov_b32 v36, 0")
    if pf:
        A(f"s_cmp_lg_u32 s{sW}, {pfw}"); A("s_cbranch_scc1 L_nopf")
        C("pull this kernel's own code into L2: four lines per workgroup")
        A(f"s_getpc_b64 s[{sT+1}:{sT+2}]")
        A("L_pfbase:")
        A(f"s_lshr_b32 s{sT}, s2, 3"); A(f"s_lshl_b32 s{sT}, s{sT}, 7")
        A("v_and_b32 v2, 3, v1"); A(f"v_lshl_add_u32 v2, v2, 12, s{sT}")
        A("v_min_u32 v2, L_code_end-L_pfbase-4, v2")
        A(f"global_load_dword v47, v2, s[{sT+1}:{sT+2}]")
        A("L_nopf:")
    A("v_lshlrev_b32 v3, 2, v1")
    A("ds_write2st64_b32 v3, v36, v36 offset1:1", "clear the flag area")
    C("group index = 256*(wave>>3) + 32*g + ((8*(wave&3) + split + 9*g) & 31): one contiguous window per head")
    A(f"s_and_b32 s{sT}, s{sW}, 3"); A(f"s_lshl_b32 s{sT}, s{sT}, 3"); A(f"s_add_u32 s{sT}, s{sT}, s{sSPLIT}")
    A(f"s_lshr_b32 s{sT+1}, s{sW}, 3"); A(f"s_lshl_b32 s{sT+1}, s{sT+1}, 8")
    if rev: A(f"s_sub_u32 s{sT+1}, 480, s{sT+1}")
    if hoff:
        A(f"s_mul_i32 s{sT+2}, s{sHEAD}, {hoff}"); A(f"s_add_u32 s{sT+1}, s{sT+1}, s{sT+2}"); A(f"s_and_b32 s{sT+1}, s{sT+1}, 511")
    if lay: A(f"s_lshl_b32 s{sT+1}, s{sT+1}, 3")
    A(f"s_add_u32 s{sG}, s{sT}, s{sT+1}"); A(f"s_mulk_i32 s{sG}, {384 if lay else 3072}")
    A(f"s_mul_i32 s{sT+3}, s{sHEAD}, 12582912"); A(f"s_add_u32 s{sT+3}, s{sT+3}, 11010048")
    A(f"v_mul_u32_u24 v2, {32*384 if lay else 384}, v45"); A("v_lshl_add_u32 v2, v46, 4, v2")
    srd_c(SA, 4096 * 384)
    A("s_waitcnt lgkmcnt(0)")
    stamp("karg")
    if lnwave != 3:
        A(f"s_cmp_lg_u32 s{sW}, {lnwave}"); A("s_cbranch_scc1 L_nox")
        srd(SB, 4, 1280)
        A("v_lshlrev_b32 v8, 4, v1")
        if xlate or earlybar: A("s_barrier")
        if xlate or earlybar: A("s_setprio 3")
        A(f"buffer_load_dwordx4 v[20:23], v8, {SB}, 0 offen {xpol}"); A(f"buffer_load_dword v24, v3, {SB}, 0 offen offset:1024 {xpol}")
        if xlate or earlybar: A("s_setprio 2")
        else: A("s_barrier")
        A("s_branch L_ln")
        A("L_nox:")
        A("s_barrier")
        A("L_lnback:")
    else:
        A("s_barrier")
    srd_p(SA, 6, sT + 3)
    if not tagl: A(f"s_load_dword s{sTAG}, s[26:27], 0")
    if tlb:
        A(f"s_cmp_lg_u32 s{sW}, 9"); A("s_cbranch_scc1 L_notlb")
        A(f"s_add_u32 s{sT+4}, s{sT+3}, s{sG}")
        A(f"s_load_dword s3, s[8:9], s{sT+4}")
        if tlb > 1:
            A(f"s_mul_i32 s{sT+4}, s2, {24*1280}"); A(f"s_load_dword s3, s[12:13], s{sT+4}")
            A(f"s_mul_i32 s{sT+4}, s2, {6*1280}"); A(f"s_load_dword s3, s[20:21], s{sT+4}")
        A("L_notlb:")
    stamp("barrier")
    for g in range(8):
        for j in range(3):
            r = D + 12 * g + 4 * j
            A(f"buffer_load_dwordx4 v[{r}:{r+3}], v2, {SA}, s{sG+g} offen offset:{128*j} {pol}")
            if g < 7:
                if j == 0: A(f"s_add_u32 s{sT}, s{sT}, {rotk}"); A(f"s_{'sub' if rev else 'add'}_u32 s{sT+1}, s{sT+1}, {256 if lay else 32}")
                if j == 0 and hoff: A(f"s_and_b32 s{sT+1}, s{sT+1}, {4095 if lay else 511}")
                if j == 1: A(f"s_and_b32 s{sT+2}, s{sT}, 31"); A(f"s_add_u32 s{sG+g+1}, s{sT+2}, s{sT+1}")
                if j == 2: A(f"s_mulk_i32 s{sG+g+1}, {384 if lay else 3072}")
            else:
                if j == 0: srd_p(SB, 8, sT + 3)
                if j == 1: srd_c(SB, 4096 * 384)
        if g == 0: stamp("k3issued")
    A("s_setprio 3")
    stamp("kissued")
    srd(WS, 26, WS_BYTES)
    masks()
    A("v_lshlrev_b32 v37, 4, v46")
    for g in range(8): A(f"v_mov_b32 v{8+g}, 0")
    ldspoll("L_mq", L_QCNT, 3, [f"ds_read_b128 v[{16+4*j}:{19+4*j}], v37 offset:{L_Q+128*j}" for j in range(3)], 36, 38)
    if not tagl: gettag()
    stamp("qseen")
    C("scores")
    for g in range(0, 8, 2):
        A(f"s_waitcnt vmcnt({18 - 3*g})")
        for k in range(12):
            for gg in (g, g + 1):
                A(f"v_dot2c_f32_bf16 v{8+gg}, v{D+12*gg+k}, v{16+k}")
    stamp("kdone")
    for dp in ("quad_perm:[1,0,3,2]", "quad_perm:[2,3,0,1]", "row_half_mirror"):
        for g in range(8): A(f"v_add_f32_dpp v{8+g}, v{8+g}, v{8+g} {dp} {DPPF}")
    for k in range(4): A(f"v_cvt_pk_bf16_f32 v{28+k}, v{8+2*k}, v{9+2*k}")
    for k in range(4): unpack(8 + 2 * k, 9 + 2 * k, 28 + k)
    for g in range(8): A(f"v_mul_f32 v{8+g}, {f32(192 ** -0.5)}, v{8+g}")
    for k in range(4): A(f"v_cvt_pk_bf16_f32 v{28+k}, v{8+2*k}, v{9+2*k}")
    for k in range(4): unpack(8 + 2 * k, 9 + 2 * k, 28 + k)
    C("maximum and sum of exponentials of this wave's 64 keys")
    A("v_max3_f32 v40, v8, v9, v10"); A("v_max3_f32 v41, v11, v12, v13"); A("v_max3_f32 v40, v40, v14, v15"); A("v_max_f32 v40, v40, v41")
    allred("v_max_f32", 40, 41, [8, 16, 32])
    for g in range(8): A(f"v_sub_f32 v{28+g}, v{8+g}, v40")
    for g in range(8): A(f"v_mul_f32 v{28+g}, {f32(LOG2E)}, v{28+g}")
    for g in range(8): A(f"v_exp_f32 v{28+g}, v{28+g}")
    for k in range(4): A(f"v_add_f32 v{28+k}, v{28+k}, v{32+k}")
    A("v_add_f32 v28, v28, v29"); A("v_add_f32 v30, v30, v31"); A("v_add_f32 v41, v28, v30")
    allred("v_add_f32", 41, 42, [8, 16, 32])
    A(f"s_lshl_b32 s{sT}, s{sW}, 3"); A(f"v_mov_b32 v3, s{sT}"); A("v_mov_b32 v38, 1")
    A("s_mov_b64 exec, 1")
    A(f"ds_write_b64 v3, v[40:41] offset:{L_ST - 32}")
    A(f"ds_add_u32 v36, v38 offset:{L_KCNT}")
    A("s_mov_b64 exec, -1")
    stamp("e0pub")
    C("V rows of the same keys into the same registers")
    A("s_setprio 1")
    for g in range(8):
        for j in range(3):
            r = D + 12 * g + 4 * j
            A(f"buffer_load_dwordx4 v[{r}:{r+3}], v2, {SB}, s{sG} offen {pol}")
            if j < 2: A(f"s_addk_i32 s{sG}, 128")
            elif g < 7: A(f"s_mov_b32 s{sG}, s{sG+g+1}")
    lds_signal("ds_add_u32", 36, 38, L_VCNT)
    A("s_setprio 3")
    stamp("vissued")
    C("v39 = partial write offset, v37 / v0 = partial read offsets, v3 = publish offset")
    A("v_bfe_u32 v39, v1, 4, 1"); A("v_lshlrev_b32 v39, 4, v39"); A("v_lshl_add_u32 v39, v46, 5, v39")
    A("v_lshrrev_b32 v3, 5, v1"); A("v_lshl_add_u32 v39, v3, 3, v39")
    A(f"s_mul_i32 s{sT}, s{sW}, 768"); A(f"v_add_u32 v39, s{sT}, v39")
    A("v_mul_u32_u24 v0, 3072, v3"); A("v_and_b32 v37, 31, v1"); A("v_lshl_add_u32 v0, v37, 3, v0")
    A("v_lshlrev_b32 v3, 12, v3"); A("v_lshl_add_u32 v3, v37, 4, v3")
    A("v_lshlrev_b32 v37, 3, v1")
    A(f"s_mul_i32 s{sT}, s{sHEAD}, {3*4096}"); A(f"s_lshl_b32 s{sT+1}, s{sSPLIT}, 9"); A(f"s_add_u32 s{sT}, s{sT}, s{sT+1}")
    A(f"s_add_u32 s{sT}, s{sT}, {E1}"); A(f"s_add_u32 s{sT+1}, s{sT}, 8192")
    C("softmax weights with the maximum and the sum of the whole head")
    ldspoll("L_ms", L_SFLAG, 1, [f"ds_read_b96 v[40:42], v36 offset:{L_M}"] + ([f"ds_read_b32 v43, v36 offset:{L_TAG}"] if tagl else []), 36, 38)
    stamp("sseen")
    A(f"v_readfirstlane_b32 s{sLOC}, v42")
    for g in range(8): A(f"v_sub_f32 v{8+g}, v{8+g}, v40")
    for g in range(8): A(f"v_mul_f32 v{8+g}, {f32(LOG2E)}, v{8+g}")
    for g in range(8): A(f"v_exp_f32 v{8+g}, v{8+g}")
    for g in range(8): A(f"v_mul_f32 v{8+g}, v{8+g}, v41")
    for g in range(8): A(f"v_cvt_pk_bf16_f32 v{8+g}, v{8+g}, v{8+g}")
    if tagl:
        for r in (41, 45, 47): A(f"v_mov_b32 v{r}, v43")
    else:
        A(f"s_add_u32 s{sTAGX}, s{sTAG}, 16", "second use of the q lines: another tag")
        for r in (41, 43, 45, 47): A(f"v_mov_b32 v{r}, s{sTAGX}")
    def pv_out(j):
        a = 16 + 4 * j
        fold(a, a, a + 1, ["s_nop 0"])
        A(f"s_mov_b64 exec, {PUB}")
        A(f"ds_write_b64 v39, v[{a}:{a+1}] offset:{L_OACC - 4*768 + 256*j}")
        if j < 2: A("s_mov_b64 exec, -1")
    for g in range(8):
        a = 28 + 4 * (g & 1)
        for j in range(4): A(f"v_and_b32 v{a+j}, v{8+g}, v{4+j}")
        for j in range(3):
            A(f"s_waitcnt vmcnt({3 * (7 - g) + (2 - j)})")
            if j == 0: A("s_nop 0")
            mfma(16 + 4 * j, a, D + 12 * g + 4 * j, g == 0)
            if pvint and g == 7 and j == 1:
                A("s_nop 5"); pv_out(0)
    stamp("mfmadone")
    if pvint:
        pv_out(1); pv_out(2)
    else:
        A("s_nop 3")
        for j in range(3):
            a = 16 + 4 * j
            A(f"v_permlane32_swap_b32 v{a}, v{a+2}"); A(f"v_permlane32_swap_b32 v{a+1}, v{a+3}")
        for j in range(3):
            a = 16 + 4 * j
            A(f"v_add_f32_dpp v{a}, v{a+2}, v{a} row_ror:8 {DPPF}"); A(f"v_add_f32_dpp v{a+1}, v{a+3}, v{a+1} row_ror:8 {DPPF}")
        A(f"s_mov_b64 exec, {PUB}")
        for j in range(3):
            A(f"ds_write_b64 v39, v[{16+4*j}:{17+4*j}] offset:{L_OACC - 4*768 + 256*j}")
    A("s_mov_b64 exec, 1")
    A(f"ds_add_rtn_u32 v38, v36, v38 offset:{L_OCNT}")
    A("s_mov_b64 exec, -1")
    C("the wave that arrives last adds the eight partials and publishes them")
    for w in range(8): A(f"ds_read_b64 v[{48+2*w}:{49+2*w}], v37 offset:{L_OACC + 768*w}")
    for w in range(4): A(f"ds_read_b64 v[{64+2*w}:{65+2*w}], v0 offset:{L_OACC + 768*w + 512}")
    A("s_waitcnt lgkmcnt(4)" if not stamps else "s_waitcnt lgkmcnt(0)")
    A(f"v_readfirstlane_b32 s{sT+2}, v38")
    for (x, y) in ((48, 50), (52, 54), (56, 58), (60, 62), (48, 52), (56, 60)):
        A(f"v_pk_add_f32 v[{x}:{x+1}], v[{x}:{x+1}], v[{y}:{y+1}]")
    A(f"s_cmp_lg_u32 s{sT+2}, 7"); A("s_cbranch_scc1 L_main_end")
    A("v_add_f32 v40, v48, v56"); A("v_add_f32 v42, v49, v57")
    def third():
        A("s_waitcnt lgkmcnt(0)")
        A("v_pk_add_f32 v[64:65], v[64:65], v[66:67]"); A("v_pk_add_f32 v[68:69], v[68:69], v[70:71]")
        A("v_pk_add_f32 v[64:65], v[64:65], v[68:69]")
        A("s_nop 1")
        A("v_permlane32_swap_b32 v64, v66"); A("v_permlane32_swap_b32 v65, v67")
        A("v_add_f32 v44, v64, v66"); A("v_add_f32 v46, v65, v67")
        A("s_mov_b32 exec_hi, 0")
    A(f"s_cmp_lg_u32 s{sLOC}, 1"); A("s_cbranch_scc1 L_e4far")
    A(f"buffer_store_dwordx4 v[40:43], v3, {WS}, s{sT} offen")
    third()
    A(f"buffer_store_dwordx4 v[44:47], v3, {WS}, s{sT+1} offen")
    A("L_e4done:")
    A("s_mov_b64 exec, 1")
    A(f"ds_write_b32 v36, v38 offset:{L_PUB}")
    stamp("e4pub")
    A("L_main_end:")
    dump_stamps()
    A("s_endpgm")
    A("L_e4far:")
    A(f"buffer_store_dwordx4 v[40:43], v3, {WS}, s{sT} offen sc1")
    third()
    A(f"buffer_store_dwordx4 v[44:47], v3, {WS}, s{sT+1} offen sc1")
    A("s_branch L_e4done")

    A("L_ln:")
    C("---- layer norm of x, rounded step by step to bf16, into LDS")
    if lnwave != 3: A("s_waitcnt vmcnt(0)")
    X1, X2 = (112, 124) if lnwave == 3 else (48, 60)
    if xlds: A(f"ds_write_b128 v{9 if lnwave == 3 else 8}, v[20:23] offset:{L_XR}"); A(f"ds_write_b32 v3, v24 offset:{L_XR + 1024}")
    for k in range(5): unpack(X1 + 2 * k, X1 + 1 + 2 * k, 20 + k)
    for k in range(4): A(f"v_pk_add_f32 v[40:41], v[{40 if k else X1}:{41 if k else X1+1}], v[{X1+2+2*k}:{X1+3+2*k}]")
    A("v_add_f32 v40, v40, v41")
    allred("v_add_f32", 40, 41, ALL)
    A(f"v_mul_f32 v40, {f32(1/640)}, v40")
    for k in range(10): A(f"v_sub_f32 v{X2+k}, v{X1+k}, v40")
    A(f"v_mul_f32 v42, v{X2}, v{X2}"); A(f"v_mul_f32 v43, v{X2+1}, v{X2+1}")
    for k in range(2, 10): A(f"v_fmac_f32 v{42 + k % 2}, v{X2+k}, v{X2+k}")
    A("v_add_f32 v42, v42, v43")
    allred("v_add_f32", 42, 41, ALL)
    A(f"v_mul_f32 v42, {f32(1/640)}, v42")
    A("v_cvt_pk_bf16_f32 v41, v40, v42")
    unpack(40, 42, 41)
    A(f"v_add_f32 v42, {f32(1e-5)}, v42")
    A("v_cvt_pk_bf16_f32 v42, v42, v42"); A("v_lshlrev_b32 v42, 16, v42")
    A("v_sqrt_f32 v42, v42")
    for k in range(10): A(f"v_sub_f32 v{X1+k}, v{X1+k}, v40")
    A("v_cvt_pk_bf16_f32 v42, v42, v42"); A("v_lshlrev_b32 v42, 16, v42")
    A("v_rcp_f32 v42, v42")
    for k in range(5): A(f"v_cvt_pk_bf16_f32 v{20+k}, v{X1+2*k}, v{X1+1+2*k}")
    for k in range(5): unpack(X1 + 2 * k, X1 + 1 + 2 * k, 20 + k)
    for k in range(10): A(f"v_mul_f32 v{X1+k}, v{X1+k}, v42")
    for k in range(5): A(f"v_cvt_pk_bf16_f32 v{20+k}, v{X1+2*k}, v{X1+1+2*k}")
    A("v_mov_b32 v38, 1")
    if lnwave == 3: A("v_mov_b32 v36, 0")
    A(f"ds_write_b128 v{9 if lnwave == 3 else 8}, v[20:23] offset:{L_XN}"); A(f"ds_write_b32 v3, v24 offset:{L_XN + 1024}")
    lds_signal("ds_write_b32", 36, 38, L_XF)
    if lnwave == 3:
        A("s_cmpk_ge_u32 s2, 240"); A("s_cbranch_scc1 L_h3i")
        A("s_branch L_h3b")
    else:
        A("s_branch L_lnback")

    stl[:] = base_st
    A("L_h012b:")
    C("---- waves 0..2: partial q, exchange inside the head, q into LDS")
    roles()
    masks()
    helper_addrs()
    xn_dups(10, [f"s_mul_i32 s{sT}, s{sSPLIT}, 160", f"s_add_u32 s{sT}, s{sT}, {L_XN}", "v_mul_u32_u24 v3, 20, v45", f"v_add_u32 v3, s{sT}, v3"])
    gettag(True)
    stamp("lndone")
    for G in range(10):
        a = 20 + 4 * (G & 1)
        for j in range(4): A(f"v_and_b32 v{a+j}, v{8+G}, v{4+j}")
        A(f"s_waitcnt vmcnt({9-G})"); A("s_nop 0")
        mfma(28, a, 48 + 4 * G, G == 0)
    A(f"s_mul_i32 s{sT}, s{sHEAD}, 3"); A(f"s_add_u32 s{sT}, s{sT}, s{sW}"); A(f"s_lshl_b32 s{sT}, s{sT}, 12"); A(f"s_add_u32 s{sT}, s{sT}, {E1}")
    A(f"s_lshl_b32 s{sT+1}, s{sSPLIT}, 9"); A(f"s_add_u32 s{sT+1}, s{sT+1}, s{sT}")
    A(f"s_mov_b32 s{sTHR}, 0")
    A(f"v_mov_b32 v33, s{sTAGX}")
    fold(28, 32, 34, [f"v_mov_b32 v35, s{sTAGX}"])
    A(f"s_mov_b64 exec, {PUB}")
    A(f"buffer_store_dwordx4 v[32:35], v18, {WS}, s{sT+1} offen")
    A("s_mov_b64 exec, -1")
    stamp("e1pub")
    def e1slow():
        C("some producer of this head is (or may be) on another die: write through and accept any die id")
        A(f"s_cmp_lg_u32 s{sTHR}, 0"); A("s_cbranch_scc1 L_p1_giveup")
        A(f"s_mov_b32 s{sTHR}, 15"); A(f"s_mov_b32 s{sSPIN}, {GTRIES}")
        A(f"s_mov_b64 exec, {PUB}")
        A(f"buffer_store_dwordx4 v[32:35], v18, {WS}, s{sT+1} offen sc1")
        A("s_mov_b64 exec, -1")
        A("s_branch L_p1")
        A("L_p1_giveup:")
    gather8("L_p1", sT, e1sleep, sTAGX, thr=f"s{sTHR}", tries=n1, onfail=e1slow)
    A("v_cvt_pk_bf16_f32 v96, v118, v119")
    A("v_and_b32 v3, 3, v1"); A("v_lshlrev_b32 v3, 4, v3"); A("v_lshl_add_u32 v3, v0, 1, v3")
    A(f"s_lshl_b32 s{sT}, s{sW}, 7"); A(f"v_add_u32 v3, s{sT}, v3")
    A(f"ds_write_b32 v3, v96 offset:{L_Q}")
    A("v_mov_b32 v38, 1")
    lds_signal("ds_add_u32", 44, 38, L_QCNT)
    stamp("qready")
    A(f"s_cmp_lg_u32 s{sW}, 2"); A("s_cbranch_scc1 L_wo")
    C("---- wave 2: softmax maximum and sum of the head")
    A("v_lshlrev_b32 v3, 4, v1"); A(f"s_lshl_b32 s{sT}, s{sHEAD}, 10"); A(f"s_add_u32 s{sT}, s{sT}, {E0}")
    A("v_lshlrev_b32 v39, 3, v46")
    A(f"v_mov_b32 v41, s{sTAG}"); A(f"v_mov_b32 v43, s{sTAG}")
    A(f"s_lshl_b32 s{sT+1}, s{sSPLIT}, 7"); A(f"s_add_u32 s{sT+1}, s{sT+1}, s{sT}")
    ldspoll("L_gl", L_LOC, 0, [], 44, 37, cmp="eq")
    A(f"v_readfirstlane_b32 s{sLOC}, v37")
    ldspoll("L_gk", L_KCNT, 8, [f"ds_read_b32 v40, v39 offset:{L_ST}", f"ds_read_b32 v42, v39 offset:{L_ST+4}"], 44, 37)
    A("s_mov_b64 exec, 0xff")
    flavoured([f"buffer_store_dwordx4 v[40:43], v3, {WS}, s{sT+1} offen"])
    A("s_mov_b64 exec, -1")
    poll("L_p0", [f"buffer_load_dwordx4 v[96:99], v3, {WS}, s{sT} offen sc1"], [96], e0sleep)
    A("v_mov_b32 v40, v96")
    allred("v_max_f32", 40, 41, ALL)
    A("v_sub_f32 v96, v96, v40"); A(f"v_mul_f32 v96, {f32(LOG2E)}, v96"); A("v_exp_f32 v96, v96"); A("s_nop 0")
    A("v_mul_f32 v42, v96, v98")
    allred("v_add_f32", 42, 41, ALL)
    A("v_rcp_f32 v41, v42")
    A("s_mov_b64 exec, 1")
    A(f"ds_write_b64 v44, v[40:41] offset:{L_M}")
    if tagl:
        A("v_add_u32 v43, 16, v43", "second use of the q lines: another tag"); A(f"ds_write_b32 v44, v43 offset:{L_TAG}")
    A(f"ds_write_b32 v44, v38 offset:{L_SFLAG}")
    A("s_mov_b64 exec, -1")
    stamp("stats")
    A("s_branch L_wo")
    A("L_h3i:")
    C("---- wave 3 of workgroups 240..249: clear the accumulators of one column block, then say so")
    helper_addrs()
    A("s_cmpk_ge_u32 s2, 250"); A("s_cbranch_scc1 L_h3c")
    A(f"s_sub_u32 s{sT}, s2, 240"); A(f"s_lshl_b32 s{sT+1}, s{sT}, 7"); A(f"s_add_u32 s{sT+1}, s{sT+1}, {RDY}")
    A(f"s_lshl_b32 s{sT}, s{sT}, {11 if f64 else 10}"); A(f"s_add_u32 s{sT}, s{sT}, {ACC}")
    for k in range(4): A(f"v_mov_b32 v{20+k}, 0")
    A("v_lshlrev_b32 v3, 4, v1")
    A(f"buffer_store_dwordx4 v[20:23], v3, {WS}, s{sT} offen sc1")
    if f64: A(f"buffer_store_dwordx4 v[20:23], v3, {WS}, s{sT} offen offset:1024 sc1")
    A("s_waitcnt vmcnt(0) lgkmcnt(0)")
    A(f"s_and_b32 s{sT}, s{sTAG}, -16"); A(f"s_add_u32 s{sT}, s{sT}, {TAGK:#x}")
    for k in range(4): A(f"v_mov_b32 v{24+k}, s{sT}")
    A("s_mov_b64 exec, 0xff")
    A(f"buffer_store_dwordx4 v[24:27], v3, {WS}, s{sT+1} offen sc1")
    A("s_mov_b64 exec, -1")
    A("s_branch L_h3c")
    A("L_h3b:")
    C("---- wave 3: partial gate / up")
    masks()
    helper_addrs()
    xn_dups(8, [f"s_lshl_b32 s{sT}, s{sC10}, 7", f"s_add_u32 s{sT}, s{sT}, {L_XN}", f"v_lshl_add_u32 v3, v45, 4, s{sT}"])
    for G in range(8):
        a = 20 + 4 * (G & 1)
        for j in range(4): A(f"v_and_b32 v{a+j}, v{8+G}, v{4+j}")
        A(f"s_waitcnt vmcnt({14-2*G})"); A("s_nop 0")
        for m in range(2): mfma(28 + 4 * m, a, 48 + 8 * G + 4 * m, G == 0)
    A("L_h3c:")
    if holdmin:
        A("s_waitcnt lgkmcnt(0)")
        A("s_not_b32 s3, s90" if holdmin == 1 else "s_mov_b32 s3, s90"); A("v_mov_b32 v2, s3"); A("v_mov_b32 v3, 0")
        A("s_mov_b64 exec, 1"); A("global_atomic_umax v3, v2, s[24:25] sc1"); A("s_mov_b64 exec, -1")
    C("do all 32 workgroups with this id & 7 sit on this die?  Their q partials carry their die ids")
    A("v_and_b32 v3, 3, v1"); A(f"v_mul_u32_u24 v3, {8*3*4096}, v3"); A("v_lshrrev_b32 v2, 2, v1"); A("v_lshl_add_u32 v3, v2, 9, v3")
    A(f"s_and_b32 s{sT}, s2, 7"); A(f"s_mul_i32 s{sT}, s{sT}, {3*4096}"); A(f"s_add_u32 s{sT}, s{sT}, {E1}")
    ldspoll("L_gq", L_QCNT, 3, [], 44, 47)
    gettag(True)
    A(f"s_mov_b32 s{sLOC}, 1")
    A("s_mov_b32 exec_hi, 0")
    poll("L_pl", [f"buffer_load_dwordx4 v[96:99], v3, {WS}, s{sT} offen sc1"], [96], 8, tag=sTAGX, tries=6, onfail=lambda: A(f"s_mov_b32 s{sLOC}, 2"))
    A(f"v_mov_b32 v47, s{sLOC}")
    lds_signal("ds_write_b32", 44, 47, L_LOC)
    stamp("probe")
    A("s_cmpk_ge_u32 s2, 240"); A("s_cbranch_scc1 L_light" if lred else "s_cbranch_scc1 L_help_end")
    A(f"s_mul_i32 s{sG}, s{sRB}, 10240"); A(f"s_add_u32 s{sG}, s{sG}, {E2}")
    A(f"s_add_u32 s{sG+1}, s{sG}, 4096"); A(f"s_add_u32 s{sG+2}, s{sG}, 8192")
    A(f"s_lshl_b32 s{sT}, s{sC10}, 10"); A(f"s_add_u32 s{sT}, s{sT}, s{sG}")
    fold(28, 36, 38, [f"v_mov_b32 v37, s{sTAG}", f"v_mov_b32 v39, s{sTAG}"])
    fold(32, 40, 42, [f"v_mov_b32 v41, s{sTAG}", f"v_mov_b32 v43, s{sTAG}"])
    A(f"s_mov_b64 exec, {PUB}")
    flavoured([f"buffer_store_dwordx4 v[36:39], v18, {WS}, s{sT} offen", f"buffer_store_dwordx4 v[40:43], v18, {WS}, s{sT} offen offset:512"])
    A("s_mov_b64 exec, -1")
    C("hidden block and its 64 x 64 piece of w2")
    A(f"s_mul_i32 s{sT}, s{sRB}, {64*1280}"); A(f"s_lshl_b32 s{sT+1}, s{sC10}, 7"); A(f"s_add_u32 s{sT}, s{sT}, s{sT+1}")
    srd(SB, 20, 1536 * 1280)
    A(f"v_mul_u32_u24 v2, 1280, v0"); A("v_lshl_add_u32 v2, v46, 4, v2")
    ldspoll("L_gk3", L_KCNT, 8, [], 44, 47)
    for G in range(8):
        A(f"buffer_load_dwordx4 v[{48+4*G}:{51+4*G}], v2, {SB}, s{sT} offen {pol}")
        if G < 7: A(f"s_addk_i32 s{sT}, {1280 if G % 2 == 0 else 7*1280}")
    poll("L_p2", [f"buffer_load_dwordx4 v[{96+4*i}:{99+4*i}], v19, {WS}, s{sG + (i>>2)} offen offset:{1024*(i&3)} sc1" for i in range(10)],
         [96 + 4 * i for i in range(10)], 16)
    for (x, y) in ((0, 1), (2, 3), (4, 5), (6, 7), (8, 9), (0, 2), (4, 6), (0, 8), (0, 4)):
        A(f"v_add_f32 v{96+4*x}, v{96+4*x}, v{96+4*y}"); A(f"v_add_f32 v{98+4*x}, v{98+4*x}, v{98+4*y}")
    A("v_cvt_pk_bf16_f32 v96, v96, v98")
    A("v_mov_b32 v97, v96"); A("v_mov_b32 v98, v96")
    A("v_mov_b32_dpp v97, v96 row_shr:4 row_mask:0xf bank_mask:0xa", "gate pair")
    A("v_mov_b32_dpp v98, v96 row_shl:4 row_mask:0xf bank_mask:0x5", "up pair")
    unpack(100, 101, 97); unpack(102, 103, 98)
    silu2(100, 104)
    A("v_cvt_pk_bf16_f32 v97, v100, v101"); unpack(100, 101, 97)
    A("v_mul_f32 v100, v100, v102"); A("v_mul_f32 v101, v101, v103")
    A("v_cvt_pk_bf16_f32 v8, v100, v100"); A("v_cvt_pk_bf16_f32 v9, v101, v101")
    A(f"s_add_u32 s{sT+1}, s{sT+1}, {RDY}")
    if lred:
        unit_mfma([f"s_and_b32 s{sT}, s2, 7", f"s_mul_i32 s{sT}, s{sT}, 10", f"s_add_u32 s{sT}, s{sT}, s{sC10}", f"s_mul_i32 s{sT}, s{sT}, 3",
                   f"s_add_u32 s{sT}, s{sT}, s{sRBL}", f"s_lshl_b32 s{sT}, s{sT}, 9", f"s_add_u32 s{sT}, s{sT}, {E3}"])
        fold(28, 36, 38, ["s_nop 0"])
        A(f"s_mov_b64 exec, {PUB}")
        flavoured([f"buffer_store_dwordx4 v[36:39], v18, {WS}, s{sT} offen"])
        A("s_mov_b64 exec, -1")
    else:
        unit_mfma(["v_lshrrev_b32 v36, 1, v18", "v_lshrrev_b32 v3, 1, v1", "v_lshlrev_b32 v3, 2, v3", f"v_add_u32 v3, {L_FACC}, v3", "v_mov_b32 v10, 1.0", "v_mov_b32 v11, 1.0"])
        fold(28, 28, 29, ["s_nop 0"])
        A(f"s_mov_b64 exec, {PUB}")
        A(f"ds_write_b64 v36, v[28:29] offset:{L_FACC}")
        A("s_mov_b32 exec_lo, 0x55555555"); A("s_mov_b32 exec_hi, 0x55555555")
        A("ds_read2_b32 v[10:11], v3 offset1:32", "even lanes: value, odd lanes: 1.0 (arrival count)")
        A("s_mov_b64 exec, -1")
    C("the accumulators must have been cleared in this launch")
    A(f"s_mov_b32 s{sSPIN}, {GTRIES}")
    A("L_pr:")
    A(f"s_load_dwordx2 s[{sP}:{sP+1}], s[26:27], s{sT+1} glc")
    A("s_waitcnt lgkmcnt(0)")
    A(f"s_xor_b32 s{sP}, s{sP}, s{sTAG}"); A(f"s_xor_b32 s{sP+1}, s{sP+1}, s{sTAG}"); A(f"s_or_b32 s{sP}, s{sP}, s{sP+1}")
    A("s_cbranch_scc0 L_wo")
    A("s_sleep 4")
    A(f"s_sub_u32 s{sSPIN}, s{sSPIN}, 1")
    A("s_cbranch_scc0 L_pr")
    timeout("L_pr")
    A("L_wo:")
    C("---- waves 0..3: a 64 x 64 piece of wo each")
    A("s_cmpk_ge_u32 s2, 240"); A("s_cbranch_scc1 L_light" if lred else "s_cbranch_scc1 L_help_end")
    A(f"s_lshl_b32 s{sT+2}, s{sRBL}, 2"); A(f"s_add_u32 s{sT+2}, s{sT+2}, s{sW}", "b = 4*rbl + wave")
    A(f"s_mul_i32 s{sT}, s{sT+2}, 86"); A(f"s_lshr_b32 s{sT}, s{sT}, 8")
    A(f"s_mul_i32 s{sT}, s{sT}, 21"); A(f"s_add_u32 s{sT+2}, s{sT+2}, s{sT}")
    A(f"s_and_b32 s{sT}, s2, 7"); A(f"s_mul_i32 s{sT}, s{sT}, 3"); A(f"s_add_u32 s{sT+2}, s{sT+2}, s{sT}", "64-row block = 3*head + b % 3")
    A(f"s_mul_i32 s{sT}, s{sT+2}, {64*1280}"); A(f"s_lshl_b32 s{sG+2}, s{sC10}, 7"); A(f"s_add_u32 s{sT}, s{sT}, s{sG+2}")
    srd(SB, 12, 6144 * 1280); srd(SA, 4, 1280); srd(SC, 22, 1280)
    A(f"v_mul_u32_u24 v2, {8*1280}, v45"); A("v_lshl_add_u32 v2, v46, 4, v2")
    A(f"s_lshl_b32 s{sG}, s{sT+2}, 12"); A(f"s_add_u32 s{sG}, s{sG}, {E1}")
    A(f"s_lshl_b32 s{sG+1}, s{sC10}, {11 if f64 else 10}"); A(f"s_add_u32 s{sG+1}, s{sG+1}, {ACC}")
    A("v_lshrrev_b32 v37, 1, v18"); A(f"s_lshl_b32 s{sT+2}, s{sW}, 8"); A(f"v_add_u32 v37, s{sT+2}, v37")
    A("v_lshrrev_b32 v36, 1, v1"); A("v_lshlrev_b32 v36, 2, v36"); A(f"v_add_u32 v36, {L_WACC}, v36")
    C("v16 = byte offset of this lane pair's first output column, v17 = accumulator offset")
    A("v_bfe_u32 v16, v1, 2, 3"); A("v_lshlrev_b32 v16, 4, v16"); A("v_lshrrev_b32 v17, 5, v1"); A("v_lshl_add_u32 v16, v17, 3, v16")
    A("v_and_b32 v17, 2, v1"); A("v_add_u32 v16, v16, v17")
    A(f"v_lshlrev_b32 v17, {3 if f64 else 2}, v1")
    A(f"s_add_u32 s{sTAGX}, s{sTAG}, 16")
    A(f"s_mov_b32 s{base(EVEN)}, 0x55555555"); A(f"s_mov_b32 s{base(EVEN)+1}, s{base(EVEN)}")
    A("v_mov_b32 v40, 1.0"); A("v_mov_b32 v41, 1.0")
    if gmode & 1: A("v_mov_b32 v12, 0"); A("v_mov_b32 v13, 0")
    if f64: A("v_mov_b32 v42, 0x40370000", "high word of 23.0"); A("v_mov_b32 v43, 0x40200000" if lred else "v_mov_b32 v43, 0x40380000", "high word of the complete gate count")
    else: A(f"v_mov_b32 v42, {f32(23.0)}"); A(f"v_mov_b32 v43, {f32(24.0)}")
    def woload(G):
        A(f"buffer_load_dwordx4 v[{48+4*G}:{51+4*G}], v2, {SB}, s{sT} offen {pol}")
        if G < 7: A(f"s_addk_i32 s{sT}, 1280")
    if xlds:
        A(f"v_add_u32 v3, s{sG+2}, v16")
        ldspoll("L_gk4", L_KCNT, 8, [f"ds_read_u16 v14, v3 offset:{L_XR}", f"ds_read_u16 v15, v3 offset:{L_XR+4}"], 44, 47)
    else:
        ldspoll("L_gk4", L_KCNT, 8, [], 44, 47)
        A(f"buffer_load_ushort v14, v16, {SA}, s{sG+2} offen"); A(f"buffer_load_ushort v15, v16, {SA}, s{sG+2} offen offset:4")
    if otouch:
        A(f"s_cmp_lg_u32 s{sW}, 0"); A("s_cbranch_scc1 L_noot")
        A("s_mov_b64 exec, 1")
        A(f"buffer_load_ushort v39, v16, {SC}, s{sG+2} offen", "translation of the output page")
        A("s_mov_b64 exec, -1")
        A("L_noot:")
    for G in range(wo_early): woload(G)
    ldspoll("L_gv", L_VCNT, 8, [], 44, 47)
    for G in range(wo_early, 8): woload(G)
    stamp("woissued")
    if not lred:
        A(f"s_cmp_lg_u32 s{sW}, 3"); A("s_cbranch_scc1 L_nof3")
        if f64:
            A("v_cvt_f64_f32 v[80:81], v10"); A("v_cvt_f64_f32 v[82:83], v11")
            A(f"buffer_atomic_add_f64 v[80:81], v17, {WS}, s{sG+1} offen offset:1024 sc1")
            A(f"buffer_atomic_add_f64 v[82:83], v17, {WS}, s{sG+1} offen offset:1536 sc1")
        else:
            A(f"buffer_atomic_add_f32 v10, v17, {WS}, s{sG+1} offen offset:512 sc1")
            A(f"buffer_atomic_add_f32 v11, v17, {WS}, s{sG+1} offen offset:768 sc1")
        A("L_nof3:")
    if tal:
        A("s_branch L_tail")
        A(".p2align 12")
        A("L_tail:")
    ldspoll("L_go", L_PUB, 7, [], 44, 47)
    A("v_mov_b32 v47, 1")
    gather8("L_p4", sG, 0, sTAGX)
    stamp("e4seen")
    A("v_cvt_pk_bf16_f32 v8, v118, v118"); A("v_cvt_pk_bf16_f32 v9, v119, v119")
    A("s_nop 0")
    unit_mfma([])
    fold(28, 28, 29, ["s_nop 0"])
    A(f"s_mov_b64 exec, {PUB}")
    A(f"ds_write_b64 v37, v[28:29] offset:{L_WACC}")
    A("s_mov_b64 exec, 1")
    A(f"ds_add_rtn_u32 v47, v44, v47 offset:{L_WCNT}")
    A(f"s_mov_b64 exec, {EVEN}")
    for w in range(4): A(f"ds_read2_b32 v[{20+2*w}:{21+2*w}], v36 offset0:{64*w} offset1:{64*w+32}")
    A("s_waitcnt lgkmcnt(0)")
    A(f"v_readfirstlane_b32 s{sT}, v47")
    A("v_pk_add_f32 v[20:21], v[20:21], v[22:23]"); A("v_pk_add_f32 v[24:25], v[24:25], v[26:27]")
    A(f"s_cmp_lg_u32 s{sT}, 3"); A("s_cbranch_scc1 L_help_end")
    C("last wave of the workgroup: add {value, 1.0} pairs to the accumulators; whoever sees 23 earlier arrivals finishes the column")
    def gload(first=False):
        if f64:
            A(f"buffer_load_dwordx2 v[84:85], v17, {WS}, s{sG+1} offen offset:1024 sc1"); A(f"buffer_load_dwordx2 v[86:87], v17, {WS}, s{sG+1} offen offset:1536 sc1")
        elif gmode & 1:
            if not first: A("v_mov_b32 v12, 0"); A("v_mov_b32 v13, 0")
            A(f"buffer_atomic_add_f32 v12, v17, {WS}, s{sG+1} offen offset:512 sc0 sc1"); A(f"buffer_atomic_add_f32 v13, v17, {WS}, s{sG+1} offen offset:768 sc0 sc1")
        else:
            p = "sc0 sc1 nt" if gmode & 4 else "sc1"
            A(f"buffer_load_dword v12, v17, {WS}, s{sG+1} offen offset:512 {p}"); A(f"buffer_load_dword v13, v17, {WS}, s{sG+1} offen offset:768 {p}")
    def gcalc():
        if f64:
            A("v_cvt_f32_f64 v12, v[84:85]"); A("v_cvt_f32_f64 v13, v[86:87]")
            A(f"v_cmp_ne_u32 s[{sP+2}:{sP+3}], v85, v43"); A(f"v_cmp_ne_u32 s[{sP+4}:{sP+5}], v87, v43")
        else:
            A(f"v_cmp_ne_u32 s[{sP+2}:{sP+3}], v12, v43"); A(f"v_cmp_ne_u32 s[{sP+4}:{sP+5}], v13, v43")
        A("v_cvt_pk_bf16_f32 v22, v12, v13")
        unpack(12, 13, 22)
        silu2(12, 24)
        A(f"s_or_b64 s[{sP+2}:{sP+3}], s[{sP+2}:{sP+3}], s[{sP+4}:{sP+5}]")
        A("v_cvt_pk_bf16_f32 v22, v12, v13")
        A(f"s_andn2_b64 s[{sP+2}:{sP+3}], s[{sP+2}:{sP+3}], {EVEN}", "count lanes that are not complete")
        unpack(12, 13, 22)
    A("v_pk_add_f32 v[40:41], v[20:21], v[24:25]")
    A("s_mov_b64 exec, -1")
    if not gmode & 10: gload(True)
    if f64:
        A("v_cvt_f64_f32 v[88:89], v40"); A("v_cvt_f64_f32 v[90:91], v41")
        A(f"buffer_atomic_add_f64 v[88:89], v17, {WS}, s{sG+1} offen sc0 sc1")
        A(f"buffer_atomic_add_f64 v[90:91], v17, {WS}, s{sG+1} offen offset:512 sc0 sc1")
    else:
        A(f"buffer_atomic_add_f32 v40, v17, {WS}, s{sG+1} offen sc0 sc1")
        A(f"buffer_atomic_add_f32 v41, v17, {WS}, s{sG+1} offen offset:256 sc0 sc1")
    if gmode & 2: gload(True)
    stamp("e5pub")
    if f64: A("v_cvt_f64_f32 v[92:93], v40"); A("v_cvt_f64_f32 v[94:95], v41")
    else: A("v_pk_add_f32 v[20:21], v[20:21], v[24:25]")
    A("v_lshlrev_b32 v14, 16, v14"); A("v_lshlrev_b32 v15, 16, v15")
    A(f"s_mov_b32 s{sSPIN}, {GTRIES}")
    if gmode & 8: A(f"s_mov_b64 s[{sP+2}:{sP+3}], -1")
    else:
        A("s_waitcnt vmcnt(0)" if gmode & 2 else "s_waitcnt vmcnt(2)")
        gcalc()
    A("s_waitcnt vmcnt(0)")
    stamp("atdone")
    if f64:
        A("v_add_f64 v[92:93], v[92:93], v[88:89]"); A("v_add_f64 v[94:95], v[94:95], v[90:91]")
        A("v_cmp_eq_u32 vcc, v89, v42"); A(f"v_cmp_eq_u32 s[{sP}:{sP+1}], v91, v42")
        A("v_cvt_f32_f64 v20, v[92:93]"); A("v_cvt_f32_f64 v21, v[94:95]")
    else:
        A("v_cmp_eq_f32 vcc, v40, v42"); A(f"v_cmp_eq_f32 s[{sP}:{sP+1}], v41, v42")
        A("v_pk_add_f32 v[20:21], v[20:21], v[40:41]")
    A("s_lshr_b64 vcc, vcc, 1"); A(f"s_lshr_b64 s[{sP}:{sP+1}], s[{sP}:{sP+1}], 1")
    A("v_cvt_pk_bf16_f32 v23, v20, v21")
    A(f"s_cmp_lg_u64 s[{sP+2}:{sP+3}], 0"); A("s_cbranch_scc1 L_glate")
    A("L_gok:")
    unpack(20, 21, 23)
    A("v_pk_mul_f32 v[20:21], v[20:21], v[12:13]")
    A("v_cvt_pk_bf16_f32 v22, v20, v21")
    unpack(20, 21, 22)
    A("v_pk_add_f32 v[20:21], v[20:21], v[14:15]")
    A("v_cvt_pk_bf16_f32 v22, v20, v21")
    if holdmin:
        A("s_load_dwordx2 s[96:97], s[0:1], 80"); A("s_waitcnt lgkmcnt(0)")
        A("s_load_dword s90, s[96:97], 0 glc"); A("s_waitcnt lgkmcnt(0)")
        if holdmin == 1: A("s_not_b32 s90, s90")
    if hold:
        A("L_hold:"); A("s_memrealtime s[96:97]"); A("s_waitcnt lgkmcnt(0)"); A("s_sub_u32 s96, s96, s90")
        A(f"s_cmp_lt_u32 s96, {hold}"); A("s_cbranch_scc1 L_hold")
    A(f"s_and_b64 exec, vcc, {EVEN}"); A("s_cbranch_execz L_no0")
    A(f"buffer_store_short v22, v16, {SC}, s{sG+2} offen")
    A("L_no0:")
    A(f"s_and_b64 exec, s[{sP}:{sP+1}], {EVEN}"); A("s_cbranch_execz L_no1")
    A(f"buffer_store_short_d16_hi v22, v16, {SC}, s{sG+2} offen offset:4")
    A(f"s_cmp_lg_u32 s{sC10}, 0"); A("s_cbranch_scc1 L_no1")
    A("s_and_b64 exec, exec, 1"); A("s_cbranch_execz L_no1")
    C("every wave of the launch has read the old word by now: leave this launch's tag for the next one to step past")
    A(f"v_mov_b32 v49, s{sTAG}")
    A(f"buffer_store_dword v49, v44, {WS}, 0 offen")
    A("L_no1:")
    if stamps: A("s_waitcnt vmcnt(0)")
    stamp("end")
    A("L_help_end:")
    dump_stamps()
    A("L_end:")
    A("s_endpgm")
    A("L_glate:")
    C("the gate sums are not complete yet: only a wave that finishes some column waits for them")
    A(f"s_or_b64 s[{sP+4}:{sP+5}], vcc, s[{sP}:{sP+1}]"); A(f"s_and_b64 s[{sP+4}:{sP+5}], s[{sP+4}:{sP+5}], {EVEN}")
    A("s_cbranch_scc0 L_help_end")
    A("L_gre:")
    gload()
    A("s_waitcnt vmcnt(0)")
    gcalc()
    A(f"s_cmp_eq_u64 s[{sP+2}:{sP+3}], 0"); A("s_cbranch_scc1 L_gok")
    A(f"s_sub_u32 s{sSPIN}, s{sSPIN}, 1")
    A("s_cbranch_scc0 L_gre")
    timeout("L_gre")
    if diag:
        A("v_lshlrev_b32 v166, 2, v1"); A("v_add_u32 v166, 1024, v166")
        gload(); A("s_waitcnt vmcnt(0)")
        A("global_store_dword v166, v12, s[100:101]"); A("global_store_dword v166, v13, s[100:101] offset:256")
        print(codes)
    A("s_endpgm")
    if lred:
        A("L_light:")
        C("---- workgroups 240..255: add the three w2 partials of their group, one atomic contribution per group and column block")
        A(f"s_bfe_u32 s{sC10}, s2, 0x10003"); A(f"s_mul_i32 s{sC10}, s{sC10}, 5"); A(f"s_add_u32 s{sRB}, s{sC10}, 5"); A(f"s_add_u32 s{sC10}, s{sC10}, s{sW}")
        A("v_lshlrev_b32 v17, 3, v1"); A("v_lshrrev_b32 v16, 1, v1"); A("v_lshlrev_b32 v16, 3, v16")
        A(f"s_mov_b32 s{base(EVEN)}, 0x55555555"); A(f"s_mov_b32 s{base(EVEN)+1}, s{base(EVEN)}")
        if lgate == "s": ldspoll("L_lg", L_SFLAG, 1, [], 44, 47)
        elif lgate == "v": ldspoll("L_lg", L_VCNT, 8, [], 44, 47)
        A("L_lnext:")
        A(f"s_and_b32 s{sT}, s2, 7"); A(f"s_mul_i32 s{sT}, s{sT}, 10"); A(f"s_add_u32 s{sT}, s{sT}, s{sC10}"); A(f"s_mul_i32 s{sT}, s{sT}, 1536"); A(f"s_add_u32 s{sT}, s{sT}, {E3}")
        A(f"s_lshl_b32 s{sT+1}, s{sC10}, 7"); A(f"s_add_u32 s{sT+1}, s{sT+1}, {RDY}")
        A(f"s_lshl_b32 s{sT+2}, s{sC10}, 11"); A(f"s_add_u32 s{sT+2}, s{sT+2}, {ACC + 1024}")
        A(f"s_mov_b32 s{sSPIN}, {GTRIES}")
        A("L_lp:")
        A(f"s_load_dwordx2 s[{sP}:{sP+1}], s[26:27], s{sT+1} glc")
        for k in range(6): A(f"buffer_load_dwordx2 v[{48+2*k}:{49+2*k}], v16, {WS}, s{sT} offen offset:{256*k} sc1")
        A("s_waitcnt vmcnt(0) lgkmcnt(0)")
        for k in range(3): A(f"v_bitop3_b32 v{49+4*k}, s{sTAG}, v{49+4*k}, v{51+4*k} bitop3:0x7e")
        A(f"s_xor_b32 s{sP}, s{sP}, s{sTAG}"); A(f"s_xor_b32 s{sP+1}, s{sP+1}, s{sTAG}"); A(f"s_or_b32 s{sP}, s{sP}, s{sP+1}")
        A("v_or3_b32 v49, v49, v53, v57"); A(f"v_or_b32 v49, s{sP}, v49")
        A("v_cmp_ne_u32 vcc, 0, v49")
        A("s_cbranch_vccz L_lp_ok")
        A("s_sleep 8")
        A(f"s_sub_u32 s{sSPIN}, s{sSPIN}, 1")
        A("s_cbranch_scc0 L_lp")
        A("L_lp_ok:")
        A("v_add_f32 v48, v48, v52"); A("v_add_f32 v50, v50, v54"); A("v_add_f32 v48, v48, v56"); A("v_add_f32 v50, v50, v58")
        A(f"v_cndmask_b32 v48, 1.0, v48, {EVEN}"); A(f"v_cndmask_b32 v50, 1.0, v50, {EVEN}")
        A("v_cvt_f64_f32 v[60:61], v48"); A("v_cvt_f64_f32 v[62:63], v50")
        A(f"buffer_atomic_add_f64 v[60:61], v17, {WS}, s{sT+2} offen sc1")
        A(f"buffer_atomic_add_f64 v[62:63], v17, {WS}, s{sT+2} offen offset:512 sc1")
        A(f"s_add_u32 s{sC10}, s{sC10}, 4"); A(f"s_cmp_lt_u32 s{sC10}, s{sRB}"); A("s_cbranch_scc1 L_lnext")
        A("s_branch L_help_end")
    A("L_code_end:")
    A('.section .rodata,"a"'); A(".p2align 6")
    A(f".amdhsa_kernel {NAME}_kernel")
    A("  .amdhsa_next_free_vgpr 168"); A(f"  .amdhsa_next_free_sgpr {102 if diag else 100}"); A("  .amdhsa_accum_offset 168")
    A("  .amdhsa_group_segment_fixed_size 0"); A("  .amdhsa_kernarg_size 96"); A("  .amdhsa_user_sgpr_count 2")
    A("  .amdhsa_user_sgpr_kernarg_segment_ptr 1"); A("  .amdhsa_system_sgpr_workgroup_id_x 1")
    A("  .amdhsa_float_denorm_mode_32 3")
    A(".end_amdhsa_kernel")
    if nox: L = [("v_mov_b32 v20, v1" if ("v[20:23], v8" in l and "buffer_load" in l) or "buffer_load_dword v24" in l else l) for l in L]
    return "\n".join(L) + "\n"

SETS = {
  "A": dict(start=[(0,0)], e1pub=[(0,1)], qready=[(0,2)], e0pub=[(4,3),(11,4)], stats=[(2,5)], kissued=[(4,6),(11,12)], vissued=[(11,7)], e4pub=[(None,8)],
            woissued=[(0,9)], e4seen=[(0,10)], probe=[(3,11)], atdone=[(None,13)], lndone=[(0,14)]),
  "V": dict(start=[(0,0)], e4pub=[(None,1)], woissued=[(0,2)], e4seen=[(0,3),(1,4),(2,5),(3,6)], e5pub=[(None,7)], atdone=[(None,8)], end=[(None,9)], mfmadone=[(8,10),(9,11),(10,12),(11,13)], stats=[(2,14)]),
  "S": dict(start=[(0,0),(4,1)], karg=[(0,2),(3,3),(4,4),(11,5)], h1issued=[(0,6),(2,7),(3,8)], barrier=[(0,9),(4,10)], k3issued=[(4,11)], lndone=[(0,12)], e1pub=[(0,13)], kissued=[(4,14)]),
}
def build(out, **kw):
    import hazard, os
    ref = "cdna_kernels/" + NAME + ".s.ref"
    hdr = open(ref).read().split("; Override launch")[0] if os.path.exists(ref) else ""
    if kw.get("stamps"): kw["stamps"] = SETS[kw["stamps"]]
    t = gen(**kw)
    for x in hazard.check(t)[:30]: print("HAZARD", x)
    open(out, "w").write(hdr + t)
if __name__ == "__main__":
    import ast
    kw = {}
    for a in sys.argv[2:]:
        k, v = a.split("=", 1)
        try: kw[k] = ast.literal_eval(v)
        except Exception: kw[k] = v
    build(sys.argv[1], **kw)
```

```python
import sys, struct
NAME = "recurrent_scan__sliding_block_cached__glu_gated_swiglu__decode"

def f32(x): return "0x%08x" % struct.unpack("<I", struct.pack("<f", x))[0]

E0, ACC, RDY, E1, E2 = 0x1000, 0xA000, 0xF000, 0x10000, 0x70000
E3 = E2 + 24 * 10240
WS_BYTES = E3 + 240 * 512
TAGK = 0x9E3779B0
L_QCNT, L_OCNT, L_SFLAG, L_XF, L_M, L_LOC, L_KCNT, L_VCNT, L_WCNT, L_PUB, L_TAG, L_ST = 0, 4, 8, 12, 16, 24, 28, 32, 36, 40, 44, 64
L_Q, L_WACC, L_FACC, L_XN, L_OACC = 512, 1024, 2048, 2304, 3584
L_XR = L_OACC + 8 * 768
LDS_BYTES = L_XR + 1280
DPPF = "row_mask:0xf bank_mask:0xf"
LOG2E = 1.4426950408889634
GTRIES, LTRIES = 0x20000, 0x800000

DOC = """
One launch, 256 workgroups of 12 waves, one workgroup per CU; every byte of K, V and the weights is read once.
  workgroup id b: head = b & 31, split = b >> 5 (512 keys); group = b & 7 (32 workgroups, four heads).
  waves 4..11 : 64 keys each.  K rows -> registers, scores (v_dot2c), V rows -> same registers, P.V on the matrix core.
  waves 0..2  : 80 x 64 piece of wq -> partial q, exchanged inside the head; wave 2 also exchanges the softmax max / sum.
  wave 3      : 64 x 64 pieces of w1, w3 and w2 (workgroups < 240).
  waves 0..3  : 64 x 64 piece of wo each (workgroups < 240).
A row-major [8 rows][64 columns] tile is one 16-byte load per lane and one v_mfma_f32_16x16x32_bf16 whose A operand holds
the row weight in slot (lane & 7) only (masks v4..v7).  All intermediate values are rounded to bf16 where the reference does.
Hand-offs between workgroups go through d_ws as 8-byte {value, tag} granules.  The tag is the word at d_ws[0] plus a constant;
the launch leaves its tag there, so granules of an earlier launch never match.  Stores are plain only when the readers are
known to share this L2 (die ids travel in the tags of the q partials); otherwise they are written through (sc1).
The last two sums (wo and w2 partials) are f64 device-scope atomic adds of {value, 1.0} pairs on accumulators cleared in this
launch; the adder that sees all other arrivals finishes that output column.  Every wait is bounded.
"""
def gen(stamps=None, pol="nt", wo_early=2, hold=0, e1sleep=4, e0sleep=8, bar3=5, n1=24, forceslow=False, rotk=9,
        lnwave=8, pf=True, pvint=True, diag=False, tlb=0, rev=False, gmode=0, otouch=0, f64=True, holdmin=0, lred=False, lgate="s", xlds=True, pad=0, al=12, tal=0, earlybar=False, xlate=True, xpol="", pfw=5, probe_gate="q", nox=False, tagl=False, skip="", ackw=True, hoff=0, lay=0, ka=0, hm=1, p1=10, wp=0, w2late=False, westart=False):
    L = []
    WS_BYTES = E3 + (240 * 512 if lred else 0)
    def A(x, c=None): L.append(x.rstrip() if c is None else f"{x:<72}; {c}")
    def C(x): L.append("; " + x)
    sW, sTAG, sHEAD, sSPLIT = 28, 29, 30, 31
    WS, SA, SB, SC = "s[32:35]", "s[36:39]", "s[40:43]", "s[44:47]"
    sRB, sC10, sSPIN = 48, 49, 50
    sT = 51
    sG = 56
    sRBL, sTAGX = 66, 67
    sST = 68
    sTHR, sLOC = 88, 89
    sP = 92
    PUB, EVEN = "s[14:15]", "s[24:25]"
    nst = [0]; stl = []
    def stamp(name):
        if not stamps or name not in stamps: return
        r = sST + 2 * len(stl)
        assert len(stl) < 10
        stl.append(stamps[name])
        A(f"s_memrealtime s[{r}:{r+1}]")
    def dump_stamps():
        if not stamps: return
        A("s_waitcnt lgkmcnt(0)")
        A(f"s_lshl_b32 s{sT}, s2, 7"); A(f"s_add_u32 s{sT}, s{sT}, {64<<20}")
        A(f"s_add_u32 s{sT+1}, s26, s{sT}"); A(f"s_addc_u32 s{sT+2}, s27, 0")
        A("s_mov_b64 exec, 1")
        A("v_mov_b32 v0, 0")
        for k, pairs in enumerate(stl):
            r = sST + 2 * k
            for (wv, slot) in pairs:
                lab2 = f"L_nost{nst[0]}"; nst[0] += 1
                if wv is not None:
                    A(f"s_cmp_lg_u32 s{sW}, {wv}"); A(f"s_cbranch_scc1 {lab2}")
                else:
                    A(f"s_cmp_eq_u32 s{r}, 0"); A(f"s_cbranch_scc1 {lab2}")
                A(f"v_mov_b32 v2, s{r}"); A(f"v_mov_b32 v3, s{r+1}")
                A(f"global_store_dwordx2 v0, v[2:3], s[{sT+1}:{sT+2}] offset:{8*slot}")
                A(f"{lab2}:")
    codes = {}
    def timeout(label):
        if not diag: return
        c = codes.setdefault(label, len(codes))
        A("s_load_dwordx2 s[100:101], s[0:1], 80"); A("s_waitcnt lgkmcnt(0)")
        A(f"v_mov_b32 v166, {4*c}"); A(f"s_lshl_b32 s3, s2, 4"); A(f"s_add_u32 s3, s3, s{sW}"); A("s_add_u32 s3, s3, 0x10000"); A("v_mov_b32 v167, s3")
        A("global_store_dword v166, v167, s[100:101]"); A("s_waitcnt vmcnt(0)")
    def base(n): return int(n[2:n.index(":")])
    def srd_c(name, size):
        b = base(name); A(f"s_mov_b32 s{b+2}, {size}"); A(f"s_mov_b32 s{b+3}, 0x20000")
    def srd_p(name, lo, off=None):
        b = base(name)
        if off is None: A(f"s_mov_b64 s[{b}:{b+1}], s[{lo}:{lo+1}]")
        else: A(f"s_add_u32 s{b}, s{lo}, s{off}"); A(f"s_addc_u32 s{b+1}, s{lo+1}, 0")
    def srd(name, lo, size): srd_p(name, lo); srd_c(name, size)
    def masks():
        C("v4..v7: keep one bf16 slot (lane & 7) of the eight a lane supplies to the matrix core")
        A("v_and_b32 v3, 1, v1"); A("v_lshlrev_b32 v3, 4, v3"); A("v_mov_b32 v7, 0xffff"); A("v_lshlrev_b32 v3, v3, v7")
        A("v_bfe_u32 v7, v1, 1, 2")
        A("v_cmp_eq_u32 vcc, 0, v7"); A(f"v_cmp_eq_u32 s[{sP}:{sP+1}], 1, v7"); A(f"v_cmp_eq_u32 s[{sP+2}:{sP+3}], 2, v7")
        A("v_cndmask_b32 v4, 0, v3, vcc")
        A("v_cmp_eq_u32 vcc, 3, v7")
        A(f"v_cndmask_b32 v5, 0, v3, s[{sP}:{sP+1}]"); A(f"v_cndmask_b32 v6, 0, v3, s[{sP+2}:{sP+3}]")
        A("v_cndmask_b32 v7, 0, v3, vcc")
        A(f"s_mov_b32 s{base(PUB)}, 0x00ff00ff"); A(f"s_mov_b32 s{base(PUB)+1}, s{base(PUB)}")
    def allred(op, x, t, steps):
        dp = {1: "quad_perm:[1,0,3,2]", 2: "quad_perm:[2,3,0,1]", 4: "row_ror:4", 8: "row_ror:8"}
        for s in steps:
            if s in dp:
                A("s_nop 1"); A(f"{op}_dpp v{x}, v{x}, v{x} {dp[s]} {DPPF}")
            else:
                A(f"v_mov_b32 v{t}, v{x}"); A("s_nop 1"); A(f"v_permlane{s}_swap_b32 v{x}, v{t}"); A(f"{op} v{x}, v{x}, v{t}")
    ALL = [1, 2, 8, 4, 16, 32]
    def unpack(lo, hi, src):
        A(f"v_lshlrev_b32 v{lo}, 16, v{src}"); A(f"v_and_b32 v{hi}, 0xffff0000, v{src}")
    def gettag(x=False):
        A(f"s_and_b32 s{sTAG}, s{sTAG}, -16"); A(f"s_add_u32 s{sTAG}, s{sTAG}, {TAGK:#x}", "hand-off tag of this launch")
        if x:
            A(f"s_getreg_b32 s{sTAGX}, hwreg(HW_REG_XCC_ID, 0, 4)")
            if forceslow: A(f"s_lshr_b32 s{sTAGX}, s2, 4")
            A(f"s_or_b32 s{sTAGX}, s{sTAGX}, s{sTAG}", "tag that also names this die")
    def ortree(ts, dst=None):
        ts = list(ts)
        while len(ts) > 1:
            d = ts[0] if dst is None else dst
            if len(ts) >= 3:
                A(f"v_or3_b32 v{d}, v{ts[0]}, v{ts[1]}, v{ts[2]}"); ts = ts[3:] + [d]
            else:
                A(f"v_or_b32 v{d}, v{ts[0]}, v{ts[1]}"); ts = [d]
        return ts[0]
    def poll(label, loads, regs, sleep, tag=sTAG, tries=GTRIES, onfail=None):
        if label[-1] in skip:
            A("s_waitcnt vmcnt(0)"); return
        A(f"s_mov_b32 s{sSPIN}, {tries}")
        A(f"{label}:")
        for l in loads: A(l)
        A("s_waitcnt vmcnt(0)")
        for r in regs: A(f"v_bitop3_b32 v{r+1}, s{tag}, v{r+1}, v{r+3} bitop3:0x7e")
        t = ortree([r + 1 for r in regs])
        A(f"v_cmp_ne_u32 vcc, 0, v{t}")
        A(f"s_cbranch_vccz {label}_ok")
        if sleep: A(f"s_sleep {sleep}")
        A(f"s_sub_u32 s{sSPIN}, s{sSPIN}, 1")
        A(f"s_cbranch_scc0 {label}")
        timeout(label)
        if onfail: onfail()
        A(f"{label}_ok:")
    def gather8(label, soff, sleep, tag, thr="0", tries=GTRIES, onfail=None):
        loads = [f"buffer_load_dwordx4 v[{96+4*i}:{99+4*i}], v19, {WS}, s{soff} offen offset:{1024*i} sc1" for i in range(4)]
        if label[-1] in skip:
            A("s_waitcnt vmcnt(0)"); return
        if ackw and label == "L_p1": A("s_waitcnt vmcnt(0)")
        A(f"s_mov_b32 s{sSPIN}, {tries}")
        for l in loads: A(l)
        A(f"{label}:")
        A("s_waitcnt vmcnt(0)")
        for k in range(4): A(f"v_bitop3_b32 v{112+k}, s{tag}, v{97+4*k}, v{99+4*k} bitop3:0x7e")
        ortree([112, 113, 114, 115], 116)
        A(f"v_cmp_lt_u32 vcc, {thr}, v116")
        A("v_add_f32 v116, v96, v100"); A("v_add_f32 v117, v98, v102"); A("v_add_f32 v118, v104, v108"); A("v_add_f32 v119, v106, v110")
        A(f"s_cbranch_vccz {label}_ok")
        for k in range(4): A(f"v_cmp_lt_u32 s[{sP+2*k}:{sP+2*k+1}], {thr}, v{112+k}")
        if sleep: A(f"s_sleep {sleep}")
        for k, l in enumerate(loads):
            A(f"s_mov_b64 exec, s[{sP+2*k}:{sP+2*k+1}]"); A(f"s_cbranch_execz {label}_s{k}")
            A(l)
            A(f"{label}_s{k}:")
        A("s_mov_b64 exec, -1")
        A(f"s_sub_u32 s{sSPIN}, s{sSPIN}, 1")
        A(f"s_cbranch_scc0 {label}")
        timeout(label)
        if onfail: onfail()
        A("s_waitcnt vmcnt(0)")
        A(f"{label}_ok:")
        A("v_pk_add_f32 v[116:117], v[116:117], v[118:119]")
        A("s_nop 1")
        A("v_add_f32_dpp v118, v116, v116 row_shl:4 row_mask:0xf bank_mask:0x5"); A("v_add_f32_dpp v119, v117, v117 row_shl:4 row_mask:0xf bank_mask:0x5")
        A("v_add_f32_dpp v118, v116, v116 row_shr:4 row_mask:0xf bank_mask:0xa"); A("v_add_f32_dpp v119, v117, v117 row_shr:4 row_mask:0xf bank_mask:0xa")
    def ldspoll(label, flag_off, want, reads, vz, vflag, cmp="ne"):
        A(f"s_mov_b32 s{sSPIN}, {LTRIES}")
        A(f"{label}:")
        A(f"ds_read_b32 v{vflag}, v{vz} offset:{flag_off}")
        for l in reads: A(l)
        A("s_waitcnt lgkmcnt(0)")
        A(f"v_cmp_{cmp}_u32 vcc, {want}, v{vflag}")
        A(f"s_cbranch_vccz {label}_ok")
        A("s_sleep 1")
        A(f"s_sub_u32 s{sSPIN}, s{sSPIN}, 1")
        A(f"s_cbranch_scc0 {label}")
        timeout("lds")
        A(f"{label}_ok:")
    def lds_signal(op, vz, vval, off):
        A("s_mov_b64 exec, 1"); A(f"{op} v{vz}, v{vval} offset:{off}"); A("s_mov_b64 exec, -1")
    def fold(acc, y0, y1, fill):
        A(f"v_permlane32_swap_b32 v{acc}, v{acc+2}")
        A(f"v_permlane32_swap_b32 v{acc+1}, v{acc+3}")
        for l in fill: A(l)
        A(f"v_add_f32_dpp v{y0}, v{acc+2}, v{acc} row_ror:8 {DPPF}")
        A(f"v_add_f32_dpp v{y1}, v{acc+3}, v{acc+1} row_ror:8 {DPPF}")
    nfl = [0]
    def flavoured(lines):
        lab = f"L_fl{nfl[0]}"; nfl[0] += 1
        A(f"s_cmp_eq_u32 s{sLOC}, 1"); A(f"s_cbranch_scc1 {lab}_p")
        for l in lines: A(l + " sc1")
        A(f"s_branch {lab}_e")
        A(f"{lab}_p:")
        for l in lines: A(l)
        A(f"{lab}_e:")
    def silu2(x, t):
        A(f"v_mul_f32 v{t}, {f32(-LOG2E)}, v{x}"); A(f"v_mul_f32 v{t+1}, {f32(-LOG2E)}, v{x+1}")
        A(f"v_exp_f32 v{t}, v{t}"); A(f"v_exp_f32 v{t+1}, v{t+1}")
        A(f"v_add_f32 v{t}, 1.0, v{t}"); A(f"v_add_f32 v{t+1}, 1.0, v{t+1}")
        A(f"v_rcp_f32 v{t}, v{t}"); A(f"v_rcp_f32 v{t+1}, v{t+1}")
        A(f"v_mul_f32 v{x}, v{x}, v{t}"); A(f"v_mul_f32 v{x+1}, v{x+1}, v{t+1}")
    def mfma(acc, a, b, first):
        A(f"v_mfma_f32_16x16x32_bf16 v[{acc}:{acc+3}], v[{a}:{a+3}], v[{b}:{b+3}], " + ("0" if first else f"v[{acc}:{acc+3}]"))
    def unit_mfma(tail, d0=48):
        for G in range(8):
            a = 20 + 4 * (G & 1); k = G >> 1
            for j in range(4):
                A(f"v_and_b32_dpp v{a+j}, v{8 + (G & 1)}, v{4+j} quad_perm:[{k},{k},{k},{k}] {DPPF}")
            if G > 0: mfma(28, 20 + 4 * ((G - 1) & 1), d0 + 4 * (G - 1), G == 1)
        A("s_nop 0")
        mfma(28, 24, d0 + 28, False)
        for l in tail: A(l)
        A(f"s_nop {7 - len(tail)}")
    def xn_dups(n, addr_setup):
        for l in addr_setup: A(l)
        if p1 == 10:
            ldspoll(f"L_gx{n}", L_XF, 1, [f"ds_read_u16 v{8+k}, v3 offset:{16*k}" for k in range(n)], 44, 47)
            for k in range(n): A(f"v_lshl_or_b32 v{8+k}, v{8+k}, 16, v{8+k}")
            return
        rd = [f"ds_read2_b32 v[{20+2*k}:{21+2*k}], v3 offset0:{2*k} offset1:{2*k+1}" for k in range(2)]
        if n == 10: rd.append("ds_read_b32 v24, v3 offset:16")
        ldspoll(f"L_gx{n}", L_XF, 1, rd, 44, 47)
        A(f"s_mov_b32 s{sT}, 0x01000100"); A(f"s_mov_b32 s{sT+1}, 0x03020302")
        for k in range(n): A(f"v_perm_b32 v{8+k}, v{20 + k//2}, v{20 + k//2}, s{sT + (k & 1)}")
    def roles():
        A(f"s_lshr_b32 s{sC10}, s2, 3"); A(f"s_mul_i32 s{sRBL}, s{sC10}, 26"); A(f"s_lshr_b32 s{sRBL}, s{sRBL}, 8", "row block inside the group = (id >> 3) / 10")
        A(f"s_mul_i32 s{sT}, s{sRBL}, 10"); A(f"s_sub_u32 s{sC10}, s{sC10}, s{sT}", "64-column block = (id >> 3) % 10")
        A(f"s_and_b32 s{sT}, s2, 7"); A(f"s_mul_i32 s{sT}, s{sT}, 3"); A(f"s_add_u32 s{sRB}, s{sT}, s{sRBL}", "FFN block 0..23")
    def helper_addrs():
        C("v18 = publish offset, v19 = gather offset, v0 = first row/column of this lane in publish order")
        A("v_lshrrev_b32 v18, 4, v1"); A("v_lshlrev_b32 v18, 7, v18"); A("v_lshl_add_u32 v18, v46, 4, v18")
        A("v_bfe_u32 v0, v1, 3, 1"); A("v_lshlrev_b32 v0, 5, v0"); A("v_bfe_u32 v3, v1, 4, 1"); A("v_lshl_add_u32 v0, v3, 2, v0")
        A("v_lshrrev_b32 v3, 5, v1"); A("v_lshl_add_u32 v0, v3, 1, v0")
        A("v_lshrrev_b32 v19, 2, v46"); A("v_lshlrev_b32 v19, 9, v19"); A("v_lshl_add_u32 v19, v45, 6, v19")
        A("v_and_b32 v3, 3, v1"); A("v_lshl_add_u32 v19, v3, 4, v19")
        A("v_mov_b32 v44, 0")
        srd(WS, 26, WS_BYTES)

    A(f"; @launch grid=(256,1,1) block=(768,1,1) lds={LDS_BYTES}")
    A('.amdgcn_target "amdgcn-amd-amdhsa--gfx950"')
    for l in DOC.strip("\n").split("\n"): C(l)
    A(".text")
    if al != 8: A(f".p2align {al}")
    if pad: A(f".fill {pad // 4}, 4, 0xbf810000")
    A(f".globl {NAME}_kernel"); A(".p2align 8"); A(f".type {NAME}_kernel,@function")
    A(f"{NAME}_kernel:")
    if ka == 0:
        A("s_load_dwordx16 s[4:19], s[0:1], 0")
        A("s_load_dwordx8 s[20:27], s[0:1], 64")
    elif ka == 1:
        A("s_load_dwordx16 s[4:19], s[0:1], 0")
    else:
        A("s_load_dwordx8 s[4:11], s[0:1], 0", "x, K, V, wq")
    A("s_cmpk_ge_u32 s2, 256"); A("s_cbranch_scc1 L_end")
    if stamps:
        for k in range(10): A(f"s_mov_b64 s[{sST+2*k}:{sST+2*k+1}], 0")
    stamp("start")
    if hold: A("s_memrealtime s[90:91]")
    A("v_lshrrev_b32 v2, 6, v0")
    A("v_and_b32 v1, 63, v0", "lane")
    A(f"v_readfirstlane_b32 s{sW}, v2", "wave")
    A("v_lshrrev_b32 v45, 3, v1", "row slot")
    A("v_and_b32 v46, 7, v1", "16-byte chunk")
    A(f"s_and_b32 s{sHEAD}, s2, 31"); A(f"s_lshr_b32 s{sSPLIT}, s2, 5")
    A(f"s_cmp_gt_u32 s{sW}, 2"); A("s_cbranch_scc1 L_w3up")
    C("---- waves 0..2: 80 rows x 64 columns of wq")
    A("s_setprio 3")
    A(f"s_mul_i32 s{sT}, s{sSPLIT}, {80*12288}"); A(f"s_mul_i32 s{sG}, s{sHEAD}, 3"); A(f"s_add_u32 s{sG}, s{sG}, s{sW}")
    A(f"s_lshl_b32 s{sG}, s{sG}, 7"); A(f"s_add_u32 s{sG}, s{sG}, s{sT}")
    A(f"v_mul_u32_u24 v8, {[10*12288, 128, 12288][p1 & 3]}, v45"); A("v_lshl_add_u32 v8, v46, 4, v8")
    if p1 & 3 == 1: A(f"s_mul_i32 s{sG}, s2, 3"); A(f"s_add_u32 s{sG}, s{sG}, s{sW}"); A(f"s_lshl_b32 s{sG}, s{sG}, 10")
    srd_c(SB, 640 * 12288)
    A("s_waitcnt lgkmcnt(0)")
    if earlybar: A("s_barrier")
    def rest():
        if ka == 1: A("s_load_dwordx8 s[20:27], s[0:1], 64")
        if ka == 2: A("s_load_dwordx16 s[12:27], s[0:1], 32")
    rest()
    st0 = list(stl)
    stamp("karg")
    srd_p(SB, 10)
    for G in range(10):
        A(f"buffer_load_dwordx4 v[{48+4*G}:{51+4*G}], v8, {SB}, s{sG} offen {pol}")
        if G < 9: A(f"s_addk_i32 s{sG}, 12288" if p1 & 3 == 0 else f"s_add_u32 s{sG}, s{sG}, {[0, 786432, 8*12288][p1 & 3]}")
    stamp("h1issued")
    if not earlybar: A("s_barrier")
    if ka: A("s_waitcnt lgkmcnt(0)")
    A(f"s_load_dword s{sTAG}, s[26:27], 0")
    stamp("barrier")
    A("s_branch L_h012b")
    st1 = list(stl); stl[:] = st0
    A("L_w3up:")
    A(f"s_cmp_gt_u32 s{sW}, 3"); A("s_cbranch_scc1 L_main")
    C("---- wave 3: 64 rows x 64 columns of w1 and w3")
    rest()
    A("s_setprio 3")
    roles()
    A(f"s_mul_i32 s{sT}, s{sC10}, {64*3072}"); A(f"s_lshl_b32 s{sG}, s{sRB}, 7"); A(f"s_add_u32 s{sG}, s{sG}, s{sT}")
    A(f"v_mul_u32_u24 v8, {[8*3072, 128, 3072][p1 >> 2]}, v45"); A("v_lshl_add_u32 v8, v46, 4, v8")
    if p1 >> 2 == 1: A(f"s_lshl_b32 s{sG}, s2, 10")
    srd_c(SB, 640 * 3072); srd_c(SC, 640 * 3072)
    if lnwave == 3:
        srd_c(SA, 1280); A("v_lshlrev_b32 v9, 4, v1"); A("v_lshlrev_b32 v3, 2, v1")
    A("s_waitcnt lgkmcnt(0)")
    stamp("karg")
    if lnwave == 3:
        srd_p(SA, 4)
        A(f"buffer_load_dwordx4 v[20:23], v9, {SA}, 0 offen"); A(f"buffer_load_dword v24, v3, {SA}, 0 offen offset:1024")
    A(f"s_load_dword s{sTAG}, s[26:27], 0")
    A("s_cmpk_ge_u32 s2, 240"); A("s_cbranch_scc1 L_h3skip")
    if earlybar: A("s_barrier")
    srd_p(SB, 16); srd_p(SC, 18)
    for G in range(8):
        A(f"buffer_load_dwordx4 v[{48+8*G}:{51+8*G}], v8, {SB}, s{sG} offen {pol}")
        A(f"buffer_load_dwordx4 v[{52+8*G}:{55+8*G}], v8, {SC}, s{sG} offen {pol}")
        if G < 7: A(f"s_addk_i32 s{sG}, 3072" if p1 >> 2 == 0 else (f"s_addk_i32 s{sG}, {8*3072}" if p1 >> 2 == 2 else f"s_add_u32 s{sG}, s{sG}, 245760"))
        if G == bar3 - 1 and not earlybar: A("s_barrier")
    stamp("h1issued")
    if lnwave == 3:
        A("s_waitcnt vmcnt(16)")
        A("s_branch L_ln")
        A("L_h3skip:")
        A("s_barrier")
        A("s_waitcnt vmcnt(0)")
        A("s_branch L_ln")
    else:
        A("s_branch L_h3b")
        A("L_h3skip:")
        A("s_barrier")
        A("s_branch L_h3i")
    base_st = list(st1); stl[:] = st0

    D = 48
    A("L_main:")
    C("---- waves 4..11: 64 keys each, eight groups of eight rows")
    A("s_setprio 2")
    A("v_mov_b32 v36, 0")
    if pf:
        A(f"s_cmp_lg_u32 s{sW}, {pfw}"); A("s_cbranch_scc1 L_nopf")
        C("pull this kernel's own code into L2: four lines per workgroup")
        A(f"s_getpc_b64 s[{sT+1}:{sT+2}]")
        A("L_pfbase:")
        A(f"s_lshr_b32 s{sT}, s2, 3"); A(f"s_lshl_b32 s{sT}, s{sT}, 7")
        A("v_and_b32 v2, 3, v1"); A(f"v_lshl_add_u32 v2, v2, 12, s{sT}")
        A("v_min_u32 v2, L_code_end-L_pfbase-4, v2")
        A(f"global_load_dword v47, v2, s[{sT+1}:{sT+2}]")
        A("L_nopf:")
    A("v_lshlrev_b32 v3, 2, v1")
    A("ds_write2st64_b32 v3, v36, v36 offset1:1", "clear the flag area")
    C("group index = 256*((wave>>3) ^ (head&1)) + 32*g + ((8*(wave&3) + split + 9*g) & 31): one contiguous window per head")
    A(f"s_and_b32 s{sT}, s{sW}, 3"); A(f"s_lshl_b32 s{sT}, s{sT}, 3"); A(f"s_add_u32 s{sT}, s{sT}, s{sSPLIT}")
    A(f"s_lshr_b32 s{sT+1}, s{sW}, 3"); A(f"s_lshl_b32 s{sT+1}, s{sT+1}, 8")
    if hm == 1:
        A(f"s_lshl_b32 s{sT+2}, s{sHEAD}, 8"); A(f"s_xor_b32 s{sT+1}, s{sT+1}, s{sT+2}"); A(f"s_and_b32 s{sT+1}, s{sT+1}, 256")
    elif hm:
        A(f"s_and_b32 s{sT+2}, s{sHEAD}, {hm}"); A(f"s_bcnt1_i32_b32 s{sT+2}, s{sT+2}"); A(f"s_lshl_b32 s{sT+2}, s{sT+2}, 8")
        A(f"s_xor_b32 s{sT+1}, s{sT+1}, s{sT+2}"); A(f"s_and_b32 s{sT+1}, s{sT+1}, 256")
    if rev: A(f"s_sub_u32 s{sT+1}, 480, s{sT+1}")
    if hoff:
        A(f"s_mul_i32 s{sT+2}, s{sHEAD}, {hoff}"); A(f"s_add_u32 s{sT+1}, s{sT+1}, s{sT+2}"); A(f"s_and_b32 s{sT+1}, s{sT+1}, 511")
    if lay: A(f"s_lshl_b32 s{sT+1}, s{sT+1}, 3")
    A(f"s_add_u32 s{sG}, s{sT}, s{sT+1}"); A(f"s_mulk_i32 s{sG}, {384 if lay else 3072}")
    A(f"s_mul_i32 s{sT+3}, s{sHEAD}, 12582912"); A(f"s_add_u32 s{sT+3}, s{sT+3}, 11010048")
    A(f"v_mul_u32_u24 v2, {32*384 if lay else 384}, v45"); A("v_lshl_add_u32 v2, v46, 4, v2")
    srd_c(SA, 4096 * 384)
    A("s_waitcnt lgkmcnt(0)")
    if ka: A("s_load_dwordx2 s[26:27], s[0:1], 88")
    stamp("karg")
    if lnwave != 3:
        A(f"s_cmp_lg_u32 s{sW}, {lnwave}"); A("s_cbranch_scc1 L_nox")
        srd(SB, 4, 1280)
        A("v_lshlrev_b32 v8, 4, v1")
        if xlate or earlybar: A("s_barrier")
        if xlate or earlybar: A("s_setprio 3")
        A(f"buffer_load_dwordx4 v[20:23], v8, {SB}, 0 offen {xpol}"); A(f"buffer_load_dword v24, v3, {SB}, 0 offen offset:1024 {xpol}")
        if xlate or earlybar: A("s_setprio 2")
        else: A("s_barrier")
        A("s_branch L_ln")
        A("L_nox:")
        A("s_barrier")
        A("L_lnback:")
    else:
        A("s_barrier")
    srd_p(SA, 6, sT + 3)
    if not tagl and not ka: A(f"s_load_dword s{sTAG}, s[26:27], 0")
    if tlb:
        A(f"s_cmp_lg_u32 s{sW}, 9"); A("s_cbranch_scc1 L_notlb")
        A(f"s_add_u32 s{sT+4}, s{sT+3}, s{sG}")
        A(f"s_load_dword s3, s[8:9], s{sT+4}")
        if tlb > 1:
            A(f"s_mul_i32 s{sT+4}, s2, {24*1280}"); A(f"s_load_dword s3, s[12:13], s{sT+4}")
            A(f"s_mul_i32 s{sT+4}, s2, {6*1280}"); A(f"s_load_dword s3, s[20:21], s{sT+4}")
        A("L_notlb:")
    stamp("barrier")
    for g in range(8):
        for j in range(3):
            r = D + 12 * g + 4 * j
            A(f"buffer_load_dwordx4 v[{r}:{r+3}], v2, {SA}, s{sG+g} offen offset:{128*j} {pol}")
            if g < 7:
                if j == 0: A(f"s_add_u32 s{sT}, s{sT}, {rotk}"); A(f"s_{'sub' if rev else 'add'}_u32 s{sT+1}, s{sT+1}, {256 if lay else 32}")
                if j == 0 and hoff: A(f"s_and_b32 s{sT+1}, s{sT+1}, {4095 if lay else 511}")
                if j == 1: A(f"s_and_b32 s{sT+2}, s{sT}, 31"); A(f"s_add_u32 s{sG+g+1}, s{sT+2}, s{sT+1}")
                if j == 2: A(f"s_mulk_i32 s{sG+g+1}, {384 if lay else 3072}")
            else:
                if j == 0: srd_p(SB, 8, sT + 3)
                if j == 1: srd_c(SB, 4096 * 384)
        if g == 0: stamp("k3issued")
    A("s_setprio 3")
    stamp("kissued")
    if ka:
        A("s_waitcnt lgkmcnt(0)")
        if not tagl: A(f"s_load_dword s{sTAG}, s[26:27], 0")
    srd(WS, 26, WS_BYTES)
    masks()
    A("v_lshlrev_b32 v37, 4, v46")
    for g in range(8): A(f"v_mov_b32 v{8+g}, 0")
    ldspoll("L_mq", L_QCNT, 3, [f"ds_read_b128 v[{16+4*j}:{19+4*j}], v37 offset:{L_Q+128*j}" for j in range(3)], 36, 38)
    if not tagl: gettag()
    stamp("qseen")
    C("scores")
    for g in range(0, 8, 2):
        A(f"s_waitcnt vmcnt({18 - 3*g})")
        for k in range(12):
            for gg in (g, g + 1):
                A(f"v_dot2c_f32_bf16 v{8+gg}, v{D+12*gg+k}, v{16+k}")
    stamp("kdone")
    for dp in ("quad_perm:[1,0,3,2]", "quad_perm:[2,3,0,1]", "row_half_mirror"):
        for g in range(8): A(f"v_add_f32_dpp v{8+g}, v{8+g}, v{8+g} {dp} {DPPF}")
    for k in range(4): A(f"v_cvt_pk_bf16_f32 v{28+k}, v{8+2*k}, v{9+2*k}")
    for k in range(4): unpack(8 + 2 * k, 9 + 2 * k, 28 + k)
    for g in range(8): A(f"v_mul_f32 v{8+g}, {f32(192 ** -0.5)}, v{8+g}")
    for k in range(4): A(f"v_cvt_pk_bf16_f32 v{28+k}, v{8+2*k}, v{9+2*k}")
    for k in range(4): unpack(8 + 2 * k, 9 + 2 * k, 28 + k)
    C("maximum and sum of exponentials of this wave's 64 keys")
    A("v_max3_f32 v40, v8, v9, v10"); A("v_max3_f32 v41, v11, v12, v13"); A("v_max3_f32 v40, v40, v14, v15"); A("v_max_f32 v40, v40, v41")
    allred("v_max_f32", 40, 41, [8, 16, 32])
    for g in range(8): A(f"v_sub_f32 v{28+g}, v{8+g}, v40")
    for g in range(8): A(f"v_mul_f32 v{28+g}, {f32(LOG2E)}, v{28+g}")
    for g in range(8): A(f"v_exp_f32 v{28+g}, v{28+g}")
    for k in range(4): A(f"v_add_f32 v{28+k}, v{28+k}, v{32+k}")
    A("v_add_f32 v28, v28, v29"); A("v_add_f32 v30, v30, v31"); A("v_add_f32 v41, v28, v30")
    allred("v_add_f32", 41, 42, [8, 16, 32])
    A(f"s_lshl_b32 s{sT}, s{sW}, 3"); A(f"v_mov_b32 v3, s{sT}"); A("v_mov_b32 v38, 1")
    A("s_mov_b64 exec, 1")
    A(f"ds_write_b64 v3, v[40:41] offset:{L_ST - 32}")
    A(f"ds_add_u32 v36, v38 offset:{L_KCNT}")
    A("s_mov_b64 exec, -1")
    stamp("e0pub")
    C("V rows of the same keys into the same registers")
    A("s_setprio 1")
    for g in range(8):
        for j in range(3):
            r = D + 12 * g + 4 * j
            A(f"buffer_load_dwordx4 v[{r}:{r+3}], v2, {SB}, s{sG} offen {pol}")
            if j < 2: A(f"s_addk_i32 s{sG}, 128")
            elif g < 7: A(f"s_mov_b32 s{sG}, s{sG+g+1}")
    lds_signal("ds_add_u32", 36, 38, L_VCNT)
    A("s_setprio 3")
    stamp("vissued")
    C("v39 = partial write offset, v37 / v0 = partial read offsets, v3 = publish offset")
    A("v_bfe_u32 v39, v1, 4, 1"); A("v_lshlrev_b32 v39, 4, v39"); A("v_lshl_add_u32 v39, v46, 5, v39")
    A("v_lshrrev_b32 v3, 5, v1"); A("v_lshl_add_u32 v39, v3, 3, v39")
    A(f"s_mul_i32 s{sT}, s{sW}, 768"); A(f"v_add_u32 v39, s{sT}, v39")
    A("v_mul_u32_u24 v0, 3072, v3"); A("v_and_b32 v37, 31, v1"); A("v_lshl_add_u32 v0, v37, 3, v0")
    A("v_lshlrev_b32 v3, 12, v3"); A("v_lshl_add_u32 v3, v37, 4, v3")
    A("v_lshlrev_b32 v37, 3, v1")
    A(f"s_mul_i32 s{sT}, s{sHEAD}, {3*4096}"); A(f"s_lshl_b32 s{sT+1}, s{sSPLIT}, 9"); A(f"s_add_u32 s{sT}, s{sT}, s{sT+1}")
    A(f"s_add_u32 s{sT}, s{sT}, {E1}"); A(f"s_add_u32 s{sT+1}, s{sT}, 8192")
    C("softmax weights with the maximum and the sum of the whole head")
    ldspoll("L_ms", L_SFLAG, 1, [f"ds_read_b96 v[40:42], v36 offset:{L_M}"] + ([f"ds_read_b32 v43, v36 offset:{L_TAG}"] if tagl else []), 36, 38)
    stamp("sseen")
    A(f"v_readfirstlane_b32 s{sLOC}, v42")
    for g in range(8): A(f"v_sub_f32 v{8+g}, v{8+g}, v40")
    for g in range(8): A(f"v_mul_f32 v{8+g}, {f32(LOG2E)}, v{8+g}")
    for g in range(8): A(f"v_exp_f32 v{8+g}, v{8+g}")
    for g in range(8): A(f"v_mul_f32 v{8+g}, v{8+g}, v41")
    for g in range(8): A(f"v_cvt_pk_bf16_f32 v{8+g}, v{8+g}, v{8+g}")
    if tagl:
        for r in (41, 45, 47): A(f"v_mov_b32 v{r}, v43")
    else:
        A(f"s_add_u32 s{sTAGX}, s{sTAG}, 16", "second use of the q lines: another tag")
        for r in (41, 43, 45, 47): A(f"v_mov_b32 v{r}, s{sTAGX}")
    def pv_out(j):
        a = 16 + 4 * j
        fold(a, a, a + 1, ["s_nop 0"])
        A(f"s_mov_b64 exec, {PUB}")
        A(f"ds_write_b64 v39, v[{a}:{a+1}] offset:{L_OACC - 4*768 + 256*j}")
        if j < 2: A("s_mov_b64 exec, -1")
    for g in range(8):
        a = 28 + 4 * (g & 1)
        for j in range(4): A(f"v_and_b32 v{a+j}, v{8+g}, v{4+j}")
        for j in range(3):
            A(f"s_waitcnt vmcnt({3 * (7 - g) + (2 - j)})")
            if j == 0: A("s_nop 0")
            mfma(16 + 4 * j, a, D + 12 * g + 4 * j, g == 0)
            if pvint and g == 7 and j == 1:
                A("s_nop 5"); pv_out(0)
    stamp("mfmadone")
    if pvint:
        pv_out(1); pv_out(2)
    else:
        A("s_nop 3")
        for j in range(3):
            a = 16 + 4 * j
            A(f"v_permlane32_swap_b32 v{a}, v{a+2}"); A(f"v_permlane32_swap_b32 v{a+1}, v{a+3}")
        for j in range(3):
            a = 16 + 4 * j
            A(f"v_add_f32_dpp v{a}, v{a+2}, v{a} row_ror:8 {DPPF}"); A(f"v_add_f32_dpp v{a+1}, v{a+3}, v{a+1} row_ror:8 {DPPF}")
        A(f"s_mov_b64 exec, {PUB}")
        for j in range(3):
            A(f"ds_write_b64 v39, v[{16+4*j}:{17+4*j}] offset:{L_OACC - 4*768 + 256*j}")
    A("s_mov_b64 exec, 1")
    A(f"ds_add_rtn_u32 v38, v36, v38 offset:{L_OCNT}")
    A("s_mov_b64 exec, -1")
    C("the wave that arrives last adds the eight partials and publishes them")
    for w in range(8): A(f"ds_read_b64 v[{48+2*w}:{49+2*w}], v37 offset:{L_OACC + 768*w}")
    for w in range(4): A(f"ds_read_b64 v[{64+2*w}:{65+2*w}], v0 offset:{L_OACC + 768*w + 512}")
    A("s_waitcnt lgkmcnt(4)" if not stamps else "s_waitcnt lgkmcnt(0)")
    A(f"v_readfirstlane_b32 s{sT+2}, v38")
    for (x, y) in ((48, 50), (52, 54), (56, 58), (60, 62), (48, 52), (56, 60)):
        A(f"v_pk_add_f32 v[{x}:{x+1}], v[{x}:{x+1}], v[{y}:{y+1}]")
    A(f"s_cmp_lg_u32 s{sT+2}, 7"); A("s_cbranch_scc1 L_main_end")
    A("v_add_f32 v40, v48, v56"); A("v_add_f32 v42, v49, v57")
    def third():
        A("s_waitcnt lgkmcnt(0)")
        A("v_pk_add_f32 v[64:65], v[64:65], v[66:67]"); A("v_pk_add_f32 v[68:69], v[68:69], v[70:71]")
        A("v_pk_add_f32 v[64:65], v[64:65], v[68:69]")
        A("s_nop 1")
        A("v_permlane32_swap_b32 v64, v66"); A("v_permlane32_swap_b32 v65, v67")
        A("v_add_f32 v44, v64, v66"); A("v_add_f32 v46, v65, v67")
        A("s_mov_b32 exec_hi, 0")
    A(f"s_cmp_lg_u32 s{sLOC}, 1"); A("s_cbranch_scc1 L_e4far")
    A(f"buffer_store_dwordx4 v[40:43], v3, {WS}, s{sT} offen")
    third()
    A(f"buffer_store_dwordx4 v[44:47], v3, {WS}, s{sT+1} offen")
    A("L_e4done:")
    A("s_mov_b64 exec, 1")
    A(f"ds_write_b32 v36, v38 offset:{L_PUB}")
    stamp("e4pub")
    A("L_main_end:")
    dump_stamps()
    A("s_endpgm")
    A("L_e4far:")
    A(f"buffer_store_dwordx4 v[40:43], v3, {WS}, s{sT} offen sc1")
    third()
    A(f"buffer_store_dwordx4 v[44:47], v3, {WS}, s{sT+1} offen sc1")
    A("s_branch L_e4done")

    A("L_ln:")
    C("---- layer norm of x, rounded step by step to bf16, into LDS")
    if lnwave != 3: A("s_waitcnt vmcnt(0)")
    X1, X2 = (112, 124) if lnwave == 3 else (48, 60)
    if xlds: A(f"ds_write_b128 v{9 if lnwave == 3 else 8}, v[20:23] offset:{L_XR}"); A(f"ds_write_b32 v3, v24 offset:{L_XR + 1024}")
    for k in range(5): unpack(X1 + 2 * k, X1 + 1 + 2 * k, 20 + k)
    for k in range(4): A(f"v_pk_add_f32 v[40:41], v[{40 if k else X1}:{41 if k else X1+1}], v[{X1+2+2*k}:{X1+3+2*k}]")
    A("v_add_f32 v40, v40, v41")
    allred("v_add_f32", 40, 41, ALL)
    A(f"v_mul_f32 v40, {f32(1/640)}, v40")
    for k in range(10): A(f"v_sub_f32 v{X2+k}, v{X1+k}, v40")
    A(f"v_mul_f32 v42, v{X2}, v{X2}"); A(f"v_mul_f32 v43, v{X2+1}, v{X2+1}")
    for k in range(2, 10): A(f"v_fmac_f32 v{42 + k % 2}, v{X2+k}, v{X2+k}")
    A("v_add_f32 v42, v42, v43")
    allred("v_add_f32", 42, 41, ALL)
    A(f"v_mul_f32 v42, {f32(1/640)}, v42")
    A("v_cvt_pk_bf16_f32 v41, v40, v42")
    unpack(40, 42, 41)
    A(f"v_add_f32 v42, {f32(1e-5)}, v42")
    A("v_cvt_pk_bf16_f32 v42, v42, v42"); A("v_lshlrev_b32 v42, 16, v42")
    A("v_sqrt_f32 v42, v42")
    for k in range(10): A(f"v_sub_f32 v{X1+k}, v{X1+k}, v40")
    A("v_cvt_pk_bf16_f32 v42, v42, v42"); A("v_lshlrev_b32 v42, 16, v42")
    A("v_rcp_f32 v42, v42")
    for k in range(5): A(f"v_cvt_pk_bf16_f32 v{20+k}, v{X1+2*k}, v{X1+1+2*k}")
    for k in range(5): unpack(X1 + 2 * k, X1 + 1 + 2 * k, 20 + k)
    for k in range(10): A(f"v_mul_f32 v{X1+k}, v{X1+k}, v42")
    for k in range(5): A(f"v_cvt_pk_bf16_f32 v{20+k}, v{X1+2*k}, v{X1+1+2*k}")
    A("v_mov_b32 v38, 1")
    if lnwave == 3: A("v_mov_b32 v36, 0")
    A(f"ds_write_b128 v{9 if lnwave == 3 else 8}, v[20:23] offset:{L_XN}"); A(f"ds_write_b32 v3, v24 offset:{L_XN + 1024}")
    lds_signal("ds_write_b32", 36, 38, L_XF)
    if lnwave == 3:
        A("s_cmpk_ge_u32 s2, 240"); A("s_cbranch_scc1 L_h3i")
        A("s_branch L_h3b")
    else:
        A("s_branch L_lnback")

    stl[:] = base_st
    A("L_h012b:")
    C("---- waves 0..2: partial q, exchange inside the head, q into LDS")
    roles()
    masks()
    helper_addrs()
    xn_dups(10, [f"s_mul_i32 s{sT}, s{sSPLIT}, 160", f"s_add_u32 s{sT}, s{sT}, {L_XN}", f"v_mul_u32_u24 v3, {2 if p1 == 10 else 20}, v45", f"v_add_u32 v3, s{sT}, v3"])
    gettag(True)
    stamp("lndone")
    for G in range(10):
        a = 20 + 4 * (G & 1)
        for j in range(4): A(f"v_and_b32 v{a+j}, v{8+G}, v{4+j}")
        A(f"s_waitcnt vmcnt({9-G})"); A("s_nop 0")
        mfma(28, a, 48 + 4 * G, G == 0)
    A(f"s_mul_i32 s{sT}, s{sHEAD}, 3"); A(f"s_add_u32 s{sT}, s{sT}, s{sW}"); A(f"s_lshl_b32 s{sT}, s{sT}, 12"); A(f"s_add_u32 s{sT}, s{sT}, {E1}")
    A(f"s_lshl_b32 s{sT+1}, s{sSPLIT}, 9"); A(f"s_add_u32 s{sT+1}, s{sT+1}, s{sT}")
    A(f"s_mov_b32 s{sTHR}, 0")
    A(f"v_mov_b32 v33, s{sTAGX}")
    fold(28, 32, 34, [f"v_mov_b32 v35, s{sTAGX}"])
    A(f"s_mov_b64 exec, {PUB}")
    A(f"buffer_store_dwordx4 v[32:35], v18, {WS}, s{sT+1} offen")
    A("s_mov_b64 exec, -1")
    stamp("e1pub")
    def e1slow():
        C("some producer of this head is (or may be) on another die: write through and accept any die id")
        A(f"s_cmp_lg_u32 s{sTHR}, 0"); A("s_cbranch_scc1 L_p1_giveup")
        A(f"s_mov_b32 s{sTHR}, 15"); A(f"s_mov_b32 s{sSPIN}, {GTRIES}")
        A(f"s_mov_b64 exec, {PUB}")
        A(f"buffer_store_dwordx4 v[32:35], v18, {WS}, s{sT+1} offen sc1")
        A("s_mov_b64 exec, -1")
        A("s_branch L_p1")
        A("L_p1_giveup:")
    gather8("L_p1", sT, e1sleep, sTAGX, thr=f"s{sTHR}", tries=n1, onfail=e1slow)
    A("v_cvt_pk_bf16_f32 v96, v118, v119")
    A("v_and_b32 v3, 3, v1"); A("v_lshlrev_b32 v3, 4, v3"); A("v_lshl_add_u32 v3, v0, 1, v3")
    A(f"s_lshl_b32 s{sT}, s{sW}, 7"); A(f"v_add_u32 v3, s{sT}, v3")
    A(f"ds_write_b32 v3, v96 offset:{L_Q}")
    A("v_mov_b32 v38, 1")
    lds_signal("ds_add_u32", 44, 38, L_QCNT)
    stamp("qready")
    A(f"s_cmp_lg_u32 s{sW}, 2"); A("s_cbranch_scc1 L_wo")
    C("---- wave 2: softmax maximum and sum of the head")
    A("v_lshlrev_b32 v3, 4, v1"); A(f"s_lshl_b32 s{sT}, s{sHEAD}, 10"); A(f"s_add_u32 s{sT}, s{sT}, {E0}")
    A("v_lshlrev_b32 v39, 3, v46")
    A(f"v_mov_b32 v41, s{sTAG}"); A(f"v_mov_b32 v43, s{sTAG}")
    A(f"s_lshl_b32 s{sT+1}, s{sSPLIT}, 7"); A(f"s_add_u32 s{sT+1}, s{sT+1}, s{sT}")
    ldspoll("L_gl", L_LOC, 0, [], 44, 37, cmp="eq")
    A(f"v_readfirstlane_b32 s{sLOC}, v37")
    ldspoll("L_gk", L_KCNT, 8, [f"ds_read_b32 v40, v39 offset:{L_ST}", f"ds_read_b32 v42, v39 offset:{L_ST+4}"], 44, 37)
    A("s_mov_b64 exec, 0xff")
    flavoured([f"buffer_store_dwordx4 v[40:43], v3, {WS}, s{sT+1} offen"])
    A("s_mov_b64 exec, -1")
    poll("L_p0", [f"buffer_load_dwordx4 v[96:99], v3, {WS}, s{sT} offen sc1"], [96], e0sleep)
    A("v_mov_b32 v40, v96")
    allred("v_max_f32", 40, 41, ALL)
    A("v_sub_f32 v96, v96, v40"); A(f"v_mul_f32 v96, {f32(LOG2E)}, v96"); A("v_exp_f32 v96, v96"); A("s_nop 0")
    A("v_mul_f32 v42, v96, v98")
    allred("v_add_f32", 42, 41, ALL)
    A("v_rcp_f32 v41, v42")
    A("s_mov_b64 exec, 1")
    A(f"ds_write_b64 v44, v[40:41] offset:{L_M}")
    if tagl:
        A("v_add_u32 v43, 16, v43", "second use of the q lines: another tag"); A(f"ds_write_b32 v44, v43 offset:{L_TAG}")
    A(f"ds_write_b32 v44, v38 offset:{L_SFLAG}")
    A("s_mov_b64 exec, -1")
    stamp("stats")
    A("s_branch L_wo")
    A("L_h3i:")
    C("---- wave 3 of workgroups 240..249: clear the accumulators of one column block, then say so")
    helper_addrs()
    A("s_cmpk_ge_u32 s2, 250"); A("s_cbranch_scc1 L_h3c")
    A(f"s_sub_u32 s{sT}, s2, 240"); A(f"s_lshl_b32 s{sT+1}, s{sT}, 7"); A(f"s_add_u32 s{sT+1}, s{sT+1}, {RDY}")
    A(f"s_lshl_b32 s{sT}, s{sT}, {11 if f64 else 10}"); A(f"s_add_u32 s{sT}, s{sT}, {ACC}")
    for k in range(4): A(f"v_mov_b32 v{20+k}, 0")
    A("v_lshlrev_b32 v3, 4, v1")
    A(f"buffer_store_dwordx4 v[20:23], v3, {WS}, s{sT} offen sc1")
    if f64: A(f"buffer_store_dwordx4 v[20:23], v3, {WS}, s{sT} offen offset:1024 sc1")
    A("s_waitcnt vmcnt(0) lgkmcnt(0)")
    A(f"s_and_b32 s{sT}, s{sTAG}, -16"); A(f"s_add_u32 s{sT}, s{sT}, {TAGK:#x}")
    for k in range(4): A(f"v_mov_b32 v{24+k}, s{sT}")
    A("s_mov_b64 exec, 0xff")
    A(f"buffer_store_dwordx4 v[24:27], v3, {WS}, s{sT+1} offen sc1")
    A("s_mov_b64 exec, -1")
    A("s_branch L_h3c")
    A("L_h3b:")
    C("---- wave 3: partial gate / up")
    masks()
    helper_addrs()
    xn_dups(8, [f"s_lshl_b32 s{sT}, s{sC10}, 7", f"s_add_u32 s{sT}, s{sT}, {L_XN}", f"v_lshl_add_u32 v3, v45, {1 if p1 == 10 else 4}, s{sT}"])
    for G in range(8):
        a = 20 + 4 * (G & 1)
        for j in range(4): A(f"v_and_b32 v{a+j}, v{8+G}, v{4+j}")
        A(f"s_waitcnt vmcnt({14-2*G})"); A("s_nop 0")
        for m in range(2): mfma(28 + 4 * m, a, 48 + 8 * G + 4 * m, G == 0)
    A("L_h3c:")
    if holdmin:
        A("s_waitcnt lgkmcnt(0)")
        A("s_not_b32 s3, s90" if holdmin == 1 else "s_mov_b32 s3, s90"); A("v_mov_b32 v2, s3"); A("v_mov_b32 v3, 0")
        A("s_mov_b64 exec, 1"); A("global_atomic_umax v3, v2, s[24:25] sc1"); A("s_mov_b64 exec, -1")
    C("do all 32 workgroups with this id & 7 sit on this die?  Their q partials carry their die ids")
    A("v_and_b32 v3, 3, v1"); A(f"v_mul_u32_u24 v3, {8*3*4096}, v3"); A("v_lshrrev_b32 v2, 2, v1"); A("v_lshl_add_u32 v3, v2, 9, v3")
    A(f"s_and_b32 s{sT}, s2, 7"); A(f"s_mul_i32 s{sT}, s{sT}, {3*4096}"); A(f"s_add_u32 s{sT}, s{sT}, {E1}")
    ldspoll("L_gq", L_QCNT, 3, [], 44, 47)
    gettag(True)
    A(f"s_mov_b32 s{sLOC}, 1")
    A("s_mov_b32 exec_hi, 0")
    poll("L_pl", [f"buffer_load_dwordx4 v[96:99], v3, {WS}, s{sT} offen sc1"], [96], 8, tag=sTAGX, tries=6, onfail=lambda: A(f"s_mov_b32 s{sLOC}, 2"))
    A(f"v_mov_b32 v47, s{sLOC}")
    lds_signal("ds_write_b32", 44, 47, L_LOC)
    stamp("probe")
    A("s_cmpk_ge_u32 s2, 240"); A("s_cbranch_scc1 L_light" if lred else "s_cbranch_scc1 L_help_end")
    A(f"s_mul_i32 s{sG}, s{sRB}, 10240"); A(f"s_add_u32 s{sG}, s{sG}, {E2}")
    A(f"s_add_u32 s{sG+1}, s{sG}, 4096"); A(f"s_add_u32 s{sG+2}, s{sG}, 8192")
    A(f"s_lshl_b32 s{sT}, s{sC10}, 10"); A(f"s_add_u32 s{sT}, s{sT}, s{sG}")
    fold(28, 36, 38, [f"v_mov_b32 v37, s{sTAG}", f"v_mov_b32 v39, s{sTAG}"])
    fold(32, 40, 42, [f"v_mov_b32 v41, s{sTAG}", f"v_mov_b32 v43, s{sTAG}"])
    A(f"s_mov_b64 exec, {PUB}")
    flavoured([f"buffer_store_dwordx4 v[36:39], v18, {WS}, s{sT} offen", f"buffer_store_dwordx4 v[40:43], v18, {WS}, s{sT} offen offset:512"])
    A("s_mov_b64 exec, -1")
    C("hidden block and its 64 x 64 piece of w2")
    A(f"s_mul_i32 s{sT}, s{sRB}, {64*1280}"); A(f"s_lshl_b32 s{sT+1}, s{sC10}, 7"); A(f"s_add_u32 s{sT}, s{sT}, s{sT+1}")
    srd(SB, 20, 1536 * 1280)
    A(f"v_mul_u32_u24 v2, 1280, v0"); A("v_lshl_add_u32 v2, v46, 4, v2")
    ldspoll("L_gk3", L_KCNT, 8, [], 44, 47)
    if not w2late:
        for G in range(8):
            A(f"buffer_load_dwordx4 v[{48+4*G}:{51+4*G}], v2, {SB}, s{sT} offen {pol}")
            if G < 7: A(f"s_addk_i32 s{sT}, {1280 if G % 2 == 0 else 7*1280}")
    else:
        A(f"s_mov_b32 s{sG+5}, s{sT}"); A("v_mov_b32 v35, v2")
    poll("L_p2", [f"buffer_load_dwordx4 v[{96+4*i}:{99+4*i}], v19, {WS}, s{sG + (i>>2)} offen offset:{1024*(i&3)} sc1" for i in range(10)],
         [96 + 4 * i for i in range(10)], 16)
    for (x, y) in ((0, 1), (2, 3), (4, 5), (6, 7), (8, 9), (0, 2), (4, 6), (0, 8), (0, 4)):
        A(f"v_add_f32 v{96+4*x}, v{96+4*x}, v{96+4*y}"); A(f"v_add_f32 v{98+4*x}, v{98+4*x}, v{98+4*y}")
    A("v_cvt_pk_bf16_f32 v96, v96, v98")
    A("v_mov_b32 v97, v96"); A("v_mov_b32 v98, v96")
    A("v_mov_b32_dpp v97, v96 row_shr:4 row_mask:0xf bank_mask:0xa", "gate pair")
    A("v_mov_b32_dpp v98, v96 row_shl:4 row_mask:0xf bank_mask:0x5", "up pair")
    unpack(100, 101, 97); unpack(102, 103, 98)
    silu2(100, 104)
    A("v_cvt_pk_bf16_f32 v97, v100, v101"); unpack(100, 101, 97)
    A("v_mul_f32 v100, v100, v102"); A("v_mul_f32 v101, v101, v103")
    A("v_cvt_pk_bf16_f32 v8, v100, v100"); A("v_cvt_pk_bf16_f32 v9, v101, v101")
    A(f"s_add_u32 s{sT+1}, s{sT+1}, {RDY}")
    def w2finish():
        if lred:
            unit_mfma([f"s_and_b32 s{sT}, s2, 7", f"s_mul_i32 s{sT}, s{sT}, 10", f"s_add_u32 s{sT}, s{sT}, s{sC10}", f"s_mul_i32 s{sT}, s{sT}, 3",
                       f"s_add_u32 s{sT}, s{sT}, s{sRBL}", f"s_lshl_b32 s{sT}, s{sT}, 9", f"s_add_u32 s{sT}, s{sT}, {E3}"])
            fold(28, 36, 38, ["s_nop 0"])
            A(f"s_mov_b64 exec, {PUB}")
            flavoured([f"buffer_store_dwordx4 v[36:39], v18, {WS}, s{sT} offen"])
            A("s_mov_b64 exec, -1")
        else:
            unit_mfma(["v_lshrrev_b32 v34, 1, v18", "v_lshrrev_b32 v3, 1, v1", "v_lshlrev_b32 v3, 2, v3", f"v_add_u32 v3, {L_FACC}, v3", "v_mov_b32 v10, 1.0", "v_mov_b32 v11, 1.0"], 120 if w2late else 48)
            fold(28, 28, 29, ["s_nop 0"])
            A(f"s_mov_b64 exec, {PUB}")
            A(f"ds_write_b64 v34, v[28:29] offset:{L_FACC}")
            A("s_mov_b32 exec_lo, 0x55555555"); A("s_mov_b32 exec_hi, 0x55555555")
            A("ds_read2_b32 v[10:11], v3 offset1:32", "even lanes: value, odd lanes: 1.0 (arrival count)")
            A("s_mov_b64 exec, -1")
    if not w2late: w2finish()
    C("the accumulators must have been cleared in this launch")
    A(f"s_mov_b32 s{sSPIN}, {GTRIES}")
    A("L_pr:")
    A(f"s_load_dwordx2 s[{sP}:{sP+1}], s[26:27], s{sT+1} glc")
    A("s_waitcnt lgkmcnt(0)")
    A(f"s_xor_b32 s{sP}, s{sP}, s{sTAG}"); A(f"s_xor_b32 s{sP+1}, s{sP+1}, s{sTAG}"); A(f"s_or_b32 s{sP}, s{sP}, s{sP+1}")
    A("s_cbranch_scc0 L_wo")
    A("s_sleep 4")
    A(f"s_sub_u32 s{sSPIN}, s{sSPIN}, 1")
    A("s_cbranch_scc0 L_pr")
    timeout("L_pr")
    A("L_wo:")
    C("---- waves 0..3: a 64 x 64 piece of wo each")
    A("s_cmpk_ge_u32 s2, 240"); A("s_cbranch_scc1 L_light" if lred else "s_cbranch_scc1 L_help_end")
    A(f"s_lshl_b32 s{sT+2}, s{sRBL}, 2"); A(f"s_add_u32 s{sT+2}, s{sT+2}, s{sW}", "b = 4*rbl + wave")
    A(f"s_mul_i32 s{sT}, s{sT+2}, 86"); A(f"s_lshr_b32 s{sT}, s{sT}, 8")
    A(f"s_mul_i32 s{sT}, s{sT}, 21"); A(f"s_add_u32 s{sT+2}, s{sT+2}, s{sT}")
    A(f"s_and_b32 s{sT}, s2, 7"); A(f"s_mul_i32 s{sT}, s{sT}, 3"); A(f"s_add_u32 s{sT+2}, s{sT+2}, s{sT}", "64-row block = 3*head + b % 3")
    A(f"s_mul_i32 s{sT}, s{sT+2}, {64*1280}"); A(f"s_lshl_b32 s{sG+2}, s{sC10}, 7"); A(f"s_add_u32 s{sT}, s{sT}, s{sG+2}")
    srd(SB, 12, 6144 * 1280); srd(SC, 22, 1280)
    if not xlds: srd(SA, 4, 1280)
    A(f"v_mul_u32_u24 v2, {[8*1280, 128, 1280][wp]}, v45"); A("v_lshl_add_u32 v2, v46, 4, v2")
    if wp == 1: A(f"s_lshl_b32 s{sT}, s2, 2"); A(f"s_add_u32 s{sT}, s{sT}, s{sW}"); A(f"s_lshl_b32 s{sT}, s{sT}, 13")
    A(f"s_lshl_b32 s{sG}, s{sT+2}, 12"); A(f"s_add_u32 s{sG}, s{sG}, {E1}")
    A(f"s_lshl_b32 s{sG+1}, s{sC10}, {11 if f64 else 10}"); A(f"s_add_u32 s{sG+1}, s{sG+1}, {ACC}")
    A("v_lshrrev_b32 v37, 1, v18"); A(f"s_lshl_b32 s{sT+2}, s{sW}, 8"); A(f"v_add_u32 v37, s{sT+2}, v37")
    A("v_lshrrev_b32 v36, 1, v1"); A("v_lshlrev_b32 v36, 2, v36"); A(f"v_add_u32 v36, {L_WACC}, v36")
    C("v16 = byte offset of this lane pair's first output column, v17 = accumulator offset")
    A("v_bfe_u32 v16, v1, 2, 3"); A("v_lshlrev_b32 v16, 4, v16"); A("v_lshrrev_b32 v17, 5, v1"); A("v_lshl_add_u32 v16, v17, 3, v16")
    A("v_and_b32 v17, 2, v1"); A("v_add_u32 v16, v16, v17")
    A(f"v_lshlrev_b32 v17, {3 if f64 else 2}, v1")
    A(f"s_add_u32 s{sTAGX}, s{sTAG}, 16")
    A(f"s_mov_b32 s{base(EVEN)}, 0x55555555"); A(f"s_mov_b32 s{base(EVEN)+1}, s{base(EVEN)}")
    A("v_mov_b32 v40, 1.0"); A("v_mov_b32 v41, 1.0")
    if gmode & 1: A("v_mov_b32 v12, 0"); A("v_mov_b32 v13, 0")
    if f64: A("v_mov_b32 v42, 0x40370000", "high word of 23.0"); A("v_mov_b32 v43, 0x40200000" if lred else "v_mov_b32 v43, 0x40380000", "high word of the complete gate count")
    else: A(f"v_mov_b32 v42, {f32(23.0)}"); A(f"v_mov_b32 v43, {f32(24.0)}")
    def woload(G):
        A(f"buffer_load_dwordx4 v[{48+4*G}:{51+4*G}], v2, {SB}, s{sT} offen {pol}")
        if G < 7: A(f"s_addk_i32 s{sT}, {[1280, 1024, 10240][wp]}")
    if xlds:
        A(f"v_add_u32 v3, s{sG+2}, v16")
        ldspoll("L_gk4", L_KCNT, 8, [f"ds_read_u16 v14, v3 offset:{L_XR}", f"ds_read_u16 v15, v3 offset:{L_XR+4}"], 44, 47)
    else:
        ldspoll("L_gk4", L_KCNT, 8, [], 44, 47)
        A(f"buffer_load_ushort v14, v16, {SA}, s{sG+2} offen"); A(f"buffer_load_ushort v15, v16, {SA}, s{sG+2} offen offset:4")
    if otouch:
        A(f"s_cmp_lg_u32 s{sW}, 0"); A("s_cbranch_scc1 L_noot")
        A("s_mov_b64 exec, 1")
        A(f"buffer_load_ushort v39, v16, {SC}, s{sG+2} offen", "translation of the output page")
        A("s_mov_b64 exec, -1")
        A("L_noot:")
    for G in range(wo_early): woload(G)
    ldspoll("L_gv", L_VCNT, 8, [], 44, 47)
    if w2late:
        A(f"s_cmp_lg_u32 s{sW}, 3"); A("s_cbranch_scc1 L_now2")
        srd(SA, 20, 1536 * 1280)
        for G in range(8):
            A(f"buffer_load_dwordx4 v[{120+4*G}:{123+4*G}], v35, {SA}, s{sG+5} offen {pol}")
            if G < 7: A(f"s_addk_i32 s{sG+5}, {1280 if G % 2 == 0 else 7*1280}")
        A("L_now2:")
    for G in range(wo_early, 8): woload(G)
    stamp("woissued")
    if not lred:
        A(f"s_cmp_lg_u32 s{sW}, 3"); A("s_cbranch_scc1 L_nof3")
        if w2late:
            A(f"s_waitcnt vmcnt({8 - wo_early})")
            w2finish()
            A("s_waitcnt lgkmcnt(0)")
        if f64:
            A("v_cvt_f64_f32 v[80:81], v10"); A("v_cvt_f64_f32 v[82:83], v11")
            A(f"buffer_atomic_add_f64 v[80:81], v17, {WS}, s{sG+1} offen offset:1024 sc1")
            A(f"buffer_atomic_add_f64 v[82:83], v17, {WS}, s{sG+1} offen offset:1536 sc1")
        else:
            A(f"buffer_atomic_add_f32 v10, v17, {WS}, s{sG+1} offen offset:512 sc1")
            A(f"buffer_atomic_add_f32 v11, v17, {WS}, s{sG+1} offen offset:768 sc1")
        A("L_nof3:")
    if tal:
        A("s_branch L_tail")
        A(".p2align 12")
        A("L_tail:")
    ldspoll("L_go", L_PUB, 7, [], 44, 47)
    A("v_mov_b32 v47, 1")
    gather8("L_p4", sG, 0, sTAGX)
    stamp("e4seen")
    A("v_cvt_pk_bf16_f32 v8, v118, v118"); A("v_cvt_pk_bf16_f32 v9, v119, v119")
    A("s_nop 0")
    unit_mfma([])
    fold(28, 28, 29, ["s_nop 0"])
    A(f"s_mov_b64 exec, {PUB}")
    A(f"ds_write_b64 v37, v[28:29] offset:{L_WACC}")
    A("s_mov_b64 exec, 1")
    A(f"ds_add_rtn_u32 v47, v44, v47 offset:{L_WCNT}")
    A(f"s_mov_b64 exec, {EVEN}")
    for w in range(4): A(f"ds_read2_b32 v[{20+2*w}:{21+2*w}], v36 offset0:{64*w} offset1:{64*w+32}")
    A("s_waitcnt lgkmcnt(0)")
    A(f"v_readfirstlane_b32 s{sT}, v47")
    A("v_pk_add_f32 v[20:21], v[20:21], v[22:23]"); A("v_pk_add_f32 v[24:25], v[24:25], v[26:27]")
    A(f"s_cmp_lg_u32 s{sT}, 3"); A("s_cbranch_scc1 L_help_end")
    C("last wave of the workgroup: add {value, 1.0} pairs to the accumulators; whoever sees 23 earlier arrivals finishes the column")
    def gload(first=False):
        if f64:
            A(f"buffer_load_dwordx2 v[84:85], v17, {WS}, s{sG+1} offen offset:1024 sc1"); A(f"buffer_load_dwordx2 v[86:87], v17, {WS}, s{sG+1} offen offset:1536 sc1")
        elif gmode & 1:
            if not first: A("v_mov_b32 v12, 0"); A("v_mov_b32 v13, 0")
            A(f"buffer_atomic_add_f32 v12, v17, {WS}, s{sG+1} offen offset:512 sc0 sc1"); A(f"buffer_atomic_add_f32 v13, v17, {WS}, s{sG+1} offen offset:768 sc0 sc1")
        else:
            p = "sc0 sc1 nt" if gmode & 4 else "sc1"
            A(f"buffer_load_dword v12, v17, {WS}, s{sG+1} offen offset:512 {p}"); A(f"buffer_load_dword v13, v17, {WS}, s{sG+1} offen offset:768 {p}")
    def gcalc():
        if f64:
            A("v_cvt_f32_f64 v12, v[84:85]"); A("v_cvt_f32_f64 v13, v[86:87]")
            A(f"v_cmp_ne_u32 s[{sP+2}:{sP+3}], v85, v43"); A(f"v_cmp_ne_u32 s[{sP+4}:{sP+5}], v87, v43")
        else:
            A(f"v_cmp_ne_u32 s[{sP+2}:{sP+3}], v12, v43"); A(f"v_cmp_ne_u32 s[{sP+4}:{sP+5}], v13, v43")
        A("v_cvt_pk_bf16_f32 v22, v12, v13")
        unpack(12, 13, 22)
        silu2(12, 24)
        A(f"s_or_b64 s[{sP+2}:{sP+3}], s[{sP+2}:{sP+3}], s[{sP+4}:{sP+5}]")
        A("v_cvt_pk_bf16_f32 v22, v12, v13")
        A(f"s_andn2_b64 s[{sP+2}:{sP+3}], s[{sP+2}:{sP+3}], {EVEN}", "count lanes that are not complete")
        unpack(12, 13, 22)
    A("v_pk_add_f32 v[40:41], v[20:21], v[24:25]")
    A("s_mov_b64 exec, -1")
    if not gmode & 10: gload(True)
    if f64:
        A("v_cvt_f64_f32 v[88:89], v40"); A("v_cvt_f64_f32 v[90:91], v41")
        A(f"buffer_atomic_add_f64 v[88:89], v17, {WS}, s{sG+1} offen sc0 sc1")
        A(f"buffer_atomic_add_f64 v[90:91], v17, {WS}, s{sG+1} offen offset:512 sc0 sc1")
    else:
        A(f"buffer_atomic_add_f32 v40, v17, {WS}, s{sG+1} offen sc0 sc1")
        A(f"buffer_atomic_add_f32 v41, v17, {WS}, s{sG+1} offen offset:256 sc0 sc1")
    if gmode & 2: gload(True)
    stamp("e5pub")
    if f64: A("v_cvt_f64_f32 v[92:93], v40"); A("v_cvt_f64_f32 v[94:95], v41")
    else: A("v_pk_add_f32 v[20:21], v[20:21], v[24:25]")
    A("v_lshlrev_b32 v14, 16, v14"); A("v_lshlrev_b32 v15, 16, v15")
    A(f"s_mov_b32 s{sSPIN}, {GTRIES}")
    if gmode & 8: A(f"s_mov_b64 s[{sP+2}:{sP+3}], -1")
    else:
        A("s_waitcnt vmcnt(0)" if gmode & 2 else "s_waitcnt vmcnt(2)")
        gcalc()
    A("s_waitcnt vmcnt(0)")
    stamp("atdone")
    if f64:
        A("v_add_f64 v[92:93], v[92:93], v[88:89]"); A("v_add_f64 v[94:95], v[94:95], v[90:91]")
        A("v_cmp_eq_u32 vcc, v89, v42"); A(f"v_cmp_eq_u32 s[{sP}:{sP+1}], v91, v42")
        A("v_cvt_f32_f64 v20, v[92:93]"); A("v_cvt_f32_f64 v21, v[94:95]")
    else:
        A("v_cmp_eq_f32 vcc, v40, v42"); A(f"v_cmp_eq_f32 s[{sP}:{sP+1}], v41, v42")
        A("v_pk_add_f32 v[20:21], v[20:21], v[40:41]")
    A("s_lshr_b64 vcc, vcc, 1"); A(f"s_lshr_b64 s[{sP}:{sP+1}], s[{sP}:{sP+1}], 1")
    A("v_cvt_pk_bf16_f32 v23, v20, v21")
    A(f"s_cmp_lg_u64 s[{sP+2}:{sP+3}], 0"); A("s_cbranch_scc1 L_glate")
    A("L_gok:")
    unpack(20, 21, 23)
    A("v_pk_mul_f32 v[20:21], v[20:21], v[12:13]")
    A("v_cvt_pk_bf16_f32 v22, v20, v21")
    unpack(20, 21, 22)
    A("v_pk_add_f32 v[20:21], v[20:21], v[14:15]")
    A("v_cvt_pk_bf16_f32 v22, v20, v21")
    if holdmin:
        A("s_load_dwordx2 s[96:97], s[0:1], 80"); A("s_waitcnt lgkmcnt(0)")
        A("s_load_dword s90, s[96:97], 0 glc"); A("s_waitcnt lgkmcnt(0)")
        if holdmin == 1: A("s_not_b32 s90, s90")
    if hold:
        A("L_hold:"); A("s_memrealtime s[96:97]"); A("s_waitcnt lgkmcnt(0)"); A("s_sub_u32 s96, s96, s90")
        A(f"s_cmp_lt_u32 s96, {hold}"); A("s_cbranch_scc1 L_hold")
    A(f"s_and_b64 exec, vcc, {EVEN}"); A("s_cbranch_execz L_no0")
    A(f"buffer_store_short v22, v16, {SC}, s{sG+2} offen")
    A("L_no0:")
    A(f"s_and_b64 exec, s[{sP}:{sP+1}], {EVEN}"); A("s_cbranch_execz L_no1")
    A(f"buffer_store_short_d16_hi v22, v16, {SC}, s{sG+2} offen offset:4")
    A(f"s_cmp_lg_u32 s{sC10}, 0"); A("s_cbranch_scc1 L_no1")
    A("s_and_b64 exec, exec, 1"); A("s_cbranch_execz L_no1")
    C("every wave of the launch has read the old word by now: leave this launch's tag for the next one to step past")
    A(f"v_mov_b32 v49, s{sTAG}")
    A(f"buffer_store_dword v49, v44, {WS}, 0 offen")
    A("L_no1:")
    if stamps: A("s_waitcnt vmcnt(0)")
    stamp("end")
    A("L_help_end:")
    dump_stamps()
    A("L_end:")
    A("s_endpgm")
    A("L_glate:")
    C("the gate sums are not complete yet: only a wave that finishes some column waits for them")
    A(f"s_or_b64 s[{sP+4}:{sP+5}], vcc, s[{sP}:{sP+1}]"); A(f"s_and_b64 s[{sP+4}:{sP+5}], s[{sP+4}:{sP+5}], {EVEN}")
    A("s_cbranch_scc0 L_help_end")
    A("L_gre:")
    gload()
    A("s_waitcnt vmcnt(0)")
    gcalc()
    A(f"s_cmp_eq_u64 s[{sP+2}:{sP+3}], 0"); A("s_cbranch_scc1 L_gok")
    A(f"s_sub_u32 s{sSPIN}, s{sSPIN}, 1")
    A("s_cbranch_scc0 L_gre")
    timeout("L_gre")
    if diag:
        A("v_lshlrev_b32 v166, 2, v1"); A("v_add_u32 v166, 1024, v166")
        gload(); A("s_waitcnt vmcnt(0)")
        A("global_store_dword v166, v12, s[100:101]"); A("global_store_dword v166, v13, s[100:101] offset:256")
        print(codes)
    A("s_endpgm")
    if lred:
        A("L_light:")
        C("---- workgroups 240..255: add the three w2 partials of their group, one atomic contribution per group and column block")
        A(f"s_bfe_u32 s{sC10}, s2, 0x10003"); A(f"s_mul_i32 s{sC10}, s{sC10}, 5"); A(f"s_add_u32 s{sRB}, s{sC10}, 5"); A(f"s_add_u32 s{sC10}, s{sC10}, s{sW}")
        A("v_lshlrev_b32 v17, 3, v1"); A("v_lshrrev_b32 v16, 1, v1"); A("v_lshlrev_b32 v16, 3, v16")
        A(f"s_mov_b32 s{base(EVEN)}, 0x55555555"); A(f"s_mov_b32 s{base(EVEN)+1}, s{base(EVEN)}")
        if lgate == "s": ldspoll("L_lg", L_SFLAG, 1, [], 44, 47)
        elif lgate == "v": ldspoll("L_lg", L_VCNT, 8, [], 44, 47)
        A("L_lnext:")
        A(f"s_and_b32 s{sT}, s2, 7"); A(f"s_mul_i32 s{sT}, s{sT}, 10"); A(f"s_add_u32 s{sT}, s{sT}, s{sC10}"); A(f"s_mul_i32 s{sT}, s{sT}, 1536"); A(f"s_add_u32 s{sT}, s{sT}, {E3}")
        A(f"s_lshl_b32 s{sT+1}, s{sC10}, 7"); A(f"s_add_u32 s{sT+1}, s{sT+1}, {RDY}")
        A(f"s_lshl_b32 s{sT+2}, s{sC10}, 11"); A(f"s_add_u32 s{sT+2}, s{sT+2}, {ACC + 1024}")
        A(f"s_mov_b32 s{sSPIN}, {GTRIES}")
        A("L_lp:")
        A(f"s_load_dwordx2 s[{sP}:{sP+1}], s[26:27], s{sT+1} glc")
        for k in range(6): A(f"buffer_load_dwordx2 v[{48+2*k}:{49+2*k}], v16, {WS}, s{sT} offen offset:{256*k} sc1")
        A("s_waitcnt vmcnt(0) lgkmcnt(0)")
        for k in range(3): A(f"v_bitop3_b32 v{49+4*k}, s{sTAG}, v{49+4*k}, v{51+4*k} bitop3:0x7e")
        A(f"s_xor_b32 s{sP}, s{sP}, s{sTAG}"); A(f"s_xor_b32 s{sP+1}, s{sP+1}, s{sTAG}"); A(f"s_or_b32 s{sP}, s{sP}, s{sP+1}")
        A("v_or3_b32 v49, v49, v53, v57"); A(f"v_or_b32 v49, s{sP}, v49")
        A("v_cmp_ne_u32 vcc, 0, v49")
        A("s_cbranch_vccz L_lp_ok")
        A("s_sleep 8")
        A(f"s_sub_u32 s{sSPIN}, s{sSPIN}, 1")
        A("s_cbranch_scc0 L_lp")
        A("L_lp_ok:")
        A("v_add_f32 v48, v48, v52"); A("v_add_f32 v50, v50, v54"); A("v_add_f32 v48, v48, v56"); A("v_add_f32 v50, v50, v58")
        A(f"v_cndmask_b32 v48, 1.0, v48, {EVEN}"); A(f"v_cndmask_b32 v50, 1.0, v50, {EVEN}")
        A("v_cvt_f64_f32 v[60:61], v48"); A("v_cvt_f64_f32 v[62:63], v50")
        A(f"buffer_atomic_add_f64 v[60:61], v17, {WS}, s{sT+2} offen sc1")
        A(f"buffer_atomic_add_f64 v[62:63], v17, {WS}, s{sT+2} offen offset:512 sc1")
        A(f"s_add_u32 s{sC10}, s{sC10}, 4"); A(f"s_cmp_lt_u32 s{sC10}, s{sRB}"); A("s_cbranch_scc1 L_lnext")
        A("s_branch L_help_end")
    A("L_code_end:")
    A('.section .rodata,"a"'); A(".p2align 6")
    A(f".amdhsa_kernel {NAME}_kernel")
    A("  .amdhsa_next_free_vgpr 168"); A(f"  .amdhsa_next_free_sgpr {102 if diag else 100}"); A("  .amdhsa_accum_offset 168")
    A("  .amdhsa_group_segment_fixed_size 0"); A("  .amdhsa_kernarg_size 96"); A("  .amdhsa_user_sgpr_count 2")
    A("  .amdhsa_user_sgpr_kernarg_segment_ptr 1"); A("  .amdhsa_system_sgpr_workgroup_id_x 1")
    A("  .amdhsa_float_denorm_mode_32 3")
    A(".end_amdhsa_kernel")
    if nox: L = [("v_mov_b32 v20, v1" if ("v[20:23], v8" in l and "buffer_load" in l) or "buffer_load_dword v24" in l else l) for l in L]
    return "\n".join(L) + "\n"

SETS = {
  "A": dict(start=[(0,0)], e1pub=[(0,1)], qready=[(0,2)], e0pub=[(4,3),(11,4)], stats=[(2,5)], kissued=[(4,6),(11,12)], vissued=[(11,7)], e4pub=[(None,8)],
            woissued=[(0,9)], e4seen=[(0,10)], probe=[(3,11)], atdone=[(None,13)], lndone=[(0,14)]),
  "V": dict(start=[(0,0)], e4pub=[(None,1)], woissued=[(0,2)], e4seen=[(0,3),(1,4),(2,5),(3,6)], e5pub=[(None,7)], atdone=[(None,8)], end=[(None,9)], mfmadone=[(8,10),(9,11),(10,12),(11,13)], stats=[(2,14)]),
  "S": dict(start=[(0,0),(4,1)], karg=[(0,2),(3,3),(4,4),(11,5)], h1issued=[(0,6),(2,7),(3,8)], barrier=[(0,9),(4,10)], k3issued=[(4,11)], lndone=[(0,12)], e1pub=[(0,13)], kissued=[(4,14)]),
}
def build(out, **kw):
    import hazard, os
    ref = "cdna_kernels/" + NAME + ".s.ref"
    hdr = open(ref).read().split("; Override launch")[0] if os.path.exists(ref) else ""
    if kw.get("stamps"): kw["stamps"] = SETS[kw["stamps"]]
    t = gen(**kw)
    for x in hazard.check(t)[:30]: print("HAZARD", x)
    open(out, "w").write(hdr + t)
if __name__ == "__main__":
    import ast
    kw = {}
    for a in sys.argv[2:]:
        k, v = a.split("=", 1)
        try: kw[k] = ast.literal_eval(v)
        except Exception: kw[k] = v
    build(sys.argv[1], **kw)
```

```python
import sys, struct
NAME = "recurrent_scan__sliding_block_cached__glu_gated_swiglu__decode"

def f32(x): return "0x%08x" % struct.unpack("<I", struct.pack("<f", x))[0]

E0, ACC, RDY, E1, E2 = 0x1000, 0xA000, 0xF000, 0x10000, 0x70000
E3 = E2 + 24 * 10240
WS_BYTES = E3 + 240 * 512
TAGK = 0x9E3779B0
L_QCNT, L_OCNT, L_SFLAG, L_XF, L_M, L_LOC, L_KCNT, L_VCNT, L_WCNT, L_PUB, L_TAG, L_WI, L_ST = 0, 4, 8, 12, 16, 24, 28, 32, 36, 40, 44, 48, 64
L_Q, L_WACC, L_FACC, L_XN, L_OACC = 512, 1024, 2048, 2304, 3584
L_XR = L_OACC + 8 * 768
LDS_BYTES = L_XR + 1280
DPPF = "row_mask:0xf bank_mask:0xf"
LOG2E = 1.4426950408889634
GTRIES, LTRIES = 0x20000, 0x800000

DOC = """
One launch, 256 workgroups of 12 waves, one workgroup per CU; every byte of K, V and the weights is read once.
  workgroup id b: head = b & 31, split = b >> 5 (512 keys); group = b & 7 (32 workgroups, four heads).
  waves 4..11 : 64 keys each.  K rows -> registers, scores (v_dot2c), V rows -> same registers, P.V on the matrix core.
  waves 0..2  : 80 x 64 piece of wq -> partial q, exchanged inside the head; wave 2 also exchanges the softmax max / sum.
  wave 3      : 64 x 64 pieces of w1, w3 and w2 (workgroups < 240).
  waves 0..3  : 64 x 64 piece of wo each (workgroups < 240).
A row-major [8 rows][64 columns] tile is one 16-byte load per lane and one v_mfma_f32_16x16x32_bf16 whose A operand holds
the row weight in slot (lane & 7) only (masks v4..v7).  All intermediate values are rounded to bf16 where the reference does.
Hand-offs between workgroups go through d_ws as 8-byte {value, tag} granules.  The tag is the word at d_ws[0] plus a constant;
the launch leaves its tag there, so granules of an earlier launch never match.  Stores are plain only when the readers are
known to share this L2 (die ids travel in the tags of the q partials); otherwise they are written through (sc1).
The last two sums (wo and w2 partials) are f64 device-scope atomic adds of {value, 1.0} pairs on accumulators cleared in this
launch; the adder that sees all other arrivals finishes that output column.  Every wait is bounded.
"""
def gen(stamps=None, pol="nt", wo_early=2, hold=0, e1sleep=4, e0sleep=8, bar3=5, n1=24, forceslow=False, rotk=9,
        lnwave=8, pf=True, pvint=True, diag=False, tlb=0, rev=False, gmode=0, otouch=0, f64=True, holdmin=0, lred=False, lgate="s", xlds=True, pad=0, al=12, tal=0, earlybar=False, xlate=True, xpol="", pfw=5, probe_gate="q", nox=False, tagl=False, skip="", ackw=True, hoff=0, lay=0, ka=0, hm=1, p1=10, wp=0, w2late=False, acc1=False, t1=False, t2=True, t4=False, e2far=False, e4nt=0, outp="", fm=0, fgate="w"):
    L = []
    WS_BYTES = E3 + (240 * 512 if lred else 0)
    AC1 = 0xD0000
    if acc1: WS_BYTES = AC1 + 0x10000
    FO = 0 if acc1 else 1024
    def accoff(dst, c, tmp):
        if acc1:
            A(f"s_lshr_b32 s{tmp}, s{c}, 3"); A(f"s_lshl_b32 s{tmp}, s{tmp}, 3"); A(f"s_add_u32 s{tmp}, s{tmp}, s{c}")
            A(f"s_lshl_b32 s{dst}, s{tmp}, 10"); A(f"s_add_u32 s{dst}, s{dst}, {AC1}"); A(f"s_add_u32 s{dst+3}, s{dst}, 0x8000")
        else:
            A(f"s_lshl_b32 s{dst}, s{c}, 11"); A(f"s_add_u32 s{dst}, s{dst}, {ACC}")
    def A(x, c=None): L.append(x.rstrip() if c is None else f"{x:<72}; {c}")
    def C(x): L.append("; " + x)
    sW, sTAG, sHEAD, sSPLIT = 28, 29, 30, 31
    WS, SA, SB, SC = "s[32:35]", "s[36:39]", "s[40:43]", "s[44:47]"
    sRB, sC10, sSPIN = 48, 49, 50
    sT = 51
    sG = 56
    sRBL, sTAGX = 66, 67
    sST = 68
    sTHR, sLOC = 88, 89
    sP = 92
    PUB, EVEN = "s[14:15]", "s[24:25]"
    nst = [0]; stl = []
    def stamp(name):
        if not stamps or name not in stamps: return
        r = sST + 2 * len(stl)
        assert len(stl) < 10
        stl.append(stamps[name])
        A(f"s_memrealtime s[{r}:{r+1}]")
    def dump_stamps():
        if not stamps: return
        A("s_waitcnt lgkmcnt(0)")
        A(f"s_lshl_b32 s{sT}, s2, 7"); A(f"s_add_u32 s{sT}, s{sT}, {64<<20}")
        A(f"s_add_u32 s{sT+1}, s26, s{sT}"); A(f"s_addc_u32 s{sT+2}, s27, 0")
        A("s_mov_b64 exec, 1")
        A("v_mov_b32 v0, 0")
        for k, pairs in enumerate(stl):
            r = sST + 2 * k
            for (wv, slot) in pairs:
                lab2 = f"L_nost{nst[0]}"; nst[0] += 1
                if wv is not None:
                    A(f"s_cmp_lg_u32 s{sW}, {wv}"); A(f"s_cbranch_scc1 {lab2}")
                else:
                    A(f"s_cmp_eq_u32 s{r}, 0"); A(f"s_cbranch_scc1 {lab2}")
                A(f"v_mov_b32 v2, s{r}"); A(f"v_mov_b32 v3, s{r+1}")
                A(f"global_store_dwordx2 v0, v[2:3], s[{sT+1}:{sT+2}] offset:{8*slot}")
                A(f"{lab2}:")
    codes = {}
    def timeout(label):
        if not diag: return
        c = codes.setdefault(label, len(codes))
        A("s_load_dwordx2 s[100:101], s[0:1], 80"); A("s_waitcnt lgkmcnt(0)")
        A(f"v_mov_b32 v166, {4*c}"); A(f"s_lshl_b32 s3, s2, 4"); A(f"s_add_u32 s3, s3, s{sW}"); A("s_add_u32 s3, s3, 0x10000"); A("v_mov_b32 v167, s3")
        A("global_store_dword v166, v167, s[100:101]"); A("s_waitcnt vmcnt(0)")
    def base(n): return int(n[2:n.index(":")])
    def srd_c(name, size):
        b = base(name); A(f"s_mov_b32 s{b+2}, {size}"); A(f"s_mov_b32 s{b+3}, 0x20000")
    def srd_p(name, lo, off=None):
        b = base(name)
        if off is None: A(f"s_mov_b64 s[{b}:{b+1}], s[{lo}:{lo+1}]")
        else: A(f"s_add_u32 s{b}, s{lo}, s{off}"); A(f"s_addc_u32 s{b+1}, s{lo+1}, 0")
    def srd(name, lo, size): srd_p(name, lo); srd_c(name, size)
    def masks():
        C("v4..v7: keep one bf16 slot (lane & 7) of the eight a lane supplies to the matrix core")
        A("v_and_b32 v3, 1, v1"); A("v_lshlrev_b32 v3, 4, v3"); A("v_mov_b32 v7, 0xffff"); A("v_lshlrev_b32 v3, v3, v7")
        A("v_bfe_u32 v7, v1, 1, 2")
        A("v_cmp_eq_u32 vcc, 0, v7"); A(f"v_cmp_eq_u32 s[{sP}:{sP+1}], 1, v7"); A(f"v_cmp_eq_u32 s[{sP+2}:{sP+3}], 2, v7")
        A("v_cndmask_b32 v4, 0, v3, vcc")
        A("v_cmp_eq_u32 vcc, 3, v7")
        A(f"v_cndmask_b32 v5, 0, v3, s[{sP}:{sP+1}]"); A(f"v_cndmask_b32 v6, 0, v3, s[{sP+2}:{sP+3}]")
        A("v_cndmask_b32 v7, 0, v3, vcc")
        A(f"s_mov_b32 s{base(PUB)}, 0x00ff00ff"); A(f"s_mov_b32 s{base(PUB)+1}, s{base(PUB)}")
    def allred(op, x, t, steps):
        dp = {1: "quad_perm:[1,0,3,2]", 2: "quad_perm:[2,3,0,1]", 4: "row_ror:4", 8: "row_ror:8"}
        for s in steps:
            if s in dp:
                A("s_nop 1"); A(f"{op}_dpp v{x}, v{x}, v{x} {dp[s]} {DPPF}")
            else:
                A(f"v_mov_b32 v{t}, v{x}"); A("s_nop 1"); A(f"v_permlane{s}_swap_b32 v{x}, v{t}"); A(f"{op} v{x}, v{x}, v{t}")
    ALL = [1, 2, 8, 4, 16, 32]
    def unpack(lo, hi, src):
        A(f"v_lshlrev_b32 v{lo}, 16, v{src}"); A(f"v_and_b32 v{hi}, 0xffff0000, v{src}")
    def gettag(x=False):
        A(f"s_and_b32 s{sTAG}, s{sTAG}, -16"); A(f"s_add_u32 s{sTAG}, s{sTAG}, {TAGK:#x}", "hand-off tag of this launch")
        if x:
            A(f"s_getreg_b32 s{sTAGX}, hwreg(HW_REG_XCC_ID, 0, 4)")
            if forceslow: A(f"s_lshr_b32 s{sTAGX}, s2, 4")
            A(f"s_or_b32 s{sTAGX}, s{sTAGX}, s{sTAG}", "tag that also names this die")
    def ortree(ts, dst=None):
        ts = list(ts)
        while len(ts) > 1:
            d = ts[0] if dst is None else dst
            if len(ts) >= 3:
                A(f"v_or3_b32 v{d}, v{ts[0]}, v{ts[1]}, v{ts[2]}"); ts = ts[3:] + [d]
            else:
                A(f"v_or_b32 v{d}, v{ts[0]}, v{ts[1]}"); ts = [d]
        return ts[0]
    def poll(label, loads, regs, sleep, tag=sTAG, tries=GTRIES, onfail=None):
        if label[-1] in skip:
            A("s_waitcnt vmcnt(0)"); return
        A(f"s_mov_b32 s{sSPIN}, {tries}")
        A(f"{label}:")
        for l in loads: A(l)
        A("s_waitcnt vmcnt(0)")
        for r in regs: A(f"v_bitop3_b32 v{r+1}, s{tag}, v{r+1}, v{r+3} bitop3:0x7e")
        t = ortree([r + 1 for r in regs])
        A(f"v_cmp_ne_u32 vcc, 0, v{t}")
        A(f"s_cbranch_vccz {label}_ok")
        if sleep: A(f"s_sleep {sleep}")
        A(f"s_sub_u32 s{sSPIN}, s{sSPIN}, 1")
        A(f"s_cbranch_scc0 {label}")
        timeout(label)
        if onfail: onfail()
        A(f"{label}_ok:")
    def gather8(label, soff, sleep, tag, thr="0", tries=GTRIES, onfail=None):
        loads = [f"buffer_load_dwordx4 v[{96+4*i}:{99+4*i}], v19, {WS}, s{soff} offen offset:{1024*i} sc1" + (" nt" if e4nt & 2 and label == "L_p4" else "") for i in range(4)]
        if label[-1] in skip:
            A("s_waitcnt vmcnt(0)"); return
        if ackw and label == "L_p1": A("s_waitcnt vmcnt(0)")
        A(f"s_mov_b32 s{sSPIN}, {tries}")
        for l in loads: A(l)
        if t1 and label == "L_p4":
            A(f"s_branch {label}_first")
            A(f"{label}:")
            A("s_waitcnt vmcnt(0)")
            A(f"{label}_first:")
            A("s_waitcnt vmcnt(2)")
            for k in range(2): A(f"v_bitop3_b32 v{112+k}, s{tag}, v{97+4*k}, v{99+4*k} bitop3:0x7e")
            A("v_add_f32 v116, v96, v100"); A("v_add_f32 v117, v98, v102")
            A("s_waitcnt vmcnt(1)")
            A(f"v_bitop3_b32 v114, s{tag}, v105, v107 bitop3:0x7e")
            A("v_or3_b32 v120, v112, v113, v114")
            A("s_waitcnt vmcnt(0)")
            A(f"v_bitop3_b32 v115, s{tag}, v109, v111 bitop3:0x7e")
            A("v_add_f32 v118, v104, v108"); A("v_add_f32 v119, v106, v110")
            A("v_or_b32 v120, v120, v115")
            A("v_pk_add_f32 v[116:117], v[116:117], v[118:119]")
            A(f"v_cmp_lt_u32 vcc, {thr}, v120")
            A(f"s_cbranch_vccz {label}_ok")
        else:
            A(f"{label}:")
            A("s_waitcnt vmcnt(0)")
            for k in range(4): A(f"v_bitop3_b32 v{112+k}, s{tag}, v{97+4*k}, v{99+4*k} bitop3:0x7e")
            ortree([112, 113, 114, 115], 116)
            A(f"v_cmp_lt_u32 vcc, {thr}, v116")
            A("v_add_f32 v116, v96, v100"); A("v_add_f32 v117, v98, v102"); A("v_add_f32 v118, v104, v108"); A("v_add_f32 v119, v106, v110")
            A(f"s_cbranch_vccz {label}_ok")
        for k in range(4): A(f"v_cmp_lt_u32 s[{sP+2*k}:{sP+2*k+1}], {thr}, v{112+k}")
        if sleep: A(f"s_sleep {sleep}")
        for k, l in enumerate(loads):
            A(f"s_mov_b64 exec, s[{sP+2*k}:{sP+2*k+1}]"); A(f"s_cbranch_execz {label}_s{k}")
            A(l)
            A(f"{label}_s{k}:")
        A("s_mov_b64 exec, -1")
        A(f"s_sub_u32 s{sSPIN}, s{sSPIN}, 1")
        A(f"s_cbranch_scc0 {label}")
        timeout(label)
        if onfail: onfail()
        A("s_waitcnt vmcnt(0)")
        A(f"{label}_ok:")
        if not (t1 and label == "L_p4"):
            A("v_pk_add_f32 v[116:117], v[116:117], v[118:119]")
            A("s_nop 1")
        A("v_add_f32_dpp v118, v116, v116 row_shl:4 row_mask:0xf bank_mask:0x5"); A("v_add_f32_dpp v119, v117, v117 row_shl:4 row_mask:0xf bank_mask:0x5")
        A("v_add_f32_dpp v118, v116, v116 row_shr:4 row_mask:0xf bank_mask:0xa"); A("v_add_f32_dpp v119, v117, v117 row_shr:4 row_mask:0xf bank_mask:0xa")
    def ldspoll(label, flag_off, want, reads, vz, vflag, cmp="ne", sleep=1):
        A(f"s_mov_b32 s{sSPIN}, {LTRIES}")
        A(f"{label}:")
        A(f"ds_read_b32 v{vflag}, v{vz} offset:{flag_off}")
        for l in reads: A(l)
        A("s_waitcnt lgkmcnt(0)")
        A(f"v_cmp_{cmp}_u32 vcc, {want}, v{vflag}")
        A(f"s_cbranch_vccz {label}_ok")
        if sleep: A("s_sleep 1")
        A(f"s_sub_u32 s{sSPIN}, s{sSPIN}, 1")
        A(f"s_cbranch_scc0 {label}")
        timeout("lds")
        A(f"{label}_ok:")
    def lds_signal(op, vz, vval, off):
        A("s_mov_b64 exec, 1"); A(f"{op} v{vz}, v{vval} offset:{off}"); A("s_mov_b64 exec, -1")
    def fold(acc, y0, y1, fill):
        A(f"v_permlane32_swap_b32 v{acc}, v{acc+2}")
        A(f"v_permlane32_swap_b32 v{acc+1}, v{acc+3}")
        for l in fill: A(l)
        A(f"v_add_f32_dpp v{y0}, v{acc+2}, v{acc} row_ror:8 {DPPF}")
        A(f"v_add_f32_dpp v{y1}, v{acc+3}, v{acc+1} row_ror:8 {DPPF}")
    nfl = [0]
    def flavoured(lines):
        lab = f"L_fl{nfl[0]}"; nfl[0] += 1
        A(f"s_cmp_eq_u32 s{sLOC}, 1"); A(f"s_cbranch_scc1 {lab}_p")
        for l in lines: A(l + " sc1")
        A(f"s_branch {lab}_e")
        A(f"{lab}_p:")
        for l in lines: A(l)
        A(f"{lab}_e:")
    def silu2(x, t):
        A(f"v_mul_f32 v{t}, {f32(-LOG2E)}, v{x}"); A(f"v_mul_f32 v{t+1}, {f32(-LOG2E)}, v{x+1}")
        A(f"v_exp_f32 v{t}, v{t}"); A(f"v_exp_f32 v{t+1}, v{t+1}")
        A(f"v_add_f32 v{t}, 1.0, v{t}"); A(f"v_add_f32 v{t+1}, 1.0, v{t+1}")
        A(f"v_rcp_f32 v{t}, v{t}"); A(f"v_rcp_f32 v{t+1}, v{t+1}")
        A(f"v_mul_f32 v{x}, v{x}, v{t}"); A(f"v_mul_f32 v{x+1}, v{x+1}, v{t+1}")
    def mfma(acc, a, b, first):
        A(f"v_mfma_f32_16x16x32_bf16 v[{acc}:{acc+3}], v[{a}:{a+3}], v[{b}:{b+3}], " + ("0" if first else f"v[{acc}:{acc+3}]"))
    def unit_mfma(tail, d0=48):
        for G in range(8):
            a = 20 + 4 * (G & 1); k = G >> 1
            for j in range(4):
                A(f"v_and_b32_dpp v{a+j}, v{8 + (G & 1)}, v{4+j} quad_perm:[{k},{k},{k},{k}] {DPPF}")
            if G > 0: mfma(28, 20 + 4 * ((G - 1) & 1), d0 + 4 * (G - 1), G == 1)
        A("s_nop 0")
        mfma(28, 24, d0 + 28, False)
        for l in tail: A(l)
        A(f"s_nop {7 - len(tail)}")
    def xn_dups(n, addr_setup):
        for l in addr_setup: A(l)
        if p1 == 10:
            ldspoll(f"L_gx{n}", L_XF, 1, [f"ds_read_u16 v{8+k}, v3 offset:{16*k}" for k in range(n)], 44, 47)
            for k in range(n): A(f"v_lshl_or_b32 v{8+k}, v{8+k}, 16, v{8+k}")
            return
        rd = [f"ds_read2_b32 v[{20+2*k}:{21+2*k}], v3 offset0:{2*k} offset1:{2*k+1}" for k in range(2)]
        if n == 10: rd.append("ds_read_b32 v24, v3 offset:16")
        ldspoll(f"L_gx{n}", L_XF, 1, rd, 44, 47)
        A(f"s_mov_b32 s{sT}, 0x01000100"); A(f"s_mov_b32 s{sT+1}, 0x03020302")
        for k in range(n): A(f"v_perm_b32 v{8+k}, v{20 + k//2}, v{20 + k//2}, s{sT + (k & 1)}")
    def roles():
        A(f"s_lshr_b32 s{sC10}, s2, 3"); A(f"s_mul_i32 s{sRBL}, s{sC10}, 26"); A(f"s_lshr_b32 s{sRBL}, s{sRBL}, 8", "row block inside the group = (id >> 3) / 10")
        A(f"s_mul_i32 s{sT}, s{sRBL}, 10"); A(f"s_sub_u32 s{sC10}, s{sC10}, s{sT}", "64-column block = (id >> 3) % 10")
        A(f"s_and_b32 s{sT}, s2, 7"); A(f"s_mul_i32 s{sT}, s{sT}, 3"); A(f"s_add_u32 s{sRB}, s{sT}, s{sRBL}", "FFN block 0..23")
    def helper_addrs():
        C("v18 = publish offset, v19 = gather offset, v0 = first row/column of this lane in publish order")
        A("v_lshrrev_b32 v18, 4, v1"); A("v_lshlrev_b32 v18, 7, v18"); A("v_lshl_add_u32 v18, v46, 4, v18")
        A("v_bfe_u32 v0, v1, 3, 1"); A("v_lshlrev_b32 v0, 5, v0"); A("v_bfe_u32 v3, v1, 4, 1"); A("v_lshl_add_u32 v0, v3, 2, v0")
        A("v_lshrrev_b32 v3, 5, v1"); A("v_lshl_add_u32 v0, v3, 1, v0")
        A("v_lshrrev_b32 v19, 2, v46"); A("v_lshlrev_b32 v19, 9, v19"); A("v_lshl_add_u32 v19, v45, 6, v19")
        A("v_and_b32 v3, 3, v1"); A("v_lshl_add_u32 v19, v3, 4, v19")
        A("v_mov_b32 v44, 0")
        srd(WS, 26, WS_BYTES)

    A(f"; @launch grid=(256,1,1) block=(768,1,1) lds={LDS_BYTES}")
    A('.amdgcn_target "amdgcn-amd-amdhsa--gfx950"')
    for l in DOC.strip("\n").split("\n"): C(l)
    A(".text")
    if al != 8: A(f".p2align {al}")
    if pad: A(f".fill {pad // 4}, 4, 0xbf810000")
    A(f".globl {NAME}_kernel"); A(".p2align 8"); A(f".type {NAME}_kernel,@function")
    A(f"{NAME}_kernel:")
    if ka == 0:
        A("s_load_dwordx16 s[4:19], s[0:1], 0")
        A("s_load_dwordx8 s[20:27], s[0:1], 64")
    elif ka == 1:
        A("s_load_dwordx16 s[4:19], s[0:1], 0")
    else:
        A("s_load_dwordx8 s[4:11], s[0:1], 0", "x, K, V, wq")
    A("s_cmpk_ge_u32 s2, 256"); A("s_cbranch_scc1 L_end")
    if stamps:
        for k in range(10): A(f"s_mov_b64 s[{sST+2*k}:{sST+2*k+1}], 0")
    stamp("start")
    if hold: A("s_memrealtime s[90:91]")
    A("v_lshrrev_b32 v2, 6, v0")
    A("v_and_b32 v1, 63, v0", "lane")
    A(f"v_readfirstlane_b32 s{sW}, v2", "wave")
    A("v_lshrrev_b32 v45, 3, v1", "row slot")
    A("v_and_b32 v46, 7, v1", "16-byte chunk")
    A(f"s_and_b32 s{sHEAD}, s2, 31"); A(f"s_lshr_b32 s{sSPLIT}, s2, 5")
    A(f"s_cmp_gt_u32 s{sW}, 2"); A("s_cbranch_scc1 L_w3up")
    C("---- waves 0..2: 80 rows x 64 columns of wq")
    A("s_setprio 3")
    A(f"s_mul_i32 s{sT}, s{sSPLIT}, {80*12288}"); A(f"s_mul_i32 s{sG}, s{sHEAD}, 3"); A(f"s_add_u32 s{sG}, s{sG}, s{sW}")
    A(f"s_lshl_b32 s{sG}, s{sG}, 7"); A(f"s_add_u32 s{sG}, s{sG}, s{sT}")
    A(f"v_mul_u32_u24 v8, {[10*12288, 128, 12288][p1 & 3]}, v45"); A("v_lshl_add_u32 v8, v46, 4, v8")
    if p1 & 3 == 1: A(f"s_mul_i32 s{sG}, s2, 3"); A(f"s_add_u32 s{sG}, s{sG}, s{sW}"); A(f"s_lshl_b32 s{sG}, s{sG}, 10")
    srd_c(SB, 640 * 12288)
    A("s_waitcnt lgkmcnt(0)")
    if earlybar: A("s_barrier")
    def rest():
        if ka == 1: A("s_load_dwordx8 s[20:27], s[0:1], 64")
        if ka == 2: A("s_load_dwordx16 s[12:27], s[0:1], 32")
    rest()
    st0 = list(stl)
    stamp("karg")
    srd_p(SB, 10)
    for G in range(10):
        A(f"buffer_load_dwordx4 v[{48+4*G}:{51+4*G}], v8, {SB}, s{sG} offen {pol}")
        if G < 9: A(f"s_addk_i32 s{sG}, 12288" if p1 & 3 == 0 else f"s_add_u32 s{sG}, s{sG}, {[0, 786432, 8*12288][p1 & 3]}")
    stamp("h1issued")
    if not earlybar: A("s_barrier")
    if ka: A("s_waitcnt lgkmcnt(0)")
    A(f"s_load_dword s{sTAG}, s[26:27], 0")
    stamp("barrier")
    A("s_branch L_h012b")
    st1 = list(stl); stl[:] = st0
    A("L_w3up:")
    A(f"s_cmp_gt_u32 s{sW}, 3"); A("s_cbranch_scc1 L_main")
    C("---- wave 3: 64 rows x 64 columns of w1 and w3")
    rest()
    A("s_setprio 3")
    roles()
    A(f"s_mul_i32 s{sT}, s{sC10}, {64*3072}"); A(f"s_lshl_b32 s{sG}, s{sRB}, 7"); A(f"s_add_u32 s{sG}, s{sG}, s{sT}")
    A(f"v_mul_u32_u24 v8, {[8*3072, 128, 3072][p1 >> 2]}, v45"); A("v_lshl_add_u32 v8, v46, 4, v8")
    if p1 >> 2 == 1: A(f"s_lshl_b32 s{sG}, s2, 10")
    srd_c(SB, 640 * 3072); srd_c(SC, 640 * 3072)
    if lnwave == 3:
        srd_c(SA, 1280); A("v_lshlrev_b32 v9, 4, v1"); A("v_lshlrev_b32 v3, 2, v1")
    A("s_waitcnt lgkmcnt(0)")
    stamp("karg")
    if lnwave == 3:
        srd_p(SA, 4)
        A(f"buffer_load_dwordx4 v[20:23], v9, {SA}, 0 offen"); A(f"buffer_load_dword v24, v3, {SA}, 0 offen offset:1024")
    A(f"s_load_dword s{sTAG}, s[26:27], 0")
    A("s_cmpk_ge_u32 s2, 240"); A("s_cbranch_scc1 L_h3skip")
    if earlybar: A("s_barrier")
    srd_p(SB, 16); srd_p(SC, 18)
    for G in range(8):
        A(f"buffer_load_dwordx4 v[{48+8*G}:{51+8*G}], v8, {SB}, s{sG} offen {pol}")
        A(f"buffer_load_dwordx4 v[{52+8*G}:{55+8*G}], v8, {SC}, s{sG} offen {pol}")
        if G < 7: A(f"s_addk_i32 s{sG}, 3072" if p1 >> 2 == 0 else (f"s_addk_i32 s{sG}, {8*3072}" if p1 >> 2 == 2 else f"s_add_u32 s{sG}, s{sG}, 245760"))
        if G == bar3 - 1 and not earlybar: A("s_barrier")
    stamp("h1issued")
    if lnwave == 3:
        A("s_waitcnt vmcnt(16)")
        A("s_branch L_ln")
        A("L_h3skip:")
        A("s_barrier")
        A("s_waitcnt vmcnt(0)")
        A("s_branch L_ln")
    else:
        A("s_branch L_h3b")
        A("L_h3skip:")
        A("s_barrier")
        A("s_branch L_h3i")
    base_st = list(st1); stl[:] = st0

    D = 48
    A("L_main:")
    C("---- waves 4..11: 64 keys each, eight groups of eight rows")
    A("s_setprio 2")
    A("v_mov_b32 v36, 0")
    if pf:
        A(f"s_cmp_lg_u32 s{sW}, {pfw}"); A("s_cbranch_scc1 L_nopf")
        C("pull this kernel's own code into L2: four lines per workgroup")
        A(f"s_getpc_b64 s[{sT+1}:{sT+2}]")
        A("L_pfbase:")
        A(f"s_lshr_b32 s{sT}, s2, 3"); A(f"s_lshl_b32 s{sT}, s{sT}, 7")
        A("v_and_b32 v2, 3, v1"); A(f"v_lshl_add_u32 v2, v2, 12, s{sT}")
        A("v_min_u32 v2, L_code_end-L_pfbase-4, v2")
        A(f"global_load_dword v47, v2, s[{sT+1}:{sT+2}]")
        A("L_nopf:")
    A("v_lshlrev_b32 v3, 2, v1")
    A("ds_write2st64_b32 v3, v36, v36 offset1:1", "clear the flag area")
    C("group index = 256*((wave>>3) ^ (head&1)) + 32*g + ((8*(wave&3) + split + 9*g) & 31): one contiguous window per head")
    A(f"s_and_b32 s{sT}, s{sW}, 3"); A(f"s_lshl_b32 s{sT}, s{sT}, 3"); A(f"s_add_u32 s{sT}, s{sT}, s{sSPLIT}")
    A(f"s_lshr_b32 s{sT+1}, s{sW}, 3"); A(f"s_lshl_b32 s{sT+1}, s{sT+1}, 8")
    if hm == 1:
        A(f"s_lshl_b32 s{sT+2}, s{sHEAD}, 8"); A(f"s_xor_b32 s{sT+1}, s{sT+1}, s{sT+2}"); A(f"s_and_b32 s{sT+1}, s{sT+1}, 256")
    elif hm:
        A(f"s_and_b32 s{sT+2}, s{sHEAD}, {hm}"); A(f"s_bcnt1_i32_b32 s{sT+2}, s{sT+2}"); A(f"s_lshl_b32 s{sT+2}, s{sT+2}, 8")
        A(f"s_xor_b32 s{sT+1}, s{sT+1}, s{sT+2}"); A(f"s_and_b32 s{sT+1}, s{sT+1}, 256")
    if rev: A(f"s_sub_u32 s{sT+1}, 480, s{sT+1}")
    if hoff:
        A(f"s_mul_i32 s{sT+2}, s{sHEAD}, {hoff}"); A(f"s_add_u32 s{sT+1}, s{sT+1}, s{sT+2}"); A(f"s_and_b32 s{sT+1}, s{sT+1}, 511")
    if lay: A(f"s_lshl_b32 s{sT+1}, s{sT+1}, 3")
    A(f"s_add_u32 s{sG}, s{sT}, s{sT+1}"); A(f"s_mulk_i32 s{sG}, {384 if lay else 3072}")
    A(f"s_mul_i32 s{sT+3}, s{sHEAD}, 12582912"); A(f"s_add_u32 s{sT+3}, s{sT+3}, 11010048")
    A(f"v_mul_u32_u24 v2, {32*384 if lay else 384}, v45"); A("v_lshl_add_u32 v2, v46, 4, v2")
    srd_c(SA, 4096 * 384)
    A("s_waitcnt lgkmcnt(0)")
    if ka: A("s_load_dwordx2 s[26:27], s[0:1], 88")
    stamp("karg")
    if lnwave != 3:
        A(f"s_cmp_lg_u32 s{sW}, {lnwave}"); A("s_cbranch_scc1 L_nox")
        srd(SB, 4, 1280)
        A("v_lshlrev_b32 v8, 4, v1")
        if xlate or earlybar: A("s_barrier")
        if xlate or earlybar: A("s_setprio 3")
        A(f"buffer_load_dwordx4 v[20:23], v8, {SB}, 0 offen {xpol}"); A(f"buffer_load_dword v24, v3, {SB}, 0 offen offset:1024 {xpol}")
        if xlate or earlybar: A("s_setprio 2")
        else: A("s_barrier")
        A("s_branch L_ln")
        A("L_nox:")
        A("s_barrier")
        A("L_lnback:")
    else:
        A("s_barrier")
    srd_p(SA, 6, sT + 3)
    if not tagl and not ka: A(f"s_load_dword s{sTAG}, s[26:27], 0")
    if tlb:
        A(f"s_cmp_lg_u32 s{sW}, 9"); A("s_cbranch_scc1 L_notlb")
        A(f"s_add_u32 s{sT+4}, s{sT+3}, s{sG}")
        A(f"s_load_dword s3, s[8:9], s{sT+4}")
        if tlb > 1:
            A(f"s_mul_i32 s{sT+4}, s2, {24*1280}"); A(f"s_load_dword s3, s[12:13], s{sT+4}")
            A(f"s_mul_i32 s{sT+4}, s2, {6*1280}"); A(f"s_load_dword s3, s[20:21], s{sT+4}")
        A("L_notlb:")
    stamp("barrier")
    for g in range(8):
        for j in range(3):
            r = D + 12 * g + 4 * j
            A(f"buffer_load_dwordx4 v[{r}:{r+3}], v2, {SA}, s{sG+g} offen offset:{128*j} {pol}")
            if g < 7:
                if j == 0: A(f"s_add_u32 s{sT}, s{sT}, {rotk}"); A(f"s_{'sub' if rev else 'add'}_u32 s{sT+1}, s{sT+1}, {256 if lay else 32}")
                if j == 0 and hoff: A(f"s_and_b32 s{sT+1}, s{sT+1}, {4095 if lay else 511}")
                if j == 1: A(f"s_and_b32 s{sT+2}, s{sT}, 31"); A(f"s_add_u32 s{sG+g+1}, s{sT+2}, s{sT+1}")
                if j == 2: A(f"s_mulk_i32 s{sG+g+1}, {384 if lay else 3072}")
            else:
                if j == 0: srd_p(SB, 8, sT + 3)
                if j == 1: srd_c(SB, 4096 * 384)
        if g == 0: stamp("k3issued")
    A("s_setprio 3")
    stamp("kissued")
    if ka:
        A("s_waitcnt lgkmcnt(0)")
        if not tagl: A(f"s_load_dword s{sTAG}, s[26:27], 0")
    srd(WS, 26, WS_BYTES)
    masks()
    A("v_lshlrev_b32 v37, 4, v46")
    for g in range(8): A(f"v_mov_b32 v{8+g}, 0")
    ldspoll("L_mq", L_QCNT, 3, [f"ds_read_b128 v[{16+4*j}:{19+4*j}], v37 offset:{L_Q+128*j}" for j in range(3)], 36, 38)
    if not tagl: gettag()
    stamp("qseen")
    C("scores")
    for g in range(0, 8, 2):
        A(f"s_waitcnt vmcnt({18 - 3*g})")
        for k in range(12):
            for gg in (g, g + 1):
                A(f"v_dot2c_f32_bf16 v{8+gg}, v{D+12*gg+k}, v{16+k}")
    stamp("kdone")
    for dp in ("quad_perm:[1,0,3,2]", "quad_perm:[2,3,0,1]", "row_half_mirror"):
        for g in range(8): A(f"v_add_f32_dpp v{8+g}, v{8+g}, v{8+g} {dp} {DPPF}")
    for k in range(4): A(f"v_cvt_pk_bf16_f32 v{28+k}, v{8+2*k}, v{9+2*k}")
    for k in range(4): unpack(8 + 2 * k, 9 + 2 * k, 28 + k)
    for g in range(8): A(f"v_mul_f32 v{8+g}, {f32(192 ** -0.5)}, v{8+g}")
    for k in range(4): A(f"v_cvt_pk_bf16_f32 v{28+k}, v{8+2*k}, v{9+2*k}")
    for k in range(4): unpack(8 + 2 * k, 9 + 2 * k, 28 + k)
    C("maximum and sum of exponentials of this wave's 64 keys")
    A("v_max3_f32 v40, v8, v9, v10"); A("v_max3_f32 v41, v11, v12, v13"); A("v_max3_f32 v40, v40, v14, v15"); A("v_max_f32 v40, v40, v41")
    allred("v_max_f32", 40, 41, [8, 16, 32])
    for g in range(8): A(f"v_sub_f32 v{28+g}, v{8+g}, v40")
    for g in range(8): A(f"v_mul_f32 v{28+g}, {f32(LOG2E)}, v{28+g}")
    for g in range(8): A(f"v_exp_f32 v{28+g}, v{28+g}")
    for k in range(4): A(f"v_add_f32 v{28+k}, v{28+k}, v{32+k}")
    A("v_add_f32 v28, v28, v29"); A("v_add_f32 v30, v30, v31"); A("v_add_f32 v41, v28, v30")
    allred("v_add_f32", 41, 42, [8, 16, 32])
    A(f"s_lshl_b32 s{sT}, s{sW}, 3"); A(f"v_mov_b32 v3, s{sT}"); A("v_mov_b32 v38, 1")
    A("s_mov_b64 exec, 1")
    A(f"ds_write_b64 v3, v[40:41] offset:{L_ST - 32}")
    A(f"ds_add_u32 v36, v38 offset:{L_KCNT}")
    A("s_mov_b64 exec, -1")
    stamp("e0pub")
    C("V rows of the same keys into the same registers")
    A("s_setprio 1")
    for g in range(8):
        for j in range(3):
            r = D + 12 * g + 4 * j
            A(f"buffer_load_dwordx4 v[{r}:{r+3}], v2, {SB}, s{sG} offen {pol}")
            if j < 2: A(f"s_addk_i32 s{sG}, 128")
            elif g < 7: A(f"s_mov_b32 s{sG}, s{sG+g+1}")
        if g == 2: stamp("v4")
    lds_signal("ds_add_u32", 36, 38, L_VCNT)
    A("s_setprio 3")
    stamp("vissued")
    C("v39 = partial write offset, v37 / v0 = partial read offsets, v3 = publish offset")
    A("v_bfe_u32 v39, v1, 4, 1"); A("v_lshlrev_b32 v39, 4, v39"); A("v_lshl_add_u32 v39, v46, 5, v39")
    A("v_lshrrev_b32 v3, 5, v1"); A("v_lshl_add_u32 v39, v3, 3, v39")
    A(f"s_mul_i32 s{sT}, s{sW}, 768"); A(f"v_add_u32 v39, s{sT}, v39")
    A("v_mul_u32_u24 v0, 3072, v3"); A("v_and_b32 v37, 31, v1"); A("v_lshl_add_u32 v0, v37, 3, v0")
    A("v_lshlrev_b32 v3, 12, v3"); A("v_lshl_add_u32 v3, v37, 4, v3")
    A("v_lshlrev_b32 v37, 3, v1")
    A(f"s_mul_i32 s{sT}, s{sHEAD}, {3*4096}"); A(f"s_lshl_b32 s{sT+1}, s{sSPLIT}, 9"); A(f"s_add_u32 s{sT}, s{sT}, s{sT+1}")
    A(f"s_add_u32 s{sT}, s{sT}, {E1}"); A(f"s_add_u32 s{sT+1}, s{sT}, 8192")
    C("softmax weights with the maximum and the sum of the whole head")
    ldspoll("L_ms", L_SFLAG, 1, [f"ds_read_b96 v[40:42], v36 offset:{L_M}"] + ([f"ds_read_b32 v43, v36 offset:{L_TAG}"] if tagl else []), 36, 38)
    stamp("sseen")
    A(f"v_readfirstlane_b32 s{sLOC}, v42")
    for g in range(8): A(f"v_sub_f32 v{8+g}, v{8+g}, v40")
    for g in range(8): A(f"v_mul_f32 v{8+g}, {f32(LOG2E)}, v{8+g}")
    for g in range(8): A(f"v_exp_f32 v{8+g}, v{8+g}")
    for g in range(8): A(f"v_mul_f32 v{8+g}, v{8+g}, v41")
    for g in range(8): A(f"v_cvt_pk_bf16_f32 v{8+g}, v{8+g}, v{8+g}")
    if tagl:
        for r in (41, 45, 47): A(f"v_mov_b32 v{r}, v43")
    else:
        A(f"s_add_u32 s{sTAGX}, s{sTAG}, 16", "second use of the q lines: another tag")
        for r in (41, 43, 45, 47): A(f"v_mov_b32 v{r}, s{sTAGX}")
    def pv_out(j):
        a = 16 + 4 * j
        fold(a, a, a + 1, ["s_nop 0"])
        A(f"s_mov_b64 exec, {PUB}")
        A(f"ds_write_b64 v39, v[{a}:{a+1}] offset:{L_OACC - 4*768 + 256*j}")
        if j < 2: A("s_mov_b64 exec, -1")
    for g in range(8):
        a = 28 + 4 * (g & 1)
        for j in range(4): A(f"v_and_b32 v{a+j}, v{8+g}, v{4+j}")
        for j in range(3):
            A(f"s_waitcnt vmcnt({3 * (7 - g) + (2 - j)})")
            if j == 0: A("s_nop 0")
            mfma(16 + 4 * j, a, D + 12 * g + 4 * j, g == 0)
            if pvint and g == 7 and j == 1:
                A("s_nop 5"); pv_out(0)
    stamp("mfmadone")
    if pvint:
        pv_out(1); pv_out(2)
    else:
        A("s_nop 3")
        for j in range(3):
            a = 16 + 4 * j
            A(f"v_permlane32_swap_b32 v{a}, v{a+2}"); A(f"v_permlane32_swap_b32 v{a+1}, v{a+3}")
        for j in range(3):
            a = 16 + 4 * j
            A(f"v_add_f32_dpp v{a}, v{a+2}, v{a} row_ror:8 {DPPF}"); A(f"v_add_f32_dpp v{a+1}, v{a+3}, v{a+1} row_ror:8 {DPPF}")
        A(f"s_mov_b64 exec, {PUB}")
        for j in range(3):
            A(f"ds_write_b64 v39, v[{16+4*j}:{17+4*j}] offset:{L_OACC - 4*768 + 256*j}")
    A("s_mov_b64 exec, 1")
    A(f"ds_add_rtn_u32 v38, v36, v38 offset:{L_OCNT}")
    A("s_mov_b64 exec, -1")
    C("the wave that arrives last adds the eight partials and publishes them")
    for w in range(8): A(f"ds_read_b64 v[{48+2*w}:{49+2*w}], v37 offset:{L_OACC + 768*w}")
    for w in range(4): A(f"ds_read_b64 v[{64+2*w}:{65+2*w}], v0 offset:{L_OACC + 768*w + 512}")
    A("s_waitcnt lgkmcnt(4)" if not stamps else "s_waitcnt lgkmcnt(0)")
    A(f"v_readfirstlane_b32 s{sT+2}, v38")
    for (x, y) in ((48, 50), (52, 54), (56, 58), (60, 62), (48, 52), (56, 60)):
        A(f"v_pk_add_f32 v[{x}:{x+1}], v[{x}:{x+1}], v[{y}:{y+1}]")
    A(f"s_cmp_lg_u32 s{sT+2}, 7"); A("s_cbranch_scc1 L_main_end")
    A("v_add_f32 v40, v48, v56"); A("v_add_f32 v42, v49, v57")
    def third():
        A("s_waitcnt lgkmcnt(0)")
        A("v_pk_add_f32 v[64:65], v[64:65], v[66:67]"); A("v_pk_add_f32 v[68:69], v[68:69], v[70:71]")
        A("v_pk_add_f32 v[64:65], v[64:65], v[68:69]")
        A("s_nop 1")
        A("v_permlane32_swap_b32 v64, v66"); A("v_permlane32_swap_b32 v65, v67")
        A("v_add_f32 v44, v64, v66"); A("v_add_f32 v46, v65, v67")
        A("s_mov_b32 exec_hi, 0")
    A(f"s_cmp_lg_u32 s{sLOC}, 1"); A("s_cbranch_scc1 L_e4far")
    A(f"buffer_store_dwordx4 v[40:43], v3, {WS}, s{sT} offen {'nt' if e4nt & 1 else 'sc0' if e4nt & 4 else ''}")
    third()
    A(f"buffer_store_dwordx4 v[44:47], v3, {WS}, s{sT+1} offen {'nt' if e4nt & 1 else 'sc0' if e4nt & 4 else ''}")
    A("L_e4done:")
    A("s_mov_b64 exec, 1")
    A(f"ds_write_b32 v36, v38 offset:{L_PUB}")
    stamp("e4pub")
    A("L_main_end:")
    if fm == 3:
        C("wave 4 adds the gate partial once the wo loads are out")
        A(f"s_cmp_lg_u32 s{sW}, 4"); A("s_cbranch_scc1 L_main_end2")
        A("s_cmpk_ge_u32 s2, 240"); A("s_cbranch_scc1 L_main_end2")
        A("s_mov_b64 exec, -1")
        roles()
        accoff(sG + 1, sC10, sG + 3)
        A("v_lshrrev_b32 v3, 1, v1"); A("v_lshlrev_b32 v3, 2, v3"); A(f"v_add_u32 v3, {L_FACC}, v3")
        A(f"s_mov_b32 s{base(EVEN)}, 0x55555555"); A(f"s_mov_b32 s{base(EVEN)+1}, s{base(EVEN)}")
        ldspoll("L_gw", L_WI if fgate == "w" else L_PUB, 4 if fgate == "w" else 7, [], 36, 38)
        if fgate != "w": ldspoll("L_gw2", L_WI, 4, [], 36, 38)
        A("ds_read2_b32 v[10:11], v3 offset1:32"); A("s_waitcnt lgkmcnt(0)")
        A(f"v_cndmask_b32 v10, 1.0, v10, {EVEN}"); A(f"v_cndmask_b32 v11, 1.0, v11, {EVEN}")
        A("v_cvt_f64_f32 v[80:81], v10"); A("v_cvt_f64_f32 v[82:83], v11")
        A(f"buffer_atomic_add_f64 v[80:81], v37, {WS}, s{sG+1} offen offset:1024 sc1")
        A(f"buffer_atomic_add_f64 v[82:83], v37, {WS}, s{sG+1} offen offset:1536 sc1")
        A("L_main_end2:")
    dump_stamps()
    A("s_endpgm")
    A("L_e4far:")
    A(f"buffer_store_dwordx4 v[40:43], v3, {WS}, s{sT} offen sc1")
    third()
    A(f"buffer_store_dwordx4 v[44:47], v3, {WS}, s{sT+1} offen sc1")
    A("s_branch L_e4done")

    A("L_ln:")
    C("---- layer norm of x, rounded step by step to bf16, into LDS")
    if lnwave != 3: A("s_waitcnt vmcnt(0)")
    X1, X2 = (112, 124) if lnwave == 3 else (48, 60)
    if xlds: A(f"ds_write_b128 v{9 if lnwave == 3 else 8}, v[20:23] offset:{L_XR}"); A(f"ds_write_b32 v3, v24 offset:{L_XR + 1024}")
    for k in range(5): unpack(X1 + 2 * k, X1 + 1 + 2 * k, 20 + k)
    for k in range(4): A(f"v_pk_add_f32 v[40:41], v[{40 if k else X1}:{41 if k else X1+1}], v[{X1+2+2*k}:{X1+3+2*k}]")
    A("v_add_f32 v40, v40, v41")
    allred("v_add_f32", 40, 41, ALL)
    A(f"v_mul_f32 v40, {f32(1/640)}, v40")
    for k in range(10): A(f"v_sub_f32 v{X2+k}, v{X1+k}, v40")
    A(f"v_mul_f32 v42, v{X2}, v{X2}"); A(f"v_mul_f32 v43, v{X2+1}, v{X2+1}")
    for k in range(2, 10): A(f"v_fmac_f32 v{42 + k % 2}, v{X2+k}, v{X2+k}")
    A("v_add_f32 v42, v42, v43")
    allred("v_add_f32", 42, 41, ALL)
    A(f"v_mul_f32 v42, {f32(1/640)}, v42")
    A("v_cvt_pk_bf16_f32 v41, v40, v42")
    unpack(40, 42, 41)
    A(f"v_add_f32 v42, {f32(1e-5)}, v42")
    A("v_cvt_pk_bf16_f32 v42, v42, v42"); A("v_lshlrev_b32 v42, 16, v42")
    A("v_sqrt_f32 v42, v42")
    for k in range(10): A(f"v_sub_f32 v{X1+k}, v{X1+k}, v40")
    A("v_cvt_pk_bf16_f32 v42, v42, v42"); A("v_lshlrev_b32 v42, 16, v42")
    A("v_rcp_f32 v42, v42")
    for k in range(5): A(f"v_cvt_pk_bf16_f32 v{20+k}, v{X1+2*k}, v{X1+1+2*k}")
    for k in range(5): unpack(X1 + 2 * k, X1 + 1 + 2 * k, 20 + k)
    for k in range(10): A(f"v_mul_f32 v{X1+k}, v{X1+k}, v42")
    for k in range(5): A(f"v_cvt_pk_bf16_f32 v{20+k}, v{X1+2*k}, v{X1+1+2*k}")
    A("v_mov_b32 v38, 1")
    if lnwave == 3: A("v_mov_b32 v36, 0")
    A(f"ds_write_b128 v{9 if lnwave == 3 else 8}, v[20:23] offset:{L_XN}"); A(f"ds_write_b32 v3, v24 offset:{L_XN + 1024}")
    lds_signal("ds_write_b32", 36, 38, L_XF)
    if lnwave == 3:
        A("s_cmpk_ge_u32 s2, 240"); A("s_cbranch_scc1 L_h3i")
        A("s_branch L_h3b")
    else:
        A("s_branch L_lnback")

    stl[:] = base_st
    A("L_h012b:")
    C("---- waves 0..2: partial q, exchange inside the head, q into LDS")
    roles()
    masks()
    helper_addrs()
    xn_dups(10, [f"s_mul_i32 s{sT}, s{sSPLIT}, 160", f"s_add_u32 s{sT}, s{sT}, {L_XN}", f"v_mul_u32_u24 v3, {2 if p1 == 10 else 20}, v45", f"v_add_u32 v3, s{sT}, v3"])
    gettag(True)
    stamp("lndone")
    for G in range(10):
        a = 20 + 4 * (G & 1)
        for j in range(4): A(f"v_and_b32 v{a+j}, v{8+G}, v{4+j}")
        A(f"s_waitcnt vmcnt({9-G})"); A("s_nop 0")
        mfma(28, a, 48 + 4 * G, G == 0)
    A(f"s_mul_i32 s{sT}, s{sHEAD}, 3"); A(f"s_add_u32 s{sT}, s{sT}, s{sW}"); A(f"s_lshl_b32 s{sT}, s{sT}, 12"); A(f"s_add_u32 s{sT}, s{sT}, {E1}")
    A(f"s_lshl_b32 s{sT+1}, s{sSPLIT}, 9"); A(f"s_add_u32 s{sT+1}, s{sT+1}, s{sT}")
    A(f"s_mov_b32 s{sTHR}, 0")
    A(f"v_mov_b32 v33, s{sTAGX}")
    fold(28, 32, 34, [f"v_mov_b32 v35, s{sTAGX}"])
    A(f"s_mov_b64 exec, {PUB}")
    A(f"buffer_store_dwordx4 v[32:35], v18, {WS}, s{sT+1} offen")
    A("s_mov_b64 exec, -1")
    stamp("e1pub")
    def e1slow():
        C("some producer of this head is (or may be) on another die: write through and accept any die id")
        A(f"s_cmp_lg_u32 s{sTHR}, 0"); A("s_cbranch_scc1 L_p1_giveup")
        A(f"s_mov_b32 s{sTHR}, 15"); A(f"s_mov_b32 s{sSPIN}, {GTRIES}")
        A(f"s_mov_b64 exec, {PUB}")
        A(f"buffer_store_dwordx4 v[32:35], v18, {WS}, s{sT+1} offen sc1")
        A("s_mov_b64 exec, -1")
        A("s_branch L_p1")
        A("L_p1_giveup:")
    gather8("L_p1", sT, e1sleep, sTAGX, thr=f"s{sTHR}", tries=n1, onfail=e1slow)
    A("v_cvt_pk_bf16_f32 v96, v118, v119")
    A("v_and_b32 v3, 3, v1"); A("v_lshlrev_b32 v3, 4, v3"); A("v_lshl_add_u32 v3, v0, 1, v3")
    A(f"s_lshl_b32 s{sT}, s{sW}, 7"); A(f"v_add_u32 v3, s{sT}, v3")
    A(f"ds_write_b32 v3, v96 offset:{L_Q}")
    A("v_mov_b32 v38, 1")
    lds_signal("ds_add_u32", 44, 38, L_QCNT)
    stamp("qready")
    A(f"s_cmp_lg_u32 s{sW}, 2"); A("s_cbranch_scc1 L_wo")
    C("---- wave 2: softmax maximum and sum of the head")
    A("v_lshlrev_b32 v3, 4, v1"); A(f"s_lshl_b32 s{sT}, s{sHEAD}, 10"); A(f"s_add_u32 s{sT}, s{sT}, {E0}")
    A("v_lshlrev_b32 v39, 3, v46")
    A(f"v_mov_b32 v41, s{sTAG}"); A(f"v_mov_b32 v43, s{sTAG}")
    A(f"s_lshl_b32 s{sT+1}, s{sSPLIT}, 7"); A(f"s_add_u32 s{sT+1}, s{sT+1}, s{sT}")
    ldspoll("L_gl", L_LOC, 0, [], 44, 37, cmp="eq")
    A(f"v_readfirstlane_b32 s{sLOC}, v37")
    ldspoll("L_gk", L_KCNT, 8, [f"ds_read_b32 v40, v39 offset:{L_ST}", f"ds_read_b32 v42, v39 offset:{L_ST+4}"], 44, 37)
    A("s_mov_b64 exec, 0xff")
    flavoured([f"buffer_store_dwordx4 v[40:43], v3, {WS}, s{sT+1} offen"])
    A("s_mov_b64 exec, -1")
    poll("L_p0", [f"buffer_load_dwordx4 v[96:99], v3, {WS}, s{sT} offen sc1"], [96], e0sleep)
    A("v_mov_b32 v40, v96")
    allred("v_max_f32", 40, 41, ALL)
    A("v_sub_f32 v96, v96, v40"); A(f"v_mul_f32 v96, {f32(LOG2E)}, v96"); A("v_exp_f32 v96, v96"); A("s_nop 0")
    A("v_mul_f32 v42, v96, v98")
    allred("v_add_f32", 42, 41, ALL)
    A("v_rcp_f32 v41, v42")
    A("s_mov_b64 exec, 1")
    A(f"ds_write_b64 v44, v[40:41] offset:{L_M}")
    if tagl:
        A("v_add_u32 v43, 16, v43", "second use of the q lines: another tag"); A(f"ds_write_b32 v44, v43 offset:{L_TAG}")
    A(f"ds_write_b32 v44, v38 offset:{L_SFLAG}")
    A("s_mov_b64 exec, -1")
    stamp("stats")
    A("s_branch L_wo")
    A("L_h3i:")
    C("---- wave 3 of workgroups 240..249: clear the accumulators of one column block, then say so")
    helper_addrs()
    A("s_cmpk_ge_u32 s2, 250"); A("s_cbranch_scc1 L_h3c")
    A(f"s_sub_u32 s{sT}, s2, 240"); A(f"s_lshl_b32 s{sT+1}, s{sT}, 7"); A(f"s_add_u32 s{sT+1}, s{sT+1}, {RDY}")
    assert f64 and not lred
    accoff(sT, sT, sT + 2)
    for k in range(4): A(f"v_mov_b32 v{20+k}, 0")
    A("v_lshlrev_b32 v3, 4, v1")
    A(f"buffer_store_dwordx4 v[20:23], v3, {WS}, s{sT} offen sc1")
    A(f"buffer_store_dwordx4 v[20:23], v3, {WS}, s{sT+(3 if acc1 else 0)} offen offset:{FO} sc1")
    A("s_waitcnt vmcnt(0) lgkmcnt(0)")
    A(f"s_and_b32 s{sT}, s{sTAG}, -16"); A(f"s_add_u32 s{sT}, s{sT}, {TAGK:#x}")
    for k in range(4): A(f"v_mov_b32 v{24+k}, s{sT}")
    A("s_mov_b64 exec, 0xff")
    A(f"buffer_store_dwordx4 v[24:27], v3, {WS}, s{sT+1} offen sc1")
    A("s_mov_b64 exec, -1")
    A("s_branch L_h3c")
    A("L_h3b:")
    C("---- wave 3: partial gate / up")
    masks()
    helper_addrs()
    xn_dups(8, [f"s_lshl_b32 s{sT}, s{sC10}, 7", f"s_add_u32 s{sT}, s{sT}, {L_XN}", f"v_lshl_add_u32 v3, v45, {1 if p1 == 10 else 4}, s{sT}"])
    for G in range(8):
        a = 20 + 4 * (G & 1)
        for j in range(4): A(f"v_and_b32 v{a+j}, v{8+G}, v{4+j}")
        A(f"s_waitcnt vmcnt({14-2*G})"); A("s_nop 0")
        for m in range(2): mfma(28 + 4 * m, a, 48 + 8 * G + 4 * m, G == 0)
    A("L_h3c:")
    if holdmin:
        A("s_waitcnt lgkmcnt(0)")
        A("s_not_b32 s3, s90" if holdmin == 1 else "s_mov_b32 s3, s90"); A("v_mov_b32 v2, s3"); A("v_mov_b32 v3, 0")
        A("s_mov_b64 exec, 1"); A("global_atomic_umax v3, v2, s[24:25] sc1"); A("s_mov_b64 exec, -1")
    C("do all 32 workgroups with this id & 7 sit on this die?  Their q partials carry their die ids")
    A("v_and_b32 v3, 3, v1"); A(f"v_mul_u32_u24 v3, {8*3*4096}, v3"); A("v_lshrrev_b32 v2, 2, v1"); A("v_lshl_add_u32 v3, v2, 9, v3")
    A(f"s_and_b32 s{sT}, s2, 7"); A(f"s_mul_i32 s{sT}, s{sT}, {3*4096}"); A(f"s_add_u32 s{sT}, s{sT}, {E1}")
    ldspoll("L_gq", L_QCNT, 3, [], 44, 47)
    gettag(True)
    A(f"s_mov_b32 s{sLOC}, 1")
    A("s_mov_b32 exec_hi, 0")
    poll("L_pl", [f"buffer_load_dwordx4 v[96:99], v3, {WS}, s{sT} offen sc1"], [96], 8, tag=sTAGX, tries=6, onfail=lambda: A(f"s_mov_b32 s{sLOC}, 2"))
    A(f"v_mov_b32 v47, s{sLOC}")
    lds_signal("ds_write_b32", 44, 47, L_LOC)
    stamp("probe")
    A("s_cmpk_ge_u32 s2, 240"); A("s_cbranch_scc1 L_light" if lred else "s_cbranch_scc1 L_help_end")
    A(f"s_mul_i32 s{sG}, s{sRB}, 10240"); A(f"s_add_u32 s{sG}, s{sG}, {E2}")
    A(f"s_add_u32 s{sG+1}, s{sG}, 4096"); A(f"s_add_u32 s{sG+2}, s{sG}, 8192")
    A(f"s_lshl_b32 s{sT}, s{sC10}, 10"); A(f"s_add_u32 s{sT}, s{sT}, s{sG}")
    fold(28, 36, 38, [f"v_mov_b32 v37, s{sTAG}", f"v_mov_b32 v39, s{sTAG}"])
    fold(32, 40, 42, [f"v_mov_b32 v41, s{sTAG}", f"v_mov_b32 v43, s{sTAG}"])
    A(f"s_mov_b64 exec, {PUB}")
    if e2far:
        A(f"buffer_store_dwordx4 v[36:39], v18, {WS}, s{sT} offen sc1"); A(f"buffer_store_dwordx4 v[40:43], v18, {WS}, s{sT} offen offset:512 sc1")
    else:
        flavoured([f"buffer_store_dwordx4 v[36:39], v18, {WS}, s{sT} offen", f"buffer_store_dwordx4 v[40:43], v18, {WS}, s{sT} offen offset:512"])
    A("s_mov_b64 exec, -1")
    C("hidden block and its 64 x 64 piece of w2")
    A(f"s_mul_i32 s{sT}, s{sRB}, {64*1280}"); A(f"s_lshl_b32 s{sT+1}, s{sC10}, 7"); A(f"s_add_u32 s{sT}, s{sT}, s{sT+1}")
    srd(SB, 20, 1536 * 1280)
    A(f"v_mul_u32_u24 v2, 1280, v0"); A("v_lshl_add_u32 v2, v46, 4, v2")
    ldspoll("L_gk3", L_KCNT, 8, [], 44, 47)
    if not w2late:
        for G in range(8):
            A(f"buffer_load_dwordx4 v[{48+4*G}:{51+4*G}], v2, {SB}, s{sT} offen {pol}")
            if G < 7: A(f"s_addk_i32 s{sT}, {1280 if G % 2 == 0 else 7*1280}")
    else:
        A(f"s_mov_b32 s{sG+5}, s{sT}"); A("v_mov_b32 v35, v2")
    poll("L_p2", [f"buffer_load_dwordx4 v[{96+4*i}:{99+4*i}], v19, {WS}, s{sG + (i>>2)} offen offset:{1024*(i&3)} sc1" for i in range(10)],
         [96 + 4 * i for i in range(10)], 16)
    for (x, y) in ((0, 1), (2, 3), (4, 5), (6, 7), (8, 9), (0, 2), (4, 6), (0, 8), (0, 4)):
        A(f"v_add_f32 v{96+4*x}, v{96+4*x}, v{96+4*y}"); A(f"v_add_f32 v{98+4*x}, v{98+4*x}, v{98+4*y}")
    A("v_cvt_pk_bf16_f32 v96, v96, v98")
    A("v_mov_b32 v97, v96"); A("v_mov_b32 v98, v96")
    A("v_mov_b32_dpp v97, v96 row_shr:4 row_mask:0xf bank_mask:0xa", "gate pair")
    A("v_mov_b32_dpp v98, v96 row_shl:4 row_mask:0xf bank_mask:0x5", "up pair")
    unpack(100, 101, 97); unpack(102, 103, 98)
    silu2(100, 104)
    A("v_cvt_pk_bf16_f32 v97, v100, v101"); unpack(100, 101, 97)
    A("v_mul_f32 v100, v100, v102"); A("v_mul_f32 v101, v101, v103")
    A("v_cvt_pk_bf16_f32 v8, v100, v100"); A("v_cvt_pk_bf16_f32 v9, v101, v101")
    A(f"s_add_u32 s{sT+1}, s{sT+1}, {RDY}")
    def w2finish():
        if lred:
            unit_mfma([f"s_and_b32 s{sT}, s2, 7", f"s_mul_i32 s{sT}, s{sT}, 10", f"s_add_u32 s{sT}, s{sT}, s{sC10}", f"s_mul_i32 s{sT}, s{sT}, 3",
                       f"s_add_u32 s{sT}, s{sT}, s{sRBL}", f"s_lshl_b32 s{sT}, s{sT}, 9", f"s_add_u32 s{sT}, s{sT}, {E3}"])
            fold(28, 36, 38, ["s_nop 0"])
            A(f"s_mov_b64 exec, {PUB}")
            flavoured([f"buffer_store_dwordx4 v[36:39], v18, {WS}, s{sT} offen"])
            A("s_mov_b64 exec, -1")
        else:
            unit_mfma(["v_lshrrev_b32 v34, 1, v18", "v_lshrrev_b32 v3, 1, v1", "v_lshlrev_b32 v3, 2, v3", f"v_add_u32 v3, {L_FACC}, v3", "v_mov_b32 v10, 1.0", "v_mov_b32 v11, 1.0"], 120 if w2late else 48)
            fold(28, 28, 29, ["s_nop 0"])
            A(f"s_mov_b64 exec, {PUB}")
            A(f"ds_write_b64 v34, v[28:29] offset:{L_FACC}")
            if not fm:
                A("s_mov_b32 exec_lo, 0x55555555"); A("s_mov_b32 exec_hi, 0x55555555")
                A("ds_read2_b32 v[10:11], v3 offset1:32", "even lanes: value, odd lanes: 1.0 (arrival count)")
            A("s_mov_b64 exec, -1")
    if not w2late: w2finish()
    C("the accumulators must have been cleared in this launch")
    A(f"s_mov_b32 s{sSPIN}, {GTRIES}")
    A("L_pr:")
    A(f"s_load_dwordx2 s[{sP}:{sP+1}], s[26:27], s{sT+1} glc")
    A("s_waitcnt lgkmcnt(0)")
    A(f"s_xor_b32 s{sP}, s{sP}, s{sTAG}"); A(f"s_xor_b32 s{sP+1}, s{sP+1}, s{sTAG}"); A(f"s_or_b32 s{sP}, s{sP}, s{sP+1}")
    A("s_cbranch_scc0 L_wo")
    A("s_sleep 4")
    A(f"s_sub_u32 s{sSPIN}, s{sSPIN}, 1")
    A("s_cbranch_scc0 L_pr")
    timeout("L_pr")
    A("L_wo:")
    C("---- waves 0..3: a 64 x 64 piece of wo each")
    A("s_cmpk_ge_u32 s2, 240"); A("s_cbranch_scc1 L_light" if lred else "s_cbranch_scc1 L_help_end")
    A(f"s_lshl_b32 s{sT+2}, s{sRBL}, 2"); A(f"s_add_u32 s{sT+2}, s{sT+2}, s{sW}", "b = 4*rbl + wave")
    A(f"s_mul_i32 s{sT}, s{sT+2}, 86"); A(f"s_lshr_b32 s{sT}, s{sT}, 8")
    A(f"s_mul_i32 s{sT}, s{sT}, 21"); A(f"s_add_u32 s{sT+2}, s{sT+2}, s{sT}")
    A(f"s_and_b32 s{sT}, s2, 7"); A(f"s_mul_i32 s{sT}, s{sT}, 3"); A(f"s_add_u32 s{sT+2}, s{sT+2}, s{sT}", "64-row block = 3*head + b % 3")
    A(f"s_mul_i32 s{sT}, s{sT+2}, {64*1280}"); A(f"s_lshl_b32 s{sG+2}, s{sC10}, 7"); A(f"s_add_u32 s{sT}, s{sT}, s{sG+2}")
    srd(SB, 12, 6144 * 1280); srd(SC, 22, 1280)
    if not xlds: srd(SA, 4, 1280)
    A(f"v_mul_u32_u24 v2, {[8*1280, 128, 1280][wp]}, v45"); A("v_lshl_add_u32 v2, v46, 4, v2")
    if wp == 1: A(f"s_lshl_b32 s{sT}, s2, 2"); A(f"s_add_u32 s{sT}, s{sT}, s{sW}"); A(f"s_lshl_b32 s{sT}, s{sT}, 13")
    A(f"s_lshl_b32 s{sG}, s{sT+2}, 12"); A(f"s_add_u32 s{sG}, s{sG}, {E1}")
    accoff(sG + 1, sC10, sG + 3)
    A("v_lshrrev_b32 v37, 1, v18"); A(f"s_lshl_b32 s{sT+2}, s{sW}, 8"); A(f"v_add_u32 v37, s{sT+2}, v37")
    A("v_lshrrev_b32 v36, 1, v1"); A("v_lshlrev_b32 v36, 2, v36"); A(f"v_add_u32 v36, {L_WACC}, v36")
    C("v16 = byte offset of this lane pair's first output column, v17 = accumulator offset")
    A("v_bfe_u32 v16, v1, 2, 3"); A("v_lshlrev_b32 v16, 4, v16"); A("v_lshrrev_b32 v17, 5, v1"); A("v_lshl_add_u32 v16, v17, 3, v16")
    A("v_and_b32 v17, 2, v1"); A("v_add_u32 v16, v16, v17")
    A(f"v_lshlrev_b32 v17, {3 if f64 else 2}, v1")
    A(f"s_add_u32 s{sTAGX}, s{sTAG}, 16")
    A(f"s_mov_b32 s{base(EVEN)}, 0x55555555"); A(f"s_mov_b32 s{base(EVEN)+1}, s{base(EVEN)}")
    A("v_mov_b32 v40, 1.0"); A("v_mov_b32 v41, 1.0")
    if gmode & 1: A("v_mov_b32 v12, 0"); A("v_mov_b32 v13, 0")
    if f64: A("v_mov_b32 v42, 0x40370000", "high word of 23.0"); A("v_mov_b32 v43, 0x40200000" if lred else "v_mov_b32 v43, 0x40380000", "high word of the complete gate count")
    else: A(f"v_mov_b32 v42, {f32(23.0)}"); A(f"v_mov_b32 v43, {f32(24.0)}")
    def woload(G):
        A(f"buffer_load_dwordx4 v[{48+4*G}:{51+4*G}], v2, {SB}, s{sT} offen {pol}")
        if G < 7: A(f"s_addk_i32 s{sT}, {[1280, 1024, 10240][wp]}")
    if xlds:
        A(f"v_add_u32 v3, s{sG+2}, v16")
        ldspoll("L_gk4", L_KCNT, 8, [f"ds_read_u16 v14, v3 offset:{L_XR}", f"ds_read_u16 v15, v3 offset:{L_XR+4}"], 44, 47)
    else:
        ldspoll("L_gk4", L_KCNT, 8, [], 44, 47)
        A(f"buffer_load_ushort v14, v16, {SA}, s{sG+2} offen"); A(f"buffer_load_ushort v15, v16, {SA}, s{sG+2} offen offset:4")
    if otouch:
        A(f"s_cmp_lg_u32 s{sW}, 0"); A("s_cbranch_scc1 L_noot")
        A("s_mov_b64 exec, 1")
        A(f"buffer_load_ushort v39, v16, {SC}, s{sG+2} offen", "translation of the output page")
        A("s_mov_b64 exec, -1")
        A("L_noot:")
    for G in range(wo_early): woload(G)
    ldspoll("L_gv", L_VCNT, 8, [], 44, 47)
    if w2late:
        A(f"s_cmp_lg_u32 s{sW}, 3"); A("s_cbranch_scc1 L_now2")
        srd(SA, 20, 1536 * 1280)
        for G in range(8):
            A(f"buffer_load_dwordx4 v[{120+4*G}:{123+4*G}], v35, {SA}, s{sG+5} offen {pol}")
            if G < 7: A(f"s_addk_i32 s{sG+5}, {1280 if G % 2 == 0 else 7*1280}")
        A("L_now2:")
    for G in range(wo_early, 8): woload(G)
    stamp("woissued")
    if fm == 3:
        A("v_mov_b32 v47, 1"); lds_signal("ds_add_u32", 44, 47, L_WI)
    elif fm:
        A("v_mov_b32 v10, 1.0"); A("v_mov_b32 v11, 1.0"); A(f"v_add_u32 v35, {L_FACC - L_WACC}, v36")
    if not lred and not fm:
        A(f"s_cmp_lg_u32 s{sW}, 3"); A("s_cbranch_scc1 L_nof3")
        if w2late:
            A(f"s_waitcnt vmcnt({8 - wo_early})")
            w2finish()
            A("s_waitcnt lgkmcnt(0)")
        if f64:
            A("v_cvt_f64_f32 v[80:81], v10"); A("v_cvt_f64_f32 v[82:83], v11")
            A(f"buffer_atomic_add_f64 v[80:81], v17, {WS}, s{sG+(4 if acc1 else 1)} offen offset:{FO} sc1")
            A(f"buffer_atomic_add_f64 v[82:83], v17, {WS}, s{sG+(4 if acc1 else 1)} offen offset:{FO+512} sc1")
        else:
            A(f"buffer_atomic_add_f32 v10, v17, {WS}, s{sG+1} offen offset:512 sc1")
            A(f"buffer_atomic_add_f32 v11, v17, {WS}, s{sG+1} offen offset:768 sc1")
        A("L_nof3:")
    if stamps and "wol" in stamps:
        A(f"s_cmp_lg_u32 s{sW}, 1"); A("s_cbranch_scc1 L_nowol")
        A("s_waitcnt vmcnt(0)")
        stamp("wol")
        A("L_nowol:")
    if tal:
        A("s_branch L_tail")
        A(".p2align 12")
        A("L_tail:")
    ldspoll("L_go", L_PUB, 7, [], 44, 47, sleep=not t4)
    A("v_mov_b32 v47, 1")
    gather8("L_p4", sG, 0, sTAGX)
    stamp("e4seen")
    A("v_cvt_pk_bf16_f32 v8, v118, v118"); A("v_cvt_pk_bf16_f32 v9, v119, v119")
    A("s_nop 0")
    unit_mfma([])
    fold(28, 28, 29, ["s_nop 0"])
    A(f"s_mov_b64 exec, {PUB}")
    A(f"ds_write_b64 v37, v[28:29] offset:{L_WACC}")
    A("s_mov_b64 exec, 1")
    A(f"ds_add_rtn_u32 v47, v44, v47 offset:{L_WCNT}")
    A(f"s_mov_b64 exec, {EVEN}")
    if fm in (1, 2): A("ds_read2_b32 v[10:11], v35 offset1:32")
    for w in range(4): A(f"ds_read2_b32 v[{20+2*w}:{21+2*w}], v36 offset0:{64*w} offset1:{64*w+32}")
    A("s_waitcnt lgkmcnt(0)")
    A(f"v_readfirstlane_b32 s{sT}, v47")
    A("v_pk_add_f32 v[20:21], v[20:21], v[22:23]"); A("v_pk_add_f32 v[24:25], v[24:25], v[26:27]")
    A(f"s_cmp_lg_u32 s{sT}, 3"); A("s_cbranch_scc1 L_help_end")
    C("last wave of the workgroup: add {value, 1.0} pairs to the accumulators; whoever sees 23 earlier arrivals finishes the column")
    def gload(first=False):
        if f64:
            A(f"buffer_load_dwordx2 v[84:85], v17, {WS}, s{sG+(4 if acc1 else 1)} offen offset:{FO} sc1"); A(f"buffer_load_dwordx2 v[86:87], v17, {WS}, s{sG+(4 if acc1 else 1)} offen offset:{FO+512} sc1")
        elif gmode & 1:
            if not first: A("v_mov_b32 v12, 0"); A("v_mov_b32 v13, 0")
            A(f"buffer_atomic_add_f32 v12, v17, {WS}, s{sG+1} offen offset:512 sc0 sc1"); A(f"buffer_atomic_add_f32 v13, v17, {WS}, s{sG+1} offen offset:768 sc0 sc1")
        else:
            p = "sc0 sc1 nt" if gmode & 4 else "sc1"
            A(f"buffer_load_dword v12, v17, {WS}, s{sG+1} offen offset:512 {p}"); A(f"buffer_load_dword v13, v17, {WS}, s{sG+1} offen offset:768 {p}")
    def gcalc():
        if f64:
            A("v_cvt_f32_f64 v12, v[84:85]"); A("v_cvt_f32_f64 v13, v[86:87]")
            A(f"v_cmp_ne_u32 s[{sP+2}:{sP+3}], v85, v43"); A(f"v_cmp_ne_u32 s[{sP+4}:{sP+5}], v87, v43")
        else:
            A(f"v_cmp_ne_u32 s[{sP+2}:{sP+3}], v12, v43"); A(f"v_cmp_ne_u32 s[{sP+4}:{sP+5}], v13, v43")
        A("v_cvt_pk_bf16_f32 v22, v12, v13")
        unpack(12, 13, 22)
        silu2(12, 24)
        A(f"s_or_b64 s[{sP+2}:{sP+3}], s[{sP+2}:{sP+3}], s[{sP+4}:{sP+5}]")
        A("v_cvt_pk_bf16_f32 v22, v12, v13")
        A(f"s_andn2_b64 s[{sP+2}:{sP+3}], s[{sP+2}:{sP+3}], {EVEN}", "count lanes that are not complete")
        unpack(12, 13, 22)
    A("v_pk_add_f32 v[40:41], v[20:21], v[24:25]")
    A("s_mov_b64 exec, -1")
    def fatom():
        A("v_cvt_f64_f32 v[84:85], v10"); A("v_cvt_f64_f32 v[86:87], v11")
        A(f"buffer_atomic_add_f64 v[84:85], v17, {WS}, s{sG+1} offen offset:1024 sc0 sc1")
        A(f"buffer_atomic_add_f64 v[86:87], v17, {WS}, s{sG+1} offen offset:1536 sc0 sc1")
    if fm == 1: fatom()
    elif fm in (0, 3) and not gmode & 10: gload(True)
    if f64:
        A("v_cvt_f64_f32 v[88:89], v40"); A("v_cvt_f64_f32 v[90:91], v41")
        A(f"buffer_atomic_add_f64 v[88:89], v17, {WS}, s{sG+1} offen sc0 sc1")
        A(f"buffer_atomic_add_f64 v[90:91], v17, {WS}, s{sG+1} offen offset:512 sc0 sc1")
    else:
        A(f"buffer_atomic_add_f32 v40, v17, {WS}, s{sG+1} offen sc0 sc1")
        A(f"buffer_atomic_add_f32 v41, v17, {WS}, s{sG+1} offen offset:256 sc0 sc1")
    if gmode & 2: gload(True)
    if fm == 2: fatom()
    if fm in (1, 2): A("v_cvt_f64_f32 v[80:81], v10"); A("v_cvt_f64_f32 v[82:83], v11")
    stamp("e5pub")
    if f64: A("v_cvt_f64_f32 v[92:93], v40"); A("v_cvt_f64_f32 v[94:95], v41")
    else: A("v_pk_add_f32 v[20:21], v[20:21], v[24:25]")
    A("v_lshlrev_b32 v14, 16, v14"); A("v_lshlrev_b32 v15, 16, v15")
    A(f"s_mov_b32 s{sSPIN}, {GTRIES}")
    if gmode & 8: A(f"s_mov_b64 s[{sP+2}:{sP+3}], -1")
    else:
        A("s_waitcnt vmcnt(0)" if gmode & 2 or fm == 2 else "s_waitcnt vmcnt(2)")
        if fm in (1, 2): A("v_add_f64 v[84:85], v[84:85], v[80:81]"); A("v_add_f64 v[86:87], v[86:87], v[82:83]")
        gcalc()
    def after_atomic(first=False):
        A("s_waitcnt vmcnt(0)")
        if first: stamp("atdone")
        A("v_add_f64 v[92:93], v[92:93], v[88:89]"); A("v_add_f64 v[94:95], v[94:95], v[90:91]")
        A("v_cmp_eq_u32 vcc, v89, v42"); A(f"v_cmp_eq_u32 s[{sP}:{sP+1}], v91, v42")
        A("v_cvt_f32_f64 v20, v[92:93]"); A("v_cvt_f32_f64 v21, v[94:95]")
        A("s_lshr_b64 vcc, vcc, 1"); A(f"s_lshr_b64 s[{sP}:{sP+1}], s[{sP}:{sP+1}], 1")
        A("v_cvt_pk_bf16_f32 v23, v20, v21")
    if t2:
        A(f"s_cmp_lg_u64 s[{sP+2}:{sP+3}], 0"); A("s_cbranch_scc1 L_glate")
        after_atomic(True)
    else:
        A("s_waitcnt vmcnt(0)")
        stamp("atdone")
        if f64:
            A("v_add_f64 v[92:93], v[92:93], v[88:89]"); A("v_add_f64 v[94:95], v[94:95], v[90:91]")
            A("v_cmp_eq_u32 vcc, v89, v42"); A(f"v_cmp_eq_u32 s[{sP}:{sP+1}], v91, v42")
            A("v_cvt_f32_f64 v20, v[92:93]"); A("v_cvt_f32_f64 v21, v[94:95]")
        else:
            A("v_cmp_eq_f32 vcc, v40, v42"); A(f"v_cmp_eq_f32 s[{sP}:{sP+1}], v41, v42")
            A("v_pk_add_f32 v[20:21], v[20:21], v[40:41]")
        A("s_lshr_b64 vcc, vcc, 1"); A(f"s_lshr_b64 s[{sP}:{sP+1}], s[{sP}:{sP+1}], 1")
        A("v_cvt_pk_bf16_f32 v23, v20, v21")
        A(f"s_cmp_lg_u64 s[{sP+2}:{sP+3}], 0"); A("s_cbranch_scc1 L_glate")
    A("L_gok:")
    unpack(20, 21, 23)
    A("v_pk_mul_f32 v[20:21], v[20:21], v[12:13]")
    A("v_cvt_pk_bf16_f32 v22, v20, v21")
    unpack(20, 21, 22)
    A("v_pk_add_f32 v[20:21], v[20:21], v[14:15]")
    A("v_cvt_pk_bf16_f32 v22, v20, v21")
    if holdmin:
        A("s_load_dwordx2 s[96:97], s[0:1], 80"); A("s_waitcnt lgkmcnt(0)")
        A("s_load_dword s90, s[96:97], 0 glc"); A("s_waitcnt lgkmcnt(0)")
        if holdmin == 1: A("s_not_b32 s90, s90")
    if hold:
        A("L_hold:"); A("s_memrealtime s[96:97]"); A("s_waitcnt lgkmcnt(0)"); A("s_sub_u32 s96, s96, s90")
        A(f"s_cmp_lt_u32 s96, {hold}"); A("s_cbranch_scc1 L_hold")
    A(f"s_and_b64 exec, vcc, {EVEN}"); A("s_cbranch_execz L_no0")
    A(f"buffer_store_short v22, v16, {SC}, s{sG+2} offen {outp}")
    A("L_no0:")
    A(f"s_and_b64 exec, s[{sP}:{sP+1}], {EVEN}"); A("s_cbranch_execz L_no1")
    A(f"buffer_store_short_d16_hi v22, v16, {SC}, s{sG+2} offen offset:4 {outp}")
    A(f"s_cmp_lg_u32 s{sC10}, 0"); A("s_cbranch_scc1 L_no1")
    A("s_and_b64 exec, exec, 1"); A("s_cbranch_execz L_no1")
    C("every wave of the launch has read the old word by now: leave this launch's tag for the next one to step past")
    A(f"v_mov_b32 v49, s{sTAG}")
    A(f"buffer_store_dword v49, v44, {WS}, 0 offen")
    A("L_no1:")
    if stamps: A("s_waitcnt vmcnt(0)")
    stamp("end")
    A("L_help_end:")
    dump_stamps()
    A("L_end:")
    A("s_endpgm")
    A("L_glate:")
    C("the gate sums are not complete yet: only a wave that finishes some column waits for them")
    if t2: after_atomic()
    A(f"s_or_b64 s[{sP+4}:{sP+5}], vcc, s[{sP}:{sP+1}]"); A(f"s_and_b64 s[{sP+4}:{sP+5}], s[{sP+4}:{sP+5}], {EVEN}")
    A("s_cbranch_scc0 L_help_end")
    A("L_gre:")
    gload()
    A("s_waitcnt vmcnt(0)")
    gcalc()
    A(f"s_cmp_eq_u64 s[{sP+2}:{sP+3}], 0"); A("s_cbranch_scc1 L_gok")
    A(f"s_sub_u32 s{sSPIN}, s{sSPIN}, 1")
    A("s_cbranch_scc0 L_gre")
    timeout("L_gre")
    if diag:
        A("v_lshlrev_b32 v166, 2, v1"); A("v_add_u32 v166, 1024, v166")
        gload(); A("s_waitcnt vmcnt(0)")
        A("global_store_dword v166, v12, s[100:101]"); A("global_store_dword v166, v13, s[100:101] offset:256")
        print(codes)
    A("s_endpgm")
    if lred:
        A("L_light:")
        C("---- workgroups 240..255: add the three w2 partials of their group, one atomic contribution per group and column block")
        A(f"s_bfe_u32 s{sC10}, s2, 0x10003"); A(f"s_mul_i32 s{sC10}, s{sC10}, 5"); A(f"s_add_u32 s{sRB}, s{sC10}, 5"); A(f"s_add_u32 s{sC10}, s{sC10}, s{sW}")
        A("v_lshlrev_b32 v17, 3, v1"); A("v_lshrrev_b32 v16, 1, v1"); A("v_lshlrev_b32 v16, 3, v16")
        A(f"s_mov_b32 s{base(EVEN)}, 0x55555555"); A(f"s_mov_b32 s{base(EVEN)+1}, s{base(EVEN)}")
        if lgate == "s": ldspoll("L_lg", L_SFLAG, 1, [], 44, 47)
        elif lgate == "v": ldspoll("L_lg", L_VCNT, 8, [], 44, 47)
        A("L_lnext:")
        A(f"s_and_b32 s{sT}, s2, 7"); A(f"s_mul_i32 s{sT}, s{sT}, 10"); A(f"s_add_u32 s{sT}, s{sT}, s{sC10}"); A(f"s_mul_i32 s{sT}, s{sT}, 1536"); A(f"s_add_u32 s{sT}, s{sT}, {E3}")
        A(f"s_lshl_b32 s{sT+1}, s{sC10}, 7"); A(f"s_add_u32 s{sT+1}, s{sT+1}, {RDY}")
        A(f"s_lshl_b32 s{sT+2}, s{sC10}, 11"); A(f"s_add_u32 s{sT+2}, s{sT+2}, {ACC + 1024}")
        A(f"s_mov_b32 s{sSPIN}, {GTRIES}")
        A("L_lp:")
        A(f"s_load_dwordx2 s[{sP}:{sP+1}], s[26:27], s{sT+1} glc")
        for k in range(6): A(f"buffer_load_dwordx2 v[{48+2*k}:{49+2*k}], v16, {WS}, s{sT} offen offset:{256*k} sc1")
        A("s_waitcnt vmcnt(0) lgkmcnt(0)")
        for k in range(3): A(f"v_bitop3_b32 v{49+4*k}, s{sTAG}, v{49+4*k}, v{51+4*k} bitop3:0x7e")
        A(f"s_xor_b32 s{sP}, s{sP}, s{sTAG}"); A(f"s_xor_b32 s{sP+1}, s{sP+1}, s{sTAG}"); A(f"s_or_b32 s{sP}, s{sP}, s{sP+1}")
        A("v_or3_b32 v49, v49, v53, v57"); A(f"v_or_b32 v49, s{sP}, v49")
        A("v_cmp_ne_u32 vcc, 0, v49")
        A("s_cbranch_vccz L_lp_ok")
        A("s_sleep 8")
        A(f"s_sub_u32 s{sSPIN}, s{sSPIN}, 1")
        A("s_cbranch_scc0 L_lp")
        A("L_lp_ok:")
        A("v_add_f32 v48, v48, v52"); A("v_add_f32 v50, v50, v54"); A("v_add_f32 v48, v48, v56"); A("v_add_f32 v50, v50, v58")
        A(f"v_cndmask_b32 v48, 1.0, v48, {EVEN}"); A(f"v_cndmask_b32 v50, 1.0, v50, {EVEN}")
        A("v_cvt_f64_f32 v[60:61], v48"); A("v_cvt_f64_f32 v[62:63], v50")
        A(f"buffer_atomic_add_f64 v[60:61], v17, {WS}, s{sT+2} offen sc1")
        A(f"buffer_atomic_add_f64 v[62:63], v17, {WS}, s{sT+2} offen offset:512 sc1")
        A(f"s_add_u32 s{sC10}, s{sC10}, 4"); A(f"s_cmp_lt_u32 s{sC10}, s{sRB}"); A("s_cbranch_scc1 L_lnext")
        A("s_branch L_help_end")
    A("L_code_end:")
    A('.section .rodata,"a"'); A(".p2align 6")
    A(f".amdhsa_kernel {NAME}_kernel")
    A("  .amdhsa_next_free_vgpr 168"); A(f"  .amdhsa_next_free_sgpr {102 if diag else 100}"); A("  .amdhsa_accum_offset 168")
    A("  .amdhsa_group_segment_fixed_size 0"); A("  .amdhsa_kernarg_size 96"); A("  .amdhsa_user_sgpr_count 2")
    A("  .amdhsa_user_sgpr_kernarg_segment_ptr 1"); A("  .amdhsa_system_sgpr_workgroup_id_x 1")
    A("  .amdhsa_float_denorm_mode_32 3")
    A(".end_amdhsa_kernel")
    if nox: L = [("v_mov_b32 v20, v1" if ("v[20:23], v8" in l and "buffer_load" in l) or "buffer_load_dword v24" in l else l) for l in L]
    return "\n".join(L) + "\n"

SETS = {
  "A": dict(start=[(0,0)], e1pub=[(0,1)], qready=[(0,2)], e0pub=[(4,3),(11,4)], stats=[(2,5)], kissued=[(4,6),(11,12)], vissued=[(11,7)], e4pub=[(None,8)],
            woissued=[(0,9)], e4seen=[(0,10)], probe=[(3,11)], atdone=[(None,13)], lndone=[(0,14)]),
  "V": dict(start=[(0,0)], e4pub=[(None,1)], woissued=[(0,2)], e4seen=[(0,3),(1,4),(2,5),(3,6)], e5pub=[(None,7)], atdone=[(None,8)], end=[(None,9)], mfmadone=[(8,10),(9,11),(10,12),(11,13)], stats=[(2,14)]),
  "P": dict(start=[(0,0)], e4pub=[(None,1)], woissued=[(0,2)], vissued=[(4,3),(5,4),(6,5),(7,6),(8,8),(11,9)], e5pub=[(None,7)], v4=[(8,10),(9,11),(10,12),(11,13)], wol=[(1,14)]),
  "S": dict(start=[(0,0),(4,1)], karg=[(0,2),(3,3),(4,4),(11,5)], h1issued=[(0,6),(2,7),(3,8)], barrier=[(0,9),(4,10)], k3issued=[(4,11)], lndone=[(0,12)], e1pub=[(0,13)], kissued=[(4,14)]),
}
def build(out, **kw):
    import hazard, os
    ref = "cdna_kernels/" + NAME + ".s.ref"
    hdr = open(ref).read().split("; Override launch")[0] if os.path.exists(ref) else ""
    if kw.get("stamps"): kw["stamps"] = SETS[kw["stamps"]]
    t = gen(**kw)
    for x in hazard.check(t)[:30]: print("HAZARD", x)
    open(out, "w").write(hdr + t)
if __name__ == "__main__":
    import ast
    kw = {}
    for a in sys.argv[2:]:
        k, v = a.split("=", 1)
        try: kw[k] = ast.literal_eval(v)
        except Exception: kw[k] = v
    build(sys.argv[1], **kw)
```

```python
import gen4
n = []
def mk(x, **kw): gen4.build(f"zf_{x}.s", **kw); n.append(f"zf_{x}.s")
mk("base"); mk("fm3", fm=3); mk("fm3p", fm=3, fgate="p"); mk("fm3we1", fm=3, wo_early=1); mk("fm3we3", fm=3, wo_early=3); mk("we0", wo_early=0)
print(" ".join(n))
```

```python
import sys, struct
NAME = "recurrent_scan__sliding_block_cached__glu_gated_swiglu__decode"

def f32(x): return "0x%08x" % struct.unpack("<I", struct.pack("<f", x))[0]

E0, ACC, RDY, E1, E2 = 0x1000, 0xA000, 0xF000, 0x10000, 0x70000
E3 = E2 + 24 * 10240
WS_BYTES = E3 + 240 * 512
TAGK = 0x9E3779B0
L_QCNT, L_OCNT, L_SFLAG, L_XF, L_M, L_LOC, L_KCNT, L_VCNT, L_WCNT, L_PUB, L_TAG, L_WI, L_ST = 0, 4, 8, 12, 16, 24, 28, 32, 36, 40, 44, 48, 64
L_Q, L_WACC, L_FACC, L_XN, L_OACC = 512, 1024, 2048, 2304, 3584
L_XR = L_OACC + 8 * 768
LDS_BYTES = L_XR + 1280
DPPF = "row_mask:0xf bank_mask:0xf"
LOG2E = 1.4426950408889634
GTRIES, LTRIES = 0x20000, 0x800000

DOC = """
One launch, 256 workgroups of 12 waves, one workgroup per CU; every byte of K, V and the weights is read once.
  workgroup id b: head = b & 31, split = b >> 5 (512 keys); group = b & 7 (32 workgroups, four heads).
  waves 4..11 : 64 keys each.  K rows -> registers, scores (v_dot2c), V rows -> same registers, P.V on the matrix core.
  waves 0..2  : 80 x 64 piece of wq -> partial q, exchanged inside the head; wave 2 also exchanges the softmax max / sum.
  wave 3      : 64 x 64 pieces of w1, w3 and w2 (workgroups < 240).
  waves 0..3  : 64 x 64 piece of wo each (workgroups < 240).
A row-major [8 rows][64 columns] tile is one 16-byte load per lane and one v_mfma_f32_16x16x32_bf16 whose A operand holds
the row weight in slot (lane & 7) only (masks v4..v7).  All intermediate values are rounded to bf16 where the reference does.
Hand-offs between workgroups go through d_ws as 8-byte {value, tag} granules.  The tag is the word at d_ws[0] plus a step;
the launch leaves its tag there, so granules of an earlier launch never match.  Stores are plain only when the readers are
known to share this L2 (die ids travel in the tags of the q partials); otherwise they are written through (sc1).
The last two sums (wo and w2 partials) are f64 device-scope atomic adds of {value, 1.0} pairs on accumulators cleared in this
launch; the adder that sees all other arrivals finishes that output column.  Every wait is bounded.
"""
def gen(stamps=None, pol="nt", wo_early=2, hold=0, e1sleep=4, e0sleep=8, bar3=5, n1=24, forceslow=False, rotk=9,
        lnwave=8, pf=True, pvint=True, diag=False, tlb=0, rev=False, gmode=0, otouch=0, f64=True, holdmin=0, lred=False, lgate="s", xlds=True, pad=0, al=12, tal=0, earlybar=False, xlate=True, xpol="", pfw=5, probe_gate="q", nox=False, tagl=False, skip="", ackw=True, hoff=0, lay=0, ka=0, hm=1, p1=10, wp=0, w2late=False, acc1=False, t1=False, t2=True, t4=False, e2far=False, e4nt=0, outp="", fm=0, fgate="w", xtag=True):
    L = []
    WS_BYTES = E3 + (240 * 512 if lred else 0)
    AC1 = 0xD0000
    if acc1: WS_BYTES = AC1 + 0x10000
    FO = 0 if acc1 else 1024
    def accoff(dst, c, tmp):
        if acc1:
            A(f"s_lshr_b32 s{tmp}, s{c}, 3"); A(f"s_lshl_b32 s{tmp}, s{tmp}, 3"); A(f"s_add_u32 s{tmp}, s{tmp}, s{c}")
            A(f"s_lshl_b32 s{dst}, s{tmp}, 10"); A(f"s_add_u32 s{dst}, s{dst}, {AC1}"); A(f"s_add_u32 s{dst+3}, s{dst}, 0x8000")
        else:
            A(f"s_lshl_b32 s{dst}, s{c}, 11"); A(f"s_add_u32 s{dst}, s{dst}, {ACC}")
    def A(x, c=None): L.append(x.rstrip() if c is None else f"{x:<72}; {c}")
    def C(x): L.append("; " + x)
    sW, sTAG, sHEAD, sSPLIT = 28, 29, 30, 31
    WS, SA, SB, SC = "s[32:35]", "s[36:39]", "s[40:43]", "s[44:47]"
    sRB, sC10, sSPIN = 48, 49, 50
    sT = 51
    sG = 56
    sRBL, sTAGX = 66, 67
    sST = 68
    sTHR, sLOC = 88, 89
    sP = 92
    PUB, EVEN = "s[14:15]", "s[24:25]"
    nst = [0]; stl = []
    def stamp(name):
        if not stamps or name not in stamps: return
        r = sST + 2 * len(stl)
        assert len(stl) < 10
        stl.append(stamps[name])
        A(f"s_memrealtime s[{r}:{r+1}]")
    def dump_stamps():
        if not stamps: return
        A("s_waitcnt lgkmcnt(0)")
        A(f"s_lshl_b32 s{sT}, s2, 7"); A(f"s_add_u32 s{sT}, s{sT}, {64<<20}")
        A(f"s_add_u32 s{sT+1}, s26, s{sT}"); A(f"s_addc_u32 s{sT+2}, s27, 0")
        A("s_mov_b64 exec, 1")
        A("v_mov_b32 v0, 0")
        for k, pairs in enumerate(stl):
            r = sST + 2 * k
            for (wv, slot) in pairs:
                lab2 = f"L_nost{nst[0]}"; nst[0] += 1
                if wv is not None:
                    A(f"s_cmp_lg_u32 s{sW}, {wv}"); A(f"s_cbranch_scc1 {lab2}")
                else:
                    A(f"s_cmp_eq_u32 s{r}, 0"); A(f"s_cbranch_scc1 {lab2}")
                A(f"v_mov_b32 v2, s{r}"); A(f"v_mov_b32 v3, s{r+1}")
                A(f"global_store_dwordx2 v0, v[2:3], s[{sT+1}:{sT+2}] offset:{8*slot}")
                A(f"{lab2}:")
    codes = {}
    def timeout(label):
        if not diag: return
        c = codes.setdefault(label, len(codes))
        A("s_load_dwordx2 s[100:101], s[0:1], 80"); A("s_waitcnt lgkmcnt(0)")
        A(f"v_mov_b32 v166, {4*c}"); A(f"s_lshl_b32 s3, s2, 4"); A(f"s_add_u32 s3, s3, s{sW}"); A("s_add_u32 s3, s3, 0x10000"); A("v_mov_b32 v167, s3")
        A("global_store_dword v166, v167, s[100:101]"); A("s_waitcnt vmcnt(0)")
    def base(n): return int(n[2:n.index(":")])
    def srd_c(name, size):
        b = base(name); A(f"s_mov_b32 s{b+2}, {size}"); A(f"s_mov_b32 s{b+3}, 0x20000")
    def srd_p(name, lo, off=None):
        b = base(name)
        if off is None: A(f"s_mov_b64 s[{b}:{b+1}], s[{lo}:{lo+1}]")
        else: A(f"s_add_u32 s{b}, s{lo}, s{off}"); A(f"s_addc_u32 s{b+1}, s{lo+1}, 0")
    def srd(name, lo, size): srd_p(name, lo); srd_c(name, size)
    def masks():
        C("v4..v7: keep one bf16 slot (lane & 7) of the eight a lane supplies to the matrix core")
        A("v_and_b32 v3, 1, v1"); A("v_lshlrev_b32 v3, 4, v3"); A("v_mov_b32 v7, 0xffff"); A("v_lshlrev_b32 v3, v3, v7")
        A("v_bfe_u32 v7, v1, 1, 2")
        A("v_cmp_eq_u32 vcc, 0, v7"); A(f"v_cmp_eq_u32 s[{sP}:{sP+1}], 1, v7"); A(f"v_cmp_eq_u32 s[{sP+2}:{sP+3}], 2, v7")
        A("v_cndmask_b32 v4, 0, v3, vcc")
        A("v_cmp_eq_u32 vcc, 3, v7")
        A(f"v_cndmask_b32 v5, 0, v3, s[{sP}:{sP+1}]"); A(f"v_cndmask_b32 v6, 0, v3, s[{sP+2}:{sP+3}]")
        A("v_cndmask_b32 v7, 0, v3, vcc")
        A(f"s_mov_b32 s{base(PUB)}, 0x00ff00ff"); A(f"s_mov_b32 s{base(PUB)+1}, s{base(PUB)}")
    def allred(op, x, t, steps):
        dp = {1: "quad_perm:[1,0,3,2]", 2: "quad_perm:[2,3,0,1]", 4: "row_ror:4", 8: "row_ror:8"}
        for s in steps:
            if s in dp:
                A("s_nop 1"); A(f"{op}_dpp v{x}, v{x}, v{x} {dp[s]} {DPPF}")
            else:
                A(f"v_mov_b32 v{t}, v{x}"); A("s_nop 1"); A(f"v_permlane{s}_swap_b32 v{x}, v{t}"); A(f"{op} v{x}, v{x}, v{t}")
    ALL = [1, 2, 8, 4, 16, 32]
    def unpack(lo, hi, src):
        A(f"v_lshlrev_b32 v{lo}, 16, v{src}"); A(f"v_and_b32 v{hi}, 0xffff0000, v{src}")
    def loadtag():
        A(f"s_load_dword s{sTAG}, s[26:27], 0")
        if xtag: A("s_load_dword s3, s[4:5], 0")
    def maketag(dst, tmp):
        if xtag:
            A(f"s_mul_i32 s{tmp}, s3, 0x9e3779b1"); A(f"s_lshr_b32 s{tmp}, s{tmp}, 2"); A(f"s_bitset1_b32 s{tmp}, 30")
            A(f"s_add_u32 s{dst}, s{sTAG}, s{tmp}"); A(f"s_and_b32 s{dst}, s{dst}, -16", "hand-off tag of this launch: old word + a step in [2^30, 2^31)")
        else:
            A(f"s_and_b32 s{dst}, s{sTAG}, -16"); A(f"s_add_u32 s{dst}, s{dst}, {TAGK:#x}", "hand-off tag of this launch")
    def gettag(x=False):
        maketag(sTAG, sTAGX)
        if x:
            A(f"s_getreg_b32 s{sTAGX}, hwreg(HW_REG_XCC_ID, 0, 4)")
            if forceslow: A(f"s_lshr_b32 s{sTAGX}, s2, 4")
            A(f"s_or_b32 s{sTAGX}, s{sTAGX}, s{sTAG}", "tag that also names this die")
    def ortree(ts, dst=None):
        ts = list(ts)
        while len(ts) > 1:
            d = ts[0] if dst is None else dst
            if len(ts) >= 3:
                A(f"v_or3_b32 v{d}, v{ts[0]}, v{ts[1]}, v{ts[2]}"); ts = ts[3:] + [d]
            else:
                A(f"v_or_b32 v{d}, v{ts[0]}, v{ts[1]}"); ts = [d]
        return ts[0]
    def poll(label, loads, regs, sleep, tag=sTAG, tries=GTRIES, onfail=None):
        if label[-1] in skip:
            A("s_waitcnt vmcnt(0)"); return
        A(f"s_mov_b32 s{sSPIN}, {tries}")
        A(f"{label}:")
        for l in loads: A(l)
        A("s_waitcnt vmcnt(0)")
        for r in regs: A(f"v_bitop3_b32 v{r+1}, s{tag}, v{r+1}, v{r+3} bitop3:0x7e")
        t = ortree([r + 1 for r in regs])
        A(f"v_cmp_ne_u32 vcc, 0, v{t}")
        A(f"s_cbranch_vccz {label}_ok")
        if sleep: A(f"s_sleep {sleep}")
        A(f"s_sub_u32 s{sSPIN}, s{sSPIN}, 1")
        A(f"s_cbranch_scc0 {label}")
        timeout(label)
        if onfail: onfail()
        A(f"{label}_ok:")
    def gather8(label, soff, sleep, tag, thr="0", tries=GTRIES, onfail=None):
        loads = [f"buffer_load_dwordx4 v[{96+4*i}:{99+4*i}], v19, {WS}, s{soff} offen offset:{1024*i} sc1" + (" nt" if e4nt & 2 and label == "L_p4" else "") for i in range(4)]
        if label[-1] in skip:
            A("s_waitcnt vmcnt(0)"); return
        if ackw and label == "L_p1": A("s_waitcnt vmcnt(0)")
        A(f"s_mov_b32 s{sSPIN}, {tries}")
        for l in loads: A(l)
        if t1 and label == "L_p4":
            A(f"s_branch {label}_first")
            A(f"{label}:")
            A("s_waitcnt vmcnt(0)")
            A(f"{label}_first:")
            A("s_waitcnt vmcnt(2)")
            for k in range(2): A(f"v_bitop3_b32 v{112+k}, s{tag}, v{97+4*k}, v{99+4*k} bitop3:0x7e")
            A("v_add_f32 v116, v96, v100"); A("v_add_f32 v117, v98, v102")
            A("s_waitcnt vmcnt(1)")
            A(f"v_bitop3_b32 v114, s{tag}, v105, v107 bitop3:0x7e")
            A("v_or3_b32 v120, v112, v113, v114")
            A("s_waitcnt vmcnt(0)")
            A(f"v_bitop3_b32 v115, s{tag}, v109, v111 bitop3:0x7e")
            A("v_add_f32 v118, v104, v108"); A("v_add_f32 v119, v106, v110")
            A("v_or_b32 v120, v120, v115")
            A("v_pk_add_f32 v[116:117], v[116:117], v[118:119]")
            A(f"v_cmp_lt_u32 vcc, {thr}, v120")
            A(f"s_cbranch_vccz {label}_ok")
        else:
            A(f"{label}:")
            A("s_waitcnt vmcnt(0)")
            for k in range(4): A(f"v_bitop3_b32 v{112+k}, s{tag}, v{97+4*k}, v{99+4*k} bitop3:0x7e")
            ortree([112, 113, 114, 115], 116)
            A(f"v_cmp_lt_u32 vcc, {thr}, v116")
            A("v_add_f32 v116, v96, v100"); A("v_add_f32 v117, v98, v102"); A("v_add_f32 v118, v104, v108"); A("v_add_f32 v119, v106, v110")
            A(f"s_cbranch_vccz {label}_ok")
        for k in range(4): A(f"v_cmp_lt_u32 s[{sP+2*k}:{sP+2*k+1}], {thr}, v{112+k}")
        if sleep: A(f"s_sleep {sleep}")
        for k, l in enumerate(loads):
            A(f"s_mov_b64 exec, s[{sP+2*k}:{sP+2*k+1}]"); A(f"s_cbranch_execz {label}_s{k}")
            A(l)
            A(f"{label}_s{k}:")
        A("s_mov_b64 exec, -1")
        A(f"s_sub_u32 s{sSPIN}, s{sSPIN}, 1")
        A(f"s_cbranch_scc0 {label}")
        timeout(label)
        if onfail: onfail()
        A("s_waitcnt vmcnt(0)")
        A(f"{label}_ok:")
        if not (t1 and label == "L_p4"):
            A("v_pk_add_f32 v[116:117], v[116:117], v[118:119]")
            A("s_nop 1")
        A("v_add_f32_dpp v118, v116, v116 row_shl:4 row_mask:0xf bank_mask:0x5"); A("v_add_f32_dpp v119, v117, v117 row_shl:4 row_mask:0xf bank_mask:0x5")
        A("v_add_f32_dpp v118, v116, v116 row_shr:4 row_mask:0xf bank_mask:0xa"); A("v_add_f32_dpp v119, v117, v117 row_shr:4 row_mask:0xf bank_mask:0xa")
    def ldspoll(label, flag_off, want, reads, vz, vflag, cmp="ne", sleep=1):
        A(f"s_mov_b32 s{sSPIN}, {LTRIES}")
        A(f"{label}:")
        A(f"ds_read_b32 v{vflag}, v{vz} offset:{flag_off}")
        for l in reads: A(l)
        A("s_waitcnt lgkmcnt(0)")
        A(f"v_cmp_{cmp}_u32 vcc, {want}, v{vflag}")
        A(f"s_cbranch_vccz {label}_ok")
        if sleep: A("s_sleep 1")
        A(f"s_sub_u32 s{sSPIN}, s{sSPIN}, 1")
        A(f"s_cbranch_scc0 {label}")
        timeout("lds")
        A(f"{label}_ok:")
    def lds_signal(op, vz, vval, off):
        A("s_mov_b64 exec, 1"); A(f"{op} v{vz}, v{vval} offset:{off}"); A("s_mov_b64 exec, -1")
    def fold(acc, y0, y1, fill):
        A(f"v_permlane32_swap_b32 v{acc}, v{acc+2}")
        A(f"v_permlane32_swap_b32 v{acc+1}, v{acc+3}")
        for l in fill: A(l)
        A(f"v_add_f32_dpp v{y0}, v{acc+2}, v{acc} row_ror:8 {DPPF}")
        A(f"v_add_f32_dpp v{y1}, v{acc+3}, v{acc+1} row_ror:8 {DPPF}")
    nfl = [0]
    def flavoured(lines):
        lab = f"L_fl{nfl[0]}"; nfl[0] += 1
        A(f"s_cmp_eq_u32 s{sLOC}, 1"); A(f"s_cbranch_scc1 {lab}_p")
        for l in lines: A(l + " sc1")
        A(f"s_branch {lab}_e")
        A(f"{lab}_p:")
        for l in lines: A(l)
        A(f"{lab}_e:")
    def silu2(x, t):
        A(f"v_mul_f32 v{t}, {f32(-LOG2E)}, v{x}"); A(f"v_mul_f32 v{t+1}, {f32(-LOG2E)}, v{x+1}")
        A(f"v_exp_f32 v{t}, v{t}"); A(f"v_exp_f32 v{t+1}, v{t+1}")
        A(f"v_add_f32 v{t}, 1.0, v{t}"); A(f"v_add_f32 v{t+1}, 1.0, v{t+1}")
        A(f"v_rcp_f32 v{t}, v{t}"); A(f"v_rcp_f32 v{t+1}, v{t+1}")
        A(f"v_mul_f32 v{x}, v{x}, v{t}"); A(f"v_mul_f32 v{x+1}, v{x+1}, v{t+1}")
    def mfma(acc, a, b, first):
        A(f"v_mfma_f32_16x16x32_bf16 v[{acc}:{acc+3}], v[{a}:{a+3}], v[{b}:{b+3}], " + ("0" if first else f"v[{acc}:{acc+3}]"))
    def unit_mfma(tail, d0=48):
        for G in range(8):
            a = 20 + 4 * (G & 1); k = G >> 1
            for j in range(4):
                A(f"v_and_b32_dpp v{a+j}, v{8 + (G & 1)}, v{4+j} quad_perm:[{k},{k},{k},{k}] {DPPF}")
            if G > 0: mfma(28, 20 + 4 * ((G - 1) & 1), d0 + 4 * (G - 1), G == 1)
        A("s_nop 0")
        mfma(28, 24, d0 + 28, False)
        for l in tail: A(l)
        A(f"s_nop {7 - len(tail)}")
    def xn_dups(n, addr_setup):
        for l in addr_setup: A(l)
        if p1 == 10:
            ldspoll(f"L_gx{n}", L_XF, 1, [f"ds_read_u16 v{8+k}, v3 offset:{16*k}" for k in range(n)], 44, 47)
            for k in range(n): A(f"v_lshl_or_b32 v{8+k}, v{8+k}, 16, v{8+k}")
            return
        rd = [f"ds_read2_b32 v[{20+2*k}:{21+2*k}], v3 offset0:{2*k} offset1:{2*k+1}" for k in range(2)]
        if n == 10: rd.append("ds_read_b32 v24, v3 offset:16")
        ldspoll(f"L_gx{n}", L_XF, 1, rd, 44, 47)
        A(f"s_mov_b32 s{sT}, 0x01000100"); A(f"s_mov_b32 s{sT+1}, 0x03020302")
        for k in range(n): A(f"v_perm_b32 v{8+k}, v{20 + k//2}, v{20 + k//2}, s{sT + (k & 1)}")
    def roles():
        A(f"s_lshr_b32 s{sC10}, s2, 3"); A(f"s_mul_i32 s{sRBL}, s{sC10}, 26"); A(f"s_lshr_b32 s{sRBL}, s{sRBL}, 8", "row block inside the group = (id >> 3) / 10")
        A(f"s_mul_i32 s{sT}, s{sRBL}, 10"); A(f"s_sub_u32 s{sC10}, s{sC10}, s{sT}", "64-column block = (id >> 3) % 10")
        A(f"s_and_b32 s{sT}, s2, 7"); A(f"s_mul_i32 s{sT}, s{sT}, 3"); A(f"s_add_u32 s{sRB}, s{sT}, s{sRBL}", "FFN block 0..23")
    def helper_addrs():
        C("v18 = publish offset, v19 = gather offset, v0 = first row/column of this lane in publish order")
        A("v_lshrrev_b32 v18, 4, v1"); A("v_lshlrev_b32 v18, 7, v18"); A("v_lshl_add_u32 v18, v46, 4, v18")
        A("v_bfe_u32 v0, v1, 3, 1"); A("v_lshlrev_b32 v0, 5, v0"); A("v_bfe_u32 v3, v1, 4, 1"); A("v_lshl_add_u32 v0, v3, 2, v0")
        A("v_lshrrev_b32 v3, 5, v1"); A("v_lshl_add_u32 v0, v3, 1, v0")
        A("v_lshrrev_b32 v19, 2, v46"); A("v_lshlrev_b32 v19, 9, v19"); A("v_lshl_add_u32 v19, v45, 6, v19")
        A("v_and_b32 v3, 3, v1"); A("v_lshl_add_u32 v19, v3, 4, v19")
        A("v_mov_b32 v44, 0")
        srd(WS, 26, WS_BYTES)

    A(f"; @launch grid=(256,1,1) block=(768,1,1) lds={LDS_BYTES}")
    A('.amdgcn_target "amdgcn-amd-amdhsa--gfx950"')
    for l in DOC.strip("\n").split("\n"): C(l)
    A(".text")
    if al != 8: A(f".p2align {al}")
    if pad: A(f".fill {pad // 4}, 4, 0xbf810000")
    A(f".globl {NAME}_kernel"); A(".p2align 8"); A(f".type {NAME}_kernel,@function")
    A(f"{NAME}_kernel:")
    if ka == 0:
        A("s_load_dwordx16 s[4:19], s[0:1], 0")
        A("s_load_dwordx8 s[20:27], s[0:1], 64")
    elif ka == 1:
        A("s_load_dwordx16 s[4:19], s[0:1], 0")
    else:
        A("s_load_dwordx8 s[4:11], s[0:1], 0", "x, K, V, wq")
    A("s_cmpk_ge_u32 s2, 256"); A("s_cbranch_scc1 L_end")
    if stamps:
        for k in range(10): A(f"s_mov_b64 s[{sST+2*k}:{sST+2*k+1}], 0")
    stamp("start")
    if hold: A("s_memrealtime s[90:91]")
    A("v_lshrrev_b32 v2, 6, v0")
    A("v_and_b32 v1, 63, v0", "lane")
    A(f"v_readfirstlane_b32 s{sW}, v2", "wave")
    A("v_lshrrev_b32 v45, 3, v1", "row slot")
    A("v_and_b32 v46, 7, v1", "16-byte chunk")
    A(f"s_and_b32 s{sHEAD}, s2, 31"); A(f"s_lshr_b32 s{sSPLIT}, s2, 5")
    A(f"s_cmp_gt_u32 s{sW}, 2"); A("s_cbranch_scc1 L_w3up")
    C("---- waves 0..2: 80 rows x 64 columns of wq")
    A("s_setprio 3")
    A(f"s_mul_i32 s{sT}, s{sSPLIT}, {80*12288}"); A(f"s_mul_i32 s{sG}, s{sHEAD}, 3"); A(f"s_add_u32 s{sG}, s{sG}, s{sW}")
    A(f"s_lshl_b32 s{sG}, s{sG}, 7"); A(f"s_add_u32 s{sG}, s{sG}, s{sT}")
    A(f"v_mul_u32_u24 v8, {[10*12288, 128, 12288][p1 & 3]}, v45"); A("v_lshl_add_u32 v8, v46, 4, v8")
    if p1 & 3 == 1: A(f"s_mul_i32 s{sG}, s2, 3"); A(f"s_add_u32 s{sG}, s{sG}, s{sW}"); A(f"s_lshl_b32 s{sG}, s{sG}, 10")
    srd_c(SB, 640 * 12288)
    A("s_waitcnt lgkmcnt(0)")
    if earlybar: A("s_barrier")
    def rest():
        if ka == 1: A("s_load_dwordx8 s[20:27], s[0:1], 64")
        if ka == 2: A("s_load_dwordx16 s[12:27], s[0:1], 32")
    rest()
    st0 = list(stl)
    stamp("karg")
    srd_p(SB, 10)
    for G in range(10):
        A(f"buffer_load_dwordx4 v[{48+4*G}:{51+4*G}], v8, {SB}, s{sG} offen {pol}")
        if G < 9: A(f"s_addk_i32 s{sG}, 12288" if p1 & 3 == 0 else f"s_add_u32 s{sG}, s{sG}, {[0, 786432, 8*12288][p1 & 3]}")
    stamp("h1issued")
    if not earlybar: A("s_barrier")
    if ka: A("s_waitcnt lgkmcnt(0)")
    loadtag()
    stamp("barrier")
    A("s_branch L_h012b")
    st1 = list(stl); stl[:] = st0
    A("L_w3up:")
    A(f"s_cmp_gt_u32 s{sW}, 3"); A("s_cbranch_scc1 L_main")
    C("---- wave 3: 64 rows x 64 columns of w1 and w3")
    rest()
    A("s_setprio 3")
    roles()
    A(f"s_mul_i32 s{sT}, s{sC10}, {64*3072}"); A(f"s_lshl_b32 s{sG}, s{sRB}, 7"); A(f"s_add_u32 s{sG}, s{sG}, s{sT}")
    A(f"v_mul_u32_u24 v8, {[8*3072, 128, 3072][p1 >> 2]}, v45"); A("v_lshl_add_u32 v8, v46, 4, v8")
    if p1 >> 2 == 1: A(f"s_lshl_b32 s{sG}, s2, 10")
    srd_c(SB, 640 * 3072); srd_c(SC, 640 * 3072)
    if lnwave == 3:
        srd_c(SA, 1280); A("v_lshlrev_b32 v9, 4, v1"); A("v_lshlrev_b32 v3, 2, v1")
    A("s_waitcnt lgkmcnt(0)")
    stamp("karg")
    if lnwave == 3:
        srd_p(SA, 4)
        A(f"buffer_load_dwordx4 v[20:23], v9, {SA}, 0 offen"); A(f"buffer_load_dword v24, v3, {SA}, 0 offen offset:1024")
    loadtag()
    A("s_cmpk_ge_u32 s2, 240"); A("s_cbranch_scc1 L_h3skip")
    if earlybar: A("s_barrier")
    srd_p(SB, 16); srd_p(SC, 18)
    for G in range(8):
        A(f"buffer_load_dwordx4 v[{48+8*G}:{51+8*G}], v8, {SB}, s{sG} offen {pol}")
        A(f"buffer_load_dwordx4 v[{52+8*G}:{55+8*G}], v8, {SC}, s{sG} offen {pol}")
        if G < 7: A(f"s_addk_i32 s{sG}, 3072" if p1 >> 2 == 0 else (f"s_addk_i32 s{sG}, {8*3072}" if p1 >> 2 == 2 else f"s_add_u32 s{sG}, s{sG}, 245760"))
        if G == bar3 - 1 and not earlybar: A("s_barrier")
    stamp("h1issued")
    if lnwave == 3:
        A("s_waitcnt vmcnt(16)")
        A("s_branch L_ln")
        A("L_h3skip:")
        A("s_barrier")
        A("s_waitcnt vmcnt(0)")
        A("s_branch L_ln")
    else:
        A("s_branch L_h3b")
        A("L_h3skip:")
        A("s_barrier")
        A("s_branch L_h3i")
    base_st = list(st1); stl[:] = st0

    D = 48
    A("L_main:")
    C("---- waves 4..11: 64 keys each, eight groups of eight rows")
    A("s_setprio 2")
    A("v_mov_b32 v36, 0")
    if pf:
        A(f"s_cmp_lg_u32 s{sW}, {pfw}"); A("s_cbranch_scc1 L_nopf")
        C("pull this kernel's own code into L2: four lines per workgroup")
        A(f"s_getpc_b64 s[{sT+1}:{sT+2}]")
        A("L_pfbase:")
        A(f"s_lshr_b32 s{sT}, s2, 3"); A(f"s_lshl_b32 s{sT}, s{sT}, 7")
        A("v_and_b32 v2, 3, v1"); A(f"v_lshl_add_u32 v2, v2, 12, s{sT}")
        A("v_min_u32 v2, L_code_end-L_pfbase-4, v2")
        A(f"global_load_dword v47, v2, s[{sT+1}:{sT+2}]")
        A("L_nopf:")
    A("v_lshlrev_b32 v3, 2, v1")
    A("ds_write2st64_b32 v3, v36, v36 offset1:1", "clear the flag area")
    C("group index = 256*((wave>>3) ^ (head&1)) + 32*g + ((8*(wave&3) + split + 9*g) & 31): one contiguous window per head")
    A(f"s_and_b32 s{sT}, s{sW}, 3"); A(f"s_lshl_b32 s{sT}, s{sT}, 3"); A(f"s_add_u32 s{sT}, s{sT}, s{sSPLIT}")
    A(f"s_lshr_b32 s{sT+1}, s{sW}, 3"); A(f"s_lshl_b32 s{sT+1}, s{sT+1}, 8")
    if hm == 1:
        A(f"s_lshl_b32 s{sT+2}, s{sHEAD}, 8"); A(f"s_xor_b32 s{sT+1}, s{sT+1}, s{sT+2}"); A(f"s_and_b32 s{sT+1}, s{sT+1}, 256")
    elif hm:
        A(f"s_and_b32 s{sT+2}, s{sHEAD}, {hm}"); A(f"s_bcnt1_i32_b32 s{sT+2}, s{sT+2}"); A(f"s_lshl_b32 s{sT+2}, s{sT+2}, 8")
        A(f"s_xor_b32 s{sT+1}, s{sT+1}, s{sT+2}"); A(f"s_and_b32 s{sT+1}, s{sT+1}, 256")
    if rev: A(f"s_sub_u32 s{sT+1}, 480, s{sT+1}")
    if hoff:
        A(f"s_mul_i32 s{sT+2}, s{sHEAD}, {hoff}"); A(f"s_add_u32 s{sT+1}, s{sT+1}, s{sT+2}"); A(f"s_and_b32 s{sT+1}, s{sT+1}, 511")
    if lay: A(f"s_lshl_b32 s{sT+1}, s{sT+1}, 3")
    A(f"s_add_u32 s{sG}, s{sT}, s{sT+1}"); A(f"s_mulk_i32 s{sG}, {384 if lay else 3072}")
    A(f"s_mul_i32 s{sT+3}, s{sHEAD}, 12582912"); A(f"s_add_u32 s{sT+3}, s{sT+3}, 11010048")
    A(f"v_mul_u32_u24 v2, {32*384 if lay else 384}, v45"); A("v_lshl_add_u32 v2, v46, 4, v2")
    srd_c(SA, 4096 * 384)
    A("s_waitcnt lgkmcnt(0)")
    if ka: A("s_load_dwordx2 s[26:27], s[0:1], 88")
    stamp("karg")
    if lnwave != 3:
        A(f"s_cmp_lg_u32 s{sW}, {lnwave}"); A("s_cbranch_scc1 L_nox")
        srd(SB, 4, 1280)
        A("v_lshlrev_b32 v8, 4, v1")
        if xlate or earlybar: A("s_barrier")
        if xlate or earlybar: A("s_setprio 3")
        A(f"buffer_load_dwordx4 v[20:23], v8, {SB}, 0 offen {xpol}"); A(f"buffer_load_dword v24, v3, {SB}, 0 offen offset:1024 {xpol}")
        if xlate or earlybar: A("s_setprio 2")
        else: A("s_barrier")
        A("s_branch L_ln")
        A("L_nox:")
        A("s_barrier")
        A("L_lnback:")
    else:
        A("s_barrier")
    srd_p(SA, 6, sT + 3)
    if not tagl and not ka: loadtag()
    if tlb:
        A(f"s_cmp_lg_u32 s{sW}, 9"); A("s_cbranch_scc1 L_notlb")
        A(f"s_add_u32 s{sT+4}, s{sT+3}, s{sG}")
        A(f"s_load_dword s3, s[8:9], s{sT+4}")
        if tlb > 1:
            A(f"s_mul_i32 s{sT+4}, s2, {24*1280}"); A(f"s_load_dword s3, s[12:13], s{sT+4}")
            A(f"s_mul_i32 s{sT+4}, s2, {6*1280}"); A(f"s_load_dword s3, s[20:21], s{sT+4}")
        A("L_notlb:")
    stamp("barrier")
    for g in range(8):
        for j in range(3):
            r = D + 12 * g + 4 * j
            A(f"buffer_load_dwordx4 v[{r}:{r+3}], v2, {SA}, s{sG+g} offen offset:{128*j} {pol}")
            if g < 7:
                if j == 0: A(f"s_add_u32 s{sT}, s{sT}, {rotk}"); A(f"s_{'sub' if rev else 'add'}_u32 s{sT+1}, s{sT+1}, {256 if lay else 32}")
                if j == 0 and hoff: A(f"s_and_b32 s{sT+1}, s{sT+1}, {4095 if lay else 511}")
                if j == 1: A(f"s_and_b32 s{sT+2}, s{sT}, 31"); A(f"s_add_u32 s{sG+g+1}, s{sT+2}, s{sT+1}")
                if j == 2: A(f"s_mulk_i32 s{sG+g+1}, {384 if lay else 3072}")
            else:
                if j == 0: srd_p(SB, 8, sT + 3)
                if j == 1: srd_c(SB, 4096 * 384)
        if g == 0: stamp("k3issued")
    A("s_setprio 3")
    stamp("kissued")
    if ka:
        A("s_waitcnt lgkmcnt(0)")
        if not tagl: loadtag()
    srd(WS, 26, WS_BYTES)
    masks()
    A("v_lshlrev_b32 v37, 4, v46")
    for g in range(8): A(f"v_mov_b32 v{8+g}, 0")
    ldspoll("L_mq", L_QCNT, 3, [f"ds_read_b128 v[{16+4*j}:{19+4*j}], v37 offset:{L_Q+128*j}" for j in range(3)], 36, 38)
    if not tagl: gettag()
    stamp("qseen")
    C("scores")
    for g in range(0, 8, 2):
        A(f"s_waitcnt vmcnt({18 - 3*g})")
        for k in range(12):
            for gg in (g, g + 1):
                A(f"v_dot2c_f32_bf16 v{8+gg}, v{D+12*gg+k}, v{16+k}")
    stamp("kdone")
    for dp in ("quad_perm:[1,0,3,2]", "quad_perm:[2,3,0,1]", "row_half_mirror"):
        for g in range(8): A(f"v_add_f32_dpp v{8+g}, v{8+g}, v{8+g} {dp} {DPPF}")
    for k in range(4): A(f"v_cvt_pk_bf16_f32 v{28+k}, v{8+2*k}, v{9+2*k}")
    for k in range(4): unpack(8 + 2 * k, 9 + 2 * k, 28 + k)
    for g in range(8): A(f"v_mul_f32 v{8+g}, {f32(192 ** -0.5)}, v{8+g}")
    for k in range(4): A(f"v_cvt_pk_bf16_f32 v{28+k}, v{8+2*k}, v{9+2*k}")
    for k in range(4): unpack(8 + 2 * k, 9 + 2 * k, 28 + k)
    C("maximum and sum of exponentials of this wave's 64 keys")
    A("v_max3_f32 v40, v8, v9, v10"); A("v_max3_f32 v41, v11, v12, v13"); A("v_max3_f32 v40, v40, v14, v15"); A("v_max_f32 v40, v40, v41")
    allred("v_max_f32", 40, 41, [8, 16, 32])
    for g in range(8): A(f"v_sub_f32 v{28+g}, v{8+g}, v40")
    for g in range(8): A(f"v_mul_f32 v{28+g}, {f32(LOG2E)}, v{28+g}")
    for g in range(8): A(f"v_exp_f32 v{28+g}, v{28+g}")
    for k in range(4): A(f"v_add_f32 v{28+k}, v{28+k}, v{32+k}")
    A("v_add_f32 v28, v28, v29"); A("v_add_f32 v30, v30, v31"); A("v_add_f32 v41, v28, v30")
    allred("v_add_f32", 41, 42, [8, 16, 32])
    A(f"s_lshl_b32 s{sT}, s{sW}, 3"); A(f"v_mov_b32 v3, s{sT}"); A("v_mov_b32 v38, 1")
    A("s_mov_b64 exec, 1")
    A(f"ds_write_b64 v3, v[40:41] offset:{L_ST - 32}")
    A(f"ds_add_u32 v36, v38 offset:{L_KCNT}")
    A("s_mov_b64 exec, -1")
    stamp("e0pub")
    C("V rows of the same keys into the same registers")
    A("s_setprio 1")
    for g in range(8):
        for j in range(3):
            r = D + 12 * g + 4 * j
            A(f"buffer_load_dwordx4 v[{r}:{r+3}], v2, {SB}, s{sG} offen {pol}")
            if j < 2: A(f"s_addk_i32 s{sG}, 128")
            elif g < 7: A(f"s_mov_b32 s{sG}, s{sG+g+1}")
        if g == 2: stamp("v4")
    lds_signal("ds_add_u32", 36, 38, L_VCNT)
    A("s_setprio 3")
    stamp("vissued")
    C("v39 = partial write offset, v37 / v0 = partial read offsets, v3 = publish offset")
    A("v_bfe_u32 v39, v1, 4, 1"); A("v_lshlrev_b32 v39, 4, v39"); A("v_lshl_add_u32 v39, v46, 5, v39")
    A("v_lshrrev_b32 v3, 5, v1"); A("v_lshl_add_u32 v39, v3, 3, v39")
    A(f"s_mul_i32 s{sT}, s{sW}, 768"); A(f"v_add_u32 v39, s{sT}, v39")
    A("v_mul_u32_u24 v0, 3072, v3"); A("v_and_b32 v37, 31, v1"); A("v_lshl_add_u32 v0, v37, 3, v0")
    A("v_lshlrev_b32 v3, 12, v3"); A("v_lshl_add_u32 v3, v37, 4, v3")
    A("v_lshlrev_b32 v37, 3, v1")
    A(f"s_mul_i32 s{sT}, s{sHEAD}, {3*4096}"); A(f"s_lshl_b32 s{sT+1}, s{sSPLIT}, 9"); A(f"s_add_u32 s{sT}, s{sT}, s{sT+1}")
    A(f"s_add_u32 s{sT}, s{sT}, {E1}"); A(f"s_add_u32 s{sT+1}, s{sT}, 8192")
    C("softmax weights with the maximum and the sum of the whole head")
    ldspoll("L_ms", L_SFLAG, 1, [f"ds_read_b96 v[40:42], v36 offset:{L_M}"] + ([f"ds_read_b32 v43, v36 offset:{L_TAG}"] if tagl else []), 36, 38)
    stamp("sseen")
    A(f"v_readfirstlane_b32 s{sLOC}, v42")
    for g in range(8): A(f"v_sub_f32 v{8+g}, v{8+g}, v40")
    for g in range(8): A(f"v_mul_f32 v{8+g}, {f32(LOG2E)}, v{8+g}")
    for g in range(8): A(f"v_exp_f32 v{8+g}, v{8+g}")
    for g in range(8): A(f"v_mul_f32 v{8+g}, v{8+g}, v41")
    for g in range(8): A(f"v_cvt_pk_bf16_f32 v{8+g}, v{8+g}, v{8+g}")
    if tagl:
        for r in (41, 45, 47): A(f"v_mov_b32 v{r}, v43")
    else:
        A(f"s_add_u32 s{sTAGX}, s{sTAG}, 16", "second use of the q lines: another tag")
        for r in (41, 43, 45, 47): A(f"v_mov_b32 v{r}, s{sTAGX}")
    def pv_out(j):
        a = 16 + 4 * j
        fold(a, a, a + 1, ["s_nop 0"])
        A(f"s_mov_b64 exec, {PUB}")
        A(f"ds_write_b64 v39, v[{a}:{a+1}] offset:{L_OACC - 4*768 + 256*j}")
        if j < 2: A("s_mov_b64 exec, -1")
    for g in range(8):
        a = 28 + 4 * (g & 1)
        for j in range(4): A(f"v_and_b32 v{a+j}, v{8+g}, v{4+j}")
        for j in range(3):
            A(f"s_waitcnt vmcnt({3 * (7 - g) + (2 - j)})")
            if j == 0: A("s_nop 0")
            mfma(16 + 4 * j, a, D + 12 * g + 4 * j, g == 0)
            if pvint and g == 7 and j == 1:
                A("s_nop 5"); pv_out(0)
    stamp("mfmadone")
    if pvint:
        pv_out(1); pv_out(2)
    else:
        A("s_nop 3")
        for j in range(3):
            a = 16 + 4 * j
            A(f"v_permlane32_swap_b32 v{a}, v{a+2}"); A(f"v_permlane32_swap_b32 v{a+1}, v{a+3}")
        for j in range(3):
            a = 16 + 4 * j
            A(f"v_add_f32_dpp v{a}, v{a+2}, v{a} row_ror:8 {DPPF}"); A(f"v_add_f32_dpp v{a+1}, v{a+3}, v{a+1} row_ror:8 {DPPF}")
        A(f"s_mov_b64 exec, {PUB}")
        for j in range(3):
            A(f"ds_write_b64 v39, v[{16+4*j}:{17+4*j}] offset:{L_OACC - 4*768 + 256*j}")
    A("s_mov_b64 exec, 1")
    A(f"ds_add_rtn_u32 v38, v36, v38 offset:{L_OCNT}")
    A("s_mov_b64 exec, -1")
    C("the wave that arrives last adds the eight partials and publishes them")
    for w in range(8): A(f"ds_read_b64 v[{48+2*w}:{49+2*w}], v37 offset:{L_OACC + 768*w}")
    for w in range(4): A(f"ds_read_b64 v[{64+2*w}:{65+2*w}], v0 offset:{L_OACC + 768*w + 512}")
    A("s_waitcnt lgkmcnt(4)" if not stamps else "s_waitcnt lgkmcnt(0)")
    A(f"v_readfirstlane_b32 s{sT+2}, v38")
    for (x, y) in ((48, 50), (52, 54), (56, 58), (60, 62), (48, 52), (56, 60)):
        A(f"v_pk_add_f32 v[{x}:{x+1}], v[{x}:{x+1}], v[{y}:{y+1}]")
    A(f"s_cmp_lg_u32 s{sT+2}, 7"); A("s_cbranch_scc1 L_main_end")
    A("v_add_f32 v40, v48, v56"); A("v_add_f32 v42, v49, v57")
    def third():
        A("s_waitcnt lgkmcnt(0)")
        A("v_pk_add_f32 v[64:65], v[64:65], v[66:67]"); A("v_pk_add_f32 v[68:69], v[68:69], v[70:71]")
        A("v_pk_add_f32 v[64:65], v[64:65], v[68:69]")
        A("s_nop 1")
        A("v_permlane32_swap_b32 v64, v66"); A("v_permlane32_swap_b32 v65, v67")
        A("v_add_f32 v44, v64, v66"); A("v_add_f32 v46, v65, v67")
        A("s_mov_b32 exec_hi, 0")
    A(f"s_cmp_lg_u32 s{sLOC}, 1"); A("s_cbranch_scc1 L_e4far")
    A(f"buffer_store_dwordx4 v[40:43], v3, {WS}, s{sT} offen {'nt' if e4nt & 1 else 'sc0' if e4nt & 4 else ''}")
    third()
    A(f"buffer_store_dwordx4 v[44:47], v3, {WS}, s{sT+1} offen {'nt' if e4nt & 1 else 'sc0' if e4nt & 4 else ''}")
    A("L_e4done:")
    A("s_mov_b64 exec, 1")
    A(f"ds_write_b32 v36, v38 offset:{L_PUB}")
    stamp("e4pub")
    A("L_main_end:")
    if fm == 3:
        C("wave 4 adds the gate partial once the wo loads are out")
        A(f"s_cmp_lg_u32 s{sW}, 4"); A("s_cbranch_scc1 L_main_end2")
        A("s_cmpk_ge_u32 s2, 240"); A("s_cbranch_scc1 L_main_end2")
        A("s_mov_b64 exec, -1")
        roles()
        accoff(sG + 1, sC10, sG + 3)
        A("v_lshrrev_b32 v3, 1, v1"); A("v_lshlrev_b32 v3, 2, v3"); A(f"v_add_u32 v3, {L_FACC}, v3")
        A(f"s_mov_b32 s{base(EVEN)}, 0x55555555"); A(f"s_mov_b32 s{base(EVEN)+1}, s{base(EVEN)}")
        ldspoll("L_gw", L_WI if fgate == "w" else L_PUB, 4 if fgate == "w" else 7, [], 36, 38)
        if fgate != "w": ldspoll("L_gw2", L_WI, 4, [], 36, 38)
        A("ds_read2_b32 v[10:11], v3 offset1:32"); A("s_waitcnt lgkmcnt(0)")
        A(f"v_cndmask_b32 v10, 1.0, v10, {EVEN}"); A(f"v_cndmask_b32 v11, 1.0, v11, {EVEN}")
        A("v_cvt_f64_f32 v[80:81], v10"); A("v_cvt_f64_f32 v[82:83], v11")
        A(f"buffer_atomic_add_f64 v[80:81], v37, {WS}, s{sG+1} offen offset:1024 sc1")
        A(f"buffer_atomic_add_f64 v[82:83], v37, {WS}, s{sG+1} offen offset:1536 sc1")
        A("L_main_end2:")
    dump_stamps()
    A("s_endpgm")
    A("L_e4far:")
    A(f"buffer_store_dwordx4 v[40:43], v3, {WS}, s{sT} offen sc1")
    third()
    A(f"buffer_store_dwordx4 v[44:47], v3, {WS}, s{sT+1} offen sc1")
    A("s_branch L_e4done")

    A("L_ln:")
    C("---- layer norm of x, rounded step by step to bf16, into LDS")
    if lnwave != 3: A("s_waitcnt vmcnt(0)")
    X1, X2 = (112, 124) if lnwave == 3 else (48, 60)
    if xlds: A(f"ds_write_b128 v{9 if lnwave == 3 else 8}, v[20:23] offset:{L_XR}"); A(f"ds_write_b32 v3, v24 offset:{L_XR + 1024}")
    for k in range(5): unpack(X1 + 2 * k, X1 + 1 + 2 * k, 20 + k)
    for k in range(4): A(f"v_pk_add_f32 v[40:41], v[{40 if k else X1}:{41 if k else X1+1}], v[{X1+2+2*k}:{X1+3+2*k}]")
    A("v_add_f32 v40, v40, v41")
    allred("v_add_f32", 40, 41, ALL)
    A(f"v_mul_f32 v40, {f32(1/640)}, v40")
    for k in range(10): A(f"v_sub_f32 v{X2+k}, v{X1+k}, v40")
    A(f"v_mul_f32 v42, v{X2}, v{X2}"); A(f"v_mul_f32 v43, v{X2+1}, v{X2+1}")
    for k in range(2, 10): A(f"v_fmac_f32 v{42 + k % 2}, v{X2+k}, v{X2+k}")
    A("v_add_f32 v42, v42, v43")
    allred("v_add_f32", 42, 41, ALL)
    A(f"v_mul_f32 v42, {f32(1/640)}, v42")
    A("v_cvt_pk_bf16_f32 v41, v40, v42")
    unpack(40, 42, 41)
    A(f"v_add_f32 v42, {f32(1e-5)}, v42")
    A("v_cvt_pk_bf16_f32 v42, v42, v42"); A("v_lshlrev_b32 v42, 16, v42")
    A("v_sqrt_f32 v42, v42")
    for k in range(10): A(f"v_sub_f32 v{X1+k}, v{X1+k}, v40")
    A("v_cvt_pk_bf16_f32 v42, v42, v42"); A("v_lshlrev_b32 v42, 16, v42")
    A("v_rcp_f32 v42, v42")
    for k in range(5): A(f"v_cvt_pk_bf16_f32 v{20+k}, v{X1+2*k}, v{X1+1+2*k}")
    for k in range(5): unpack(X1 + 2 * k, X1 + 1 + 2 * k, 20 + k)
    for k in range(10): A(f"v_mul_f32 v{X1+k}, v{X1+k}, v42")
    for k in range(5): A(f"v_cvt_pk_bf16_f32 v{20+k}, v{X1+2*k}, v{X1+1+2*k}")
    A("v_mov_b32 v38, 1")
    if lnwave == 3: A("v_mov_b32 v36, 0")
    A(f"ds_write_b128 v{9 if lnwave == 3 else 8}, v[20:23] offset:{L_XN}"); A(f"ds_write_b32 v3, v24 offset:{L_XN + 1024}")
    lds_signal("ds_write_b32", 36, 38, L_XF)
    if lnwave == 3:
        A("s_cmpk_ge_u32 s2, 240"); A("s_cbranch_scc1 L_h3i")
        A("s_branch L_h3b")
    else:
        A("s_branch L_lnback")

    stl[:] = base_st
    A("L_h012b:")
    C("---- waves 0..2: partial q, exchange inside the head, q into LDS")
    roles()
    masks()
    helper_addrs()
    xn_dups(10, [f"s_mul_i32 s{sT}, s{sSPLIT}, 160", f"s_add_u32 s{sT}, s{sT}, {L_XN}", f"v_mul_u32_u24 v3, {2 if p1 == 10 else 20}, v45", f"v_add_u32 v3, s{sT}, v3"])
    gettag(True)
    stamp("lndone")
    for G in range(10):
        a = 20 + 4 * (G & 1)
        for j in range(4): A(f"v_and_b32 v{a+j}, v{8+G}, v{4+j}")
        A(f"s_waitcnt vmcnt({9-G})"); A("s_nop 0")
        mfma(28, a, 48 + 4 * G, G == 0)
    A(f"s_mul_i32 s{sT}, s{sHEAD}, 3"); A(f"s_add_u32 s{sT}, s{sT}, s{sW}"); A(f"s_lshl_b32 s{sT}, s{sT}, 12"); A(f"s_add_u32 s{sT}, s{sT}, {E1}")
    A(f"s_lshl_b32 s{sT+1}, s{sSPLIT}, 9"); A(f"s_add_u32 s{sT+1}, s{sT+1}, s{sT}")
    A(f"s_mov_b32 s{sTHR}, 0")
    A(f"v_mov_b32 v33, s{sTAGX}")
    fold(28, 32, 34, [f"v_mov_b32 v35, s{sTAGX}"])
    A(f"s_mov_b64 exec, {PUB}")
    A(f"buffer_store_dwordx4 v[32:35], v18, {WS}, s{sT+1} offen")
    A("s_mov_b64 exec, -1")
    stamp("e1pub")
    def e1slow():
        C("some producer of this head is (or may be) on another die: write through and accept any die id")
        A(f"s_cmp_lg_u32 s{sTHR}, 0"); A("s_cbranch_scc1 L_p1_giveup")
        A(f"s_mov_b32 s{sTHR}, 15"); A(f"s_mov_b32 s{sSPIN}, {GTRIES}")
        A(f"s_mov_b64 exec, {PUB}")
        A(f"buffer_store_dwordx4 v[32:35], v18, {WS}, s{sT+1} offen sc1")
        A("s_mov_b64 exec, -1")
        A("s_branch L_p1")
        A("L_p1_giveup:")
    gather8("L_p1", sT, e1sleep, sTAGX, thr=f"s{sTHR}", tries=n1, onfail=e1slow)
    A("v_cvt_pk_bf16_f32 v96, v118, v119")
    A("v_and_b32 v3, 3, v1"); A("v_lshlrev_b32 v3, 4, v3"); A("v_lshl_add_u32 v3, v0, 1, v3")
    A(f"s_lshl_b32 s{sT}, s{sW}, 7"); A(f"v_add_u32 v3, s{sT}, v3")
    A(f"ds_write_b32 v3, v96 offset:{L_Q}")
    A("v_mov_b32 v38, 1")
    lds_signal("ds_add_u32", 44, 38, L_QCNT)
    stamp("qready")
    A(f"s_cmp_lg_u32 s{sW}, 2"); A("s_cbranch_scc1 L_wo")
    C("---- wave 2: softmax maximum and sum of the head")
    A("v_lshlrev_b32 v3, 4, v1"); A(f"s_lshl_b32 s{sT}, s{sHEAD}, 10"); A(f"s_add_u32 s{sT}, s{sT}, {E0}")
    A("v_lshlrev_b32 v39, 3, v46")
    A(f"v_mov_b32 v41, s{sTAG}"); A(f"v_mov_b32 v43, s{sTAG}")
    A(f"s_lshl_b32 s{sT+1}, s{sSPLIT}, 7"); A(f"s_add_u32 s{sT+1}, s{sT+1}, s{sT}")
    ldspoll("L_gl", L_LOC, 0, [], 44, 37, cmp="eq")
    A(f"v_readfirstlane_b32 s{sLOC}, v37")
    ldspoll("L_gk", L_KCNT, 8, [f"ds_read_b32 v40, v39 offset:{L_ST}", f"ds_read_b32 v42, v39 offset:{L_ST+4}"], 44, 37)
    A("s_mov_b64 exec, 0xff")
    flavoured([f"buffer_store_dwordx4 v[40:43], v3, {WS}, s{sT+1} offen"])
    A("s_mov_b64 exec, -1")
    poll("L_p0", [f"buffer_load_dwordx4 v[96:99], v3, {WS}, s{sT} offen sc1"], [96], e0sleep)
    A("v_mov_b32 v40, v96")
    allred("v_max_f32", 40, 41, ALL)
    A("v_sub_f32 v96, v96, v40"); A(f"v_mul_f32 v96, {f32(LOG2E)}, v96"); A("v_exp_f32 v96, v96"); A("s_nop 0")
    A("v_mul_f32 v42, v96, v98")
    allred("v_add_f32", 42, 41, ALL)
    A("v_rcp_f32 v41, v42")
    A("s_mov_b64 exec, 1")
    A(f"ds_write_b64 v44, v[40:41] offset:{L_M}")
    if tagl:
        A("v_add_u32 v43, 16, v43", "second use of the q lines: another tag"); A(f"ds_write_b32 v44, v43 offset:{L_TAG}")
    A(f"ds_write_b32 v44, v38 offset:{L_SFLAG}")
    A("s_mov_b64 exec, -1")
    stamp("stats")
    A("s_branch L_wo")
    A("L_h3i:")
    C("---- wave 3 of workgroups 240..249: clear the accumulators of one column block, then say so")
    helper_addrs()
    A("s_cmpk_ge_u32 s2, 250"); A("s_cbranch_scc1 L_h3c")
    A(f"s_sub_u32 s{sT}, s2, 240"); A(f"s_lshl_b32 s{sT+1}, s{sT}, 7"); A(f"s_add_u32 s{sT+1}, s{sT+1}, {RDY}")
    assert f64 and not lred
    accoff(sT, sT, sT + 2)
    for k in range(4): A(f"v_mov_b32 v{20+k}, 0")
    A("v_lshlrev_b32 v3, 4, v1")
    A(f"buffer_store_dwordx4 v[20:23], v3, {WS}, s{sT} offen sc1")
    A(f"buffer_store_dwordx4 v[20:23], v3, {WS}, s{sT+(3 if acc1 else 0)} offen offset:{FO} sc1")
    A("s_waitcnt vmcnt(0) lgkmcnt(0)")
    maketag(sT, sT + 2)
    for k in range(4): A(f"v_mov_b32 v{24+k}, s{sT}")
    A("s_mov_b64 exec, 0xff")
    A(f"buffer_store_dwordx4 v[24:27], v3, {WS}, s{sT+1} offen sc1")
    A("s_mov_b64 exec, -1")
    A("s_branch L_h3c")
    A("L_h3b:")
    C("---- wave 3: partial gate / up")
    masks()
    helper_addrs()
    xn_dups(8, [f"s_lshl_b32 s{sT}, s{sC10}, 7", f"s_add_u32 s{sT}, s{sT}, {L_XN}", f"v_lshl_add_u32 v3, v45, {1 if p1 == 10 else 4}, s{sT}"])
    for G in range(8):
        a = 20 + 4 * (G & 1)
        for j in range(4): A(f"v_and_b32 v{a+j}, v{8+G}, v{4+j}")
        A(f"s_waitcnt vmcnt({14-2*G})"); A("s_nop 0")
        for m in range(2): mfma(28 + 4 * m, a, 48 + 8 * G + 4 * m, G == 0)
    A("L_h3c:")
    if holdmin:
        A("s_waitcnt lgkmcnt(0)")
        A("s_not_b32 s3, s90" if holdmin == 1 else "s_mov_b32 s3, s90"); A("v_mov_b32 v2, s3"); A("v_mov_b32 v3, 0")
        A("s_mov_b64 exec, 1"); A("global_atomic_umax v3, v2, s[24:25] sc1"); A("s_mov_b64 exec, -1")
    C("do all 32 workgroups with this id & 7 sit on this die?  Their q partials carry their die ids")
    A("v_and_b32 v3, 3, v1"); A(f"v_mul_u32_u24 v3, {8*3*4096}, v3"); A("v_lshrrev_b32 v2, 2, v1"); A("v_lshl_add_u32 v3, v2, 9, v3")
    A(f"s_and_b32 s{sT}, s2, 7"); A(f"s_mul_i32 s{sT}, s{sT}, {3*4096}"); A(f"s_add_u32 s{sT}, s{sT}, {E1}")
    ldspoll("L_gq", L_QCNT, 3, [], 44, 47)
    gettag(True)
    A(f"s_mov_b32 s{sLOC}, 1")
    A("s_mov_b32 exec_hi, 0")
    poll("L_pl", [f"buffer_load_dwordx4 v[96:99], v3, {WS}, s{sT} offen sc1"], [96], 8, tag=sTAGX, tries=6, onfail=lambda: A(f"s_mov_b32 s{sLOC}, 2"))
    A(f"v_mov_b32 v47, s{sLOC}")
    lds_signal("ds_write_b32", 44, 47, L_LOC)
    stamp("probe")
    A("s_cmpk_ge_u32 s2, 240"); A("s_cbranch_scc1 L_light" if lred else "s_cbranch_scc1 L_help_end")
    A(f"s_mul_i32 s{sG}, s{sRB}, 10240"); A(f"s_add_u32 s{sG}, s{sG}, {E2}")
    A(f"s_add_u32 s{sG+1}, s{sG}, 4096"); A(f"s_add_u32 s{sG+2}, s{sG}, 8192")
    A(f"s_lshl_b32 s{sT}, s{sC10}, 10"); A(f"s_add_u32 s{sT}, s{sT}, s{sG}")
    fold(28, 36, 38, [f"v_mov_b32 v37, s{sTAG}", f"v_mov_b32 v39, s{sTAG}"])
    fold(32, 40, 42, [f"v_mov_b32 v41, s{sTAG}", f"v_mov_b32 v43, s{sTAG}"])
    A(f"s_mov_b64 exec, {PUB}")
    if e2far:
        A(f"buffer_store_dwordx4 v[36:39], v18, {WS}, s{sT} offen sc1"); A(f"buffer_store_dwordx4 v[40:43], v18, {WS}, s{sT} offen offset:512 sc1")
    else:
        flavoured([f"buffer_store_dwordx4 v[36:39], v18, {WS}, s{sT} offen", f"buffer_store_dwordx4 v[40:43], v18, {WS}, s{sT} offen offset:512"])
    A("s_mov_b64 exec, -1")
    C("hidden block and its 64 x 64 piece of w2")
    A(f"s_mul_i32 s{sT}, s{sRB}, {64*1280}"); A(f"s_lshl_b32 s{sT+1}, s{sC10}, 7"); A(f"s_add_u32 s{sT}, s{sT}, s{sT+1}")
    srd(SB, 20, 1536 * 1280)
    A(f"v_mul_u32_u24 v2, 1280, v0"); A("v_lshl_add_u32 v2, v46, 4, v2")
    ldspoll("L_gk3", L_KCNT, 8, [], 44, 47)
    if not w2late:
        for G in range(8):
            A(f"buffer_load_dwordx4 v[{48+4*G}:{51+4*G}], v2, {SB}, s{sT} offen {pol}")
            if G < 7: A(f"s_addk_i32 s{sT}, {1280 if G % 2 == 0 else 7*1280}")
    else:
        A(f"s_mov_b32 s{sG+5}, s{sT}"); A("v_mov_b32 v35, v2")
    poll("L_p2", [f"buffer_load_dwordx4 v[{96+4*i}:{99+4*i}], v19, {WS}, s{sG + (i>>2)} offen offset:{1024*(i&3)} sc1" for i in range(10)],
         [96 + 4 * i for i in range(10)], 16)
    for (x, y) in ((0, 1), (2, 3), (4, 5), (6, 7), (8, 9), (0, 2), (4, 6), (0, 8), (0, 4)):
        A(f"v_add_f32 v{96+4*x}, v{96+4*x}, v{96+4*y}"); A(f"v_add_f32 v{98+4*x}, v{98+4*x}, v{98+4*y}")
    A("v_cvt_pk_bf16_f32 v96, v96, v98")
    A("v_mov_b32 v97, v96"); A("v_mov_b32 v98, v96")
    A("v_mov_b32_dpp v97, v96 row_shr:4 row_mask:0xf bank_mask:0xa", "gate pair")
    A("v_mov_b32_dpp v98, v96 row_shl:4 row_mask:0xf bank_mask:0x5", "up pair")
    unpack(100, 101, 97); unpack(102, 103, 98)
    silu2(100, 104)
    A("v_cvt_pk_bf16_f32 v97, v100, v101"); unpack(100, 101, 97)
    A("v_mul_f32 v100, v100, v102"); A("v_mul_f32 v101, v101, v103")
    A("v_cvt_pk_bf16_f32 v8, v100, v100"); A("v_cvt_pk_bf16_f32 v9, v101, v101")
    A(f"s_add_u32 s{sT+1}, s{sT+1}, {RDY}")
    def w2finish():
        if lred:
            unit_mfma([f"s_and_b32 s{sT}, s2, 7", f"s_mul_i32 s{sT}, s{sT}, 10", f"s_add_u32 s{sT}, s{sT}, s{sC10}", f"s_mul_i32 s{sT}, s{sT}, 3",
                       f"s_add_u32 s{sT}, s{sT}, s{sRBL}", f"s_lshl_b32 s{sT}, s{sT}, 9", f"s_add_u32 s{sT}, s{sT}, {E3}"])
            fold(28, 36, 38, ["s_nop 0"])
            A(f"s_mov_b64 exec, {PUB}")
            flavoured([f"buffer_store_dwordx4 v[36:39], v18, {WS}, s{sT} offen"])
            A("s_mov_b64 exec, -1")
        else:
            unit_mfma(["v_lshrrev_b32 v34, 1, v18", "v_lshrrev_b32 v3, 1, v1", "v_lshlrev_b32 v3, 2, v3", f"v_add_u32 v3, {L_FACC}, v3", "v_mov_b32 v10, 1.0", "v_mov_b32 v11, 1.0"], 120 if w2late else 48)
            fold(28, 28, 29, ["s_nop 0"])
            A(f"s_mov_b64 exec, {PUB}")
            A(f"ds_write_b64 v34, v[28:29] offset:{L_FACC}")
            if not fm:
                A("s_mov_b32 exec_lo, 0x55555555"); A("s_mov_b32 exec_hi, 0x55555555")
                A("ds_read2_b32 v[10:11], v3 offset1:32", "even lanes: value, odd lanes: 1.0 (arrival count)")
            A("s_mov_b64 exec, -1")
    if not w2late: w2finish()
    C("the accumulators must have been cleared in this launch")
    A(f"s_mov_b32 s{sSPIN}, {GTRIES}")
    A("L_pr:")
    A(f"s_load_dwordx2 s[{sP}:{sP+1}], s[26:27], s{sT+1} glc")
    A("s_waitcnt lgkmcnt(0)")
    A(f"s_xor_b32 s{sP}, s{sP}, s{sTAG}"); A(f"s_xor_b32 s{sP+1}, s{sP+1}, s{sTAG}"); A(f"s_or_b32 s{sP}, s{sP}, s{sP+1}")
    A("s_cbranch_scc0 L_wo")
    A("s_sleep 4")
    A(f"s_sub_u32 s{sSPIN}, s{sSPIN}, 1")
    A("s_cbranch_scc0 L_pr")
    timeout("L_pr")
    A("L_wo:")
    C("---- waves 0..3: a 64 x 64 piece of wo each")
    A("s_cmpk_ge_u32 s2, 240"); A("s_cbranch_scc1 L_light" if lred else "s_cbranch_scc1 L_help_end")
    A(f"s_lshl_b32 s{sT+2}, s{sRBL}, 2"); A(f"s_add_u32 s{sT+2}, s{sT+2}, s{sW}", "b = 4*rbl + wave")
    A(f"s_mul_i32 s{sT}, s{sT+2}, 86"); A(f"s_lshr_b32 s{sT}, s{sT}, 8")
    A(f"s_mul_i32 s{sT}, s{sT}, 21"); A(f"s_add_u32 s{sT+2}, s{sT+2}, s{sT}")
    A(f"s_and_b32 s{sT}, s2, 7"); A(f"s_mul_i32 s{sT}, s{sT}, 3"); A(f"s_add_u32 s{sT+2}, s{sT+2}, s{sT}", "64-row block = 3*head + b % 3")
    A(f"s_mul_i32 s{sT}, s{sT+2}, {64*1280}"); A(f"s_lshl_b32 s{sG+2}, s{sC10}, 7"); A(f"s_add_u32 s{sT}, s{sT}, s{sG+2}")
    srd(SB, 12, 6144 * 1280); srd(SC, 22, 1280)
    if not xlds: srd(SA, 4, 1280)
    A(f"v_mul_u32_u24 v2, {[8*1280, 128, 1280][wp]}, v45"); A("v_lshl_add_u32 v2, v46, 4, v2")
    if wp == 1: A(f"s_lshl_b32 s{sT}, s2, 2"); A(f"s_add_u32 s{sT}, s{sT}, s{sW}"); A(f"s_lshl_b32 s{sT}, s{sT}, 13")
    A(f"s_lshl_b32 s{sG}, s{sT+2}, 12"); A(f"s_add_u32 s{sG}, s{sG}, {E1}")
    accoff(sG + 1, sC10, sG + 3)
    A("v_lshrrev_b32 v37, 1, v18"); A(f"s_lshl_b32 s{sT+2}, s{sW}, 8"); A(f"v_add_u32 v37, s{sT+2}, v37")
    A("v_lshrrev_b32 v36, 1, v1"); A("v_lshlrev_b32 v36, 2, v36"); A(f"v_add_u32 v36, {L_WACC}, v36")
    C("v16 = byte offset of this lane pair's first output column, v17 = accumulator offset")
    A("v_bfe_u32 v16, v1, 2, 3"); A("v_lshlrev_b32 v16, 4, v16"); A("v_lshrrev_b32 v17, 5, v1"); A("v_lshl_add_u32 v16, v17, 3, v16")
    A("v_and_b32 v17, 2, v1"); A("v_add_u32 v16, v16, v17")
    A(f"v_lshlrev_b32 v17, {3 if f64 else 2}, v1")
    A(f"s_add_u32 s{sTAGX}, s{sTAG}, 16")
    A(f"s_mov_b32 s{base(EVEN)}, 0x55555555"); A(f"s_mov_b32 s{base(EVEN)+1}, s{base(EVEN)}")
    A("v_mov_b32 v40, 1.0"); A("v_mov_b32 v41, 1.0")
    if gmode & 1: A("v_mov_b32 v12, 0"); A("v_mov_b32 v13, 0")
    if f64: A("v_mov_b32 v42, 0x40370000", "high word of 23.0"); A("v_mov_b32 v43, 0x40200000" if lred else "v_mov_b32 v43, 0x40380000", "high word of the complete gate count")
    else: A(f"v_mov_b32 v42, {f32(23.0)}"); A(f"v_mov_b32 v43, {f32(24.0)}")
    def woload(G):
        A(f"buffer_load_dwordx4 v[{48+4*G}:{51+4*G}], v2, {SB}, s{sT} offen {pol}")
        if G < 7: A(f"s_addk_i32 s{sT}, {[1280, 1024, 10240][wp]}")
    if xlds:
        A(f"v_add_u32 v3, s{sG+2}, v16")
        ldspoll("L_gk4", L_KCNT, 8, [f"ds_read_u16 v14, v3 offset:{L_XR}", f"ds_read_u16 v15, v3 offset:{L_XR+4}"], 44, 47)
    else:
        ldspoll("L_gk4", L_KCNT, 8, [], 44, 47)
        A(f"buffer_load_ushort v14, v16, {SA}, s{sG+2} offen"); A(f"buffer_load_ushort v15, v16, {SA}, s{sG+2} offen offset:4")
    if otouch:
        A(f"s_cmp_lg_u32 s{sW}, 0"); A("s_cbranch_scc1 L_noot")
        A("s_mov_b64 exec, 1")
        A(f"buffer_load_ushort v39, v16, {SC}, s{sG+2} offen", "translation of the output page")
        A("s_mov_b64 exec, -1")
        A("L_noot:")
    for G in range(wo_early): woload(G)
    ldspoll("L_gv", L_VCNT, 8, [], 44, 47)
    if w2late:
        A(f"s_cmp_lg_u32 s{sW}, 3"); A("s_cbranch_scc1 L_now2")
        srd(SA, 20, 1536 * 1280)
        for G in range(8):
            A(f"buffer_load_dwordx4 v[{120+4*G}:{123+4*G}], v35, {SA}, s{sG+5} offen {pol}")
            if G < 7: A(f"s_addk_i32 s{sG+5}, {1280 if G % 2 == 0 else 7*1280}")
        A("L_now2:")
    for G in range(wo_early, 8): woload(G)
    stamp("woissued")
    if fm == 3:
        A("v_mov_b32 v47, 1"); lds_signal("ds_add_u32", 44, 47, L_WI)
    elif fm:
        A("v_mov_b32 v10, 1.0"); A("v_mov_b32 v11, 1.0"); A(f"v_add_u32 v35, {L_FACC - L_WACC}, v36")
    if not lred and not fm:
        A(f"s_cmp_lg_u32 s{sW}, 3"); A("s_cbranch_scc1 L_nof3")
        if w2late:
            A(f"s_waitcnt vmcnt({8 - wo_early})")
            w2finish()
            A("s_waitcnt lgkmcnt(0)")
        if f64:
            A("v_cvt_f64_f32 v[80:81], v10"); A("v_cvt_f64_f32 v[82:83], v11")
            A(f"buffer_atomic_add_f64 v[80:81], v17, {WS}, s{sG+(4 if acc1 else 1)} offen offset:{FO} sc1")
            A(f"buffer_atomic_add_f64 v[82:83], v17, {WS}, s{sG+(4 if acc1 else 1)} offen offset:{FO+512} sc1")
        else:
            A(f"buffer_atomic_add_f32 v10, v17, {WS}, s{sG+1} offen offset:512 sc1")
            A(f"buffer_atomic_add_f32 v11, v17, {WS}, s{sG+1} offen offset:768 sc1")
        A("L_nof3:")
    if stamps and "wol" in stamps:
        A(f"s_cmp_lg_u32 s{sW}, 1"); A("s_cbranch_scc1 L_nowol")
        A("s_waitcnt vmcnt(0)")
        stamp("wol")
        A("L_nowol:")
    if tal:
        A("s_branch L_tail")
        A(".p2align 12")
        A("L_tail:")
    ldspoll("L_go", L_PUB, 7, [], 44, 47, sleep=not t4)
    A("v_mov_b32 v47, 1")
    gather8("L_p4", sG, 0, sTAGX)
    stamp("e4seen")
    A("v_cvt_pk_bf16_f32 v8, v118, v118"); A("v_cvt_pk_bf16_f32 v9, v119, v119")
    A("s_nop 0")
    unit_mfma([])
    fold(28, 28, 29, ["s_nop 0"])
    A(f"s_mov_b64 exec, {PUB}")
    A(f"ds_write_b64 v37, v[28:29] offset:{L_WACC}")
    A("s_mov_b64 exec, 1")
    A(f"ds_add_rtn_u32 v47, v44, v47 offset:{L_WCNT}")
    A(f"s_mov_b64 exec, {EVEN}")
    if fm in (1, 2): A("ds_read2_b32 v[10:11], v35 offset1:32")
    for w in range(4): A(f"ds_read2_b32 v[{20+2*w}:{21+2*w}], v36 offset0:{64*w} offset1:{64*w+32}")
    A("s_waitcnt lgkmcnt(0)")
    A(f"v_readfirstlane_b32 s{sT}, v47")
    A("v_pk_add_f32 v[20:21], v[20:21], v[22:23]"); A("v_pk_add_f32 v[24:25], v[24:25], v[26:27]")
    A(f"s_cmp_lg_u32 s{sT}, 3"); A("s_cbranch_scc1 L_help_end")
    C("last wave of the workgroup: add {value, 1.0} pairs to the accumulators; whoever sees 23 earlier arrivals finishes the column")
    def gload(first=False):
        if f64:
            A(f"buffer_load_dwordx2 v[84:85], v17, {WS}, s{sG+(4 if acc1 else 1)} offen offset:{FO} sc1"); A(f"buffer_load_dwordx2 v[86:87], v17, {WS}, s{sG+(4 if acc1 else 1)} offen offset:{FO+512} sc1")
        elif gmode & 1:
            if not first: A("v_mov_b32 v12, 0"); A("v_mov_b32 v13, 0")
            A(f"buffer_atomic_add_f32 v12, v17, {WS}, s{sG+1} offen offset:512 sc0 sc1"); A(f"buffer_atomic_add_f32 v13, v17, {WS}, s{sG+1} offen offset:768 sc0 sc1")
        else:
            p = "sc0 sc1 nt" if gmode & 4 else "sc1"
            A(f"buffer_load_dword v12, v17, {WS}, s{sG+1} offen offset:512 {p}"); A(f"buffer_load_dword v13, v17, {WS}, s{sG+1} offen offset:768 {p}")
    def gcalc():
        if f64:
            A("v_cvt_f32_f64 v12, v[84:85]"); A("v_cvt_f32_f64 v13, v[86:87]")
            A(f"v_cmp_ne_u32 s[{sP+2}:{sP+3}], v85, v43"); A(f"v_cmp_ne_u32 s[{sP+4}:{sP+5}], v87, v43")
        else:
            A(f"v_cmp_ne_u32 s[{sP+2}:{sP+3}], v12, v43"); A(f"v_cmp_ne_u32 s[{sP+4}:{sP+5}], v13, v43")
        A("v_cvt_pk_bf16_f32 v22, v12, v13")
        unpack(12, 13, 22)
        silu2(12, 24)
        A(f"s_or_b64 s[{sP+2}:{sP+3}], s[{sP+2}:{sP+3}], s[{sP+4}:{sP+5}]")
        A("v_cvt_pk_bf16_f32 v22, v12, v13")
        A(f"s_andn2_b64 s[{sP+2}:{sP+3}], s[{sP+2}:{sP+3}], {EVEN}", "count lanes that are not complete")
        unpack(12, 13, 22)
    A("v_pk_add_f32 v[40:41], v[20:21], v[24:25]")
    A("s_mov_b64 exec, -1")
    def fatom():
        A("v_cvt_f64_f32 v[84:85], v10"); A("v_cvt_f64_f32 v[86:87], v11")
        A(f"buffer_atomic_add_f64 v[84:85], v17, {WS}, s{sG+1} offen offset:1024 sc0 sc1")
        A(f"buffer_atomic_add_f64 v[86:87], v17, {WS}, s{sG+1} offen offset:1536 sc0 sc1")
    if fm == 1: fatom()
    elif fm in (0, 3) and not gmode & 10: gload(True)
    if f64:
        A("v_cvt_f64_f32 v[88:89], v40"); A("v_cvt_f64_f32 v[90:91], v41")
        A(f"buffer_atomic_add_f64 v[88:89], v17, {WS}, s{sG+1} offen sc0 sc1")
        A(f"buffer_atomic_add_f64 v[90:91], v17, {WS}, s{sG+1} offen offset:512 sc0 sc1")
    else:
        A(f"buffer_atomic_add_f32 v40, v17, {WS}, s{sG+1} offen sc0 sc1")
        A(f"buffer_atomic_add_f32 v41, v17, {WS}, s{sG+1} offen offset:256 sc0 sc1")
    if gmode & 2: gload(True)
    if fm == 2: fatom()
    if fm in (1, 2): A("v_cvt_f64_f32 v[80:81], v10"); A("v_cvt_f64_f32 v[82:83], v11")
    stamp("e5pub")
    if f64: A("v_cvt_f64_f32 v[92:93], v40"); A("v_cvt_f64_f32 v[94:95], v41")
    else: A("v_pk_add_f32 v[20:21], v[20:21], v[24:25]")
    A("v_lshlrev_b32 v14, 16, v14"); A("v_lshlrev_b32 v15, 16, v15")
    A(f"s_mov_b32 s{sSPIN}, {GTRIES}")
    if gmode & 8: A(f"s_mov_b64 s[{sP+2}:{sP+3}], -1")
    else:
        A("s_waitcnt vmcnt(0)" if gmode & 2 or fm == 2 else "s_waitcnt vmcnt(2)")
        if fm in (1, 2): A("v_add_f64 v[84:85], v[84:85], v[80:81]"); A("v_add_f64 v[86:87], v[86:87], v[82:83]")
        gcalc()
    def after_atomic(first=False):
        A("s_waitcnt vmcnt(0)")
        if first: stamp("atdone")
        A("v_add_f64 v[92:93], v[92:93], v[88:89]"); A("v_add_f64 v[94:95], v[94:95], v[90:91]")
        A("v_cmp_eq_u32 vcc, v89, v42"); A(f"v_cmp_eq_u32 s[{sP}:{sP+1}], v91, v42")
        A("v_cvt_f32_f64 v20, v[92:93]"); A("v_cvt_f32_f64 v21, v[94:95]")
        A("s_lshr_b64 vcc, vcc, 1"); A(f"s_lshr_b64 s[{sP}:{sP+1}], s[{sP}:{sP+1}], 1")
        A("v_cvt_pk_bf16_f32 v23, v20, v21")
    if t2:
        A(f"s_cmp_lg_u64 s[{sP+2}:{sP+3}], 0"); A("s_cbranch_scc1 L_glate")
        after_atomic(True)
    else:
        A("s_waitcnt vmcnt(0)")
        stamp("atdone")
        if f64:
            A("v_add_f64 v[92:93], v[92:93], v[88:89]"); A("v_add_f64 v[94:95], v[94:95], v[90:91]")
            A("v_cmp_eq_u32 vcc, v89, v42"); A(f"v_cmp_eq_u32 s[{sP}:{sP+1}], v91, v42")
            A("v_cvt_f32_f64 v20, v[92:93]"); A("v_cvt_f32_f64 v21, v[94:95]")
        else:
            A("v_cmp_eq_f32 vcc, v40, v42"); A(f"v_cmp_eq_f32 s[{sP}:{sP+1}], v41, v42")
            A("v_pk_add_f32 v[20:21], v[20:21], v[40:41]")
        A("s_lshr_b64 vcc, vcc, 1"); A(f"s_lshr_b64 s[{sP}:{sP+1}], s[{sP}:{sP+1}], 1")
        A("v_cvt_pk_bf16_f32 v23, v20, v21")
        A(f"s_cmp_lg_u64 s[{sP+2}:{sP+3}], 0"); A("s_cbranch_scc1 L_glate")
    A("L_gok:")
    unpack(20, 21, 23)
    A("v_pk_mul_f32 v[20:21], v[20:21], v[12:13]")
    A("v_cvt_pk_bf16_f32 v22, v20, v21")
    unpack(20, 21, 22)
    A("v_pk_add_f32 v[20:21], v[20:21], v[14:15]")
    A("v_cvt_pk_bf16_f32 v22, v20, v21")
    if holdmin:
        A("s_load_dwordx2 s[96:97], s[0:1], 80"); A("s_waitcnt lgkmcnt(0)")
        A("s_load_dword s90, s[96:97], 0 glc"); A("s_waitcnt lgkmcnt(0)")
        if holdmin == 1: A("s_not_b32 s90, s90")
    if hold:
        A("L_hold:"); A("s_memrealtime s[96:97]"); A("s_waitcnt lgkmcnt(0)"); A("s_sub_u32 s96, s96, s90")
        A(f"s_cmp_lt_u32 s96, {hold}"); A("s_cbranch_scc1 L_hold")
    A(f"s_and_b64 exec, vcc, {EVEN}"); A("s_cbranch_execz L_no0")
    A(f"buffer_store_short v22, v16, {SC}, s{sG+2} offen {outp}")
    A("L_no0:")
    A(f"s_and_b64 exec, s[{sP}:{sP+1}], {EVEN}"); A("s_cbranch_execz L_no1")
    A(f"buffer_store_short_d16_hi v22, v16, {SC}, s{sG+2} offen offset:4 {outp}")
    A(f"s_cmp_lg_u32 s{sC10}, 0"); A("s_cbranch_scc1 L_no1")
    A("s_and_b64 exec, exec, 1"); A("s_cbranch_execz L_no1")
    C("every wave of the launch has read the old word by now: leave this launch's tag for the next one to step past")
    A(f"v_mov_b32 v49, s{sTAG}")
    A(f"buffer_store_dword v49, v44, {WS}, 0 offen")
    A("L_no1:")
    if stamps: A("s_waitcnt vmcnt(0)")
    stamp("end")
    A("L_help_end:")
    dump_stamps()
    A("L_end:")
    A("s_endpgm")
    A("L_glate:")
    C("the gate sums are not complete yet: only a wave that finishes some column waits for them")
    if t2: after_atomic()
    A(f"s_or_b64 s[{sP+4}:{sP+5}], vcc, s[{sP}:{sP+1}]"); A(f"s_and_b64 s[{sP+4}:{sP+5}], s[{sP+4}:{sP+5}], {EVEN}")
    A("s_cbranch_scc0 L_help_end")
    A("L_gre:")
    gload()
    A("s_waitcnt vmcnt(0)")
    gcalc()
    A(f"s_cmp_eq_u64 s[{sP+2}:{sP+3}], 0"); A("s_cbranch_scc1 L_gok")
    A(f"s_sub_u32 s{sSPIN}, s{sSPIN}, 1")
    A("s_cbranch_scc0 L_gre")
    timeout("L_gre")
    if diag:
        A("v_lshlrev_b32 v166, 2, v1"); A("v_add_u32 v166, 1024, v166")
        gload(); A("s_waitcnt vmcnt(0)")
        A("global_store_dword v166, v12, s[100:101]"); A("global_store_dword v166, v13, s[100:101] offset:256")
        print(codes)
    A("s_endpgm")
    if lred:
        A("L_light:")
        C("---- workgroups 240..255: add the three w2 partials of their group, one atomic contribution per group and column block")
        A(f"s_bfe_u32 s{sC10}, s2, 0x10003"); A(f"s_mul_i32 s{sC10}, s{sC10}, 5"); A(f"s_add_u32 s{sRB}, s{sC10}, 5"); A(f"s_add_u32 s{sC10}, s{sC10}, s{sW}")
        A("v_lshlrev_b32 v17, 3, v1"); A("v_lshrrev_b32 v16, 1, v1"); A("v_lshlrev_b32 v16, 3, v16")
        A(f"s_mov_b32 s{base(EVEN)}, 0x55555555"); A(f"s_mov_b32 s{base(EVEN)+1}, s{base(EVEN)}")
        if lgate == "s": ldspoll("L_lg", L_SFLAG, 1, [], 44, 47)
        elif lgate == "v": ldspoll("L_lg", L_VCNT, 8, [], 44, 47)
        A("L_lnext:")
        A(f"s_and_b32 s{sT}, s2, 7"); A(f"s_mul_i32 s{sT}, s{sT}, 10"); A(f"s_add_u32 s{sT}, s{sT}, s{sC10}"); A(f"s_mul_i32 s{sT}, s{sT}, 1536"); A(f"s_add_u32 s{sT}, s{sT}, {E3}")
        A(f"s_lshl_b32 s{sT+1}, s{sC10}, 7"); A(f"s_add_u32 s{sT+1}, s{sT+1}, {RDY}")
        A(f"s_lshl_b32 s{sT+2}, s{sC10}, 11"); A(f"s_add_u32 s{sT+2}, s{sT+2}, {ACC + 1024}")
        A(f"s_mov_b32 s{sSPIN}, {GTRIES}")
        A("L_lp:")
        A(f"s_load_dwordx2 s[{sP}:{sP+1}], s[26:27], s{sT+1} glc")
        for k in range(6): A(f"buffer_load_dwordx2 v[{48+2*k}:{49+2*k}], v16, {WS}, s{sT} offen offset:{256*k} sc1")
        A("s_waitcnt vmcnt(0) lgkmcnt(0)")
        for k in range(3): A(f"v_bitop3_b32 v{49+4*k}, s{sTAG}, v{49+4*k}, v{51+4*k} bitop3:0x7e")
        A(f"s_xor_b32 s{sP}, s{sP}, s{sTAG}"); A(f"s_xor_b32 s{sP+1}, s{sP+1}, s{sTAG}"); A(f"s_or_b32 s{sP}, s{sP}, s{sP+1}")
        A("v_or3_b32 v49, v49, v53, v57"); A(f"v_or_b32 v49, s{sP}, v49")
        A("v_cmp_ne_u32 vcc, 0, v49")
        A("s_cbranch_vccz L_lp_ok")
        A("s_sleep 8")
        A(f"s_sub_u32 s{sSPIN}, s{sSPIN}, 1")
        A("s_cbranch_scc0 L_lp")
        A("L_lp_ok:")
        A("v_add_f32 v48, v48, v52"); A("v_add_f32 v50, v50, v54"); A("v_add_f32 v48, v48, v56"); A("v_add_f32 v50, v50, v58")
        A(f"v_cndmask_b32 v48, 1.0, v48, {EVEN}"); A(f"v_cndmask_b32 v50, 1.0, v50, {EVEN}")
        A("v_cvt_f64_f32 v[60:61], v48"); A("v_cvt_f64_f32 v[62:63], v50")
        A(f"buffer_atomic_add_f64 v[60:61], v17, {WS}, s{sT+2} offen sc1")
        A(f"buffer_atomic_add_f64 v[62:63], v17, {WS}, s{sT+2} offen offset:512 sc1")
        A(f"s_add_u32 s{sC10}, s{sC10}, 4"); A(f"s_cmp_lt_u32 s{sC10}, s{sRB}"); A("s_cbranch_scc1 L_lnext")
        A("s_branch L_help_end")
    A("L_code_end:")
    A('.section .rodata,"a"'); A(".p2align 6")
    A(f".amdhsa_kernel {NAME}_kernel")
    A("  .amdhsa_next_free_vgpr 168"); A(f"  .amdhsa_next_free_sgpr {102 if diag else 100}"); A("  .amdhsa_accum_offset 168")
    A("  .amdhsa_group_segment_fixed_size 0"); A("  .amdhsa_kernarg_size 96"); A("  .amdhsa_user_sgpr_count 2")
    A("  .amdhsa_user_sgpr_kernarg_segment_ptr 1"); A("  .amdhsa_system_sgpr_workgroup_id_x 1")
    A("  .amdhsa_float_denorm_mode_32 3")
    A(".end_amdhsa_kernel")
    if nox: L = [("v_mov_b32 v20, v1" if ("v[20:23], v8" in l and "buffer_load" in l) or "buffer_load_dword v24" in l else l) for l in L]
    return "\n".join(L) + "\n"

SETS = {
  "A": dict(start=[(0,0)], e1pub=[(0,1)], qready=[(0,2)], e0pub=[(4,3),(11,4)], stats=[(2,5)], kissued=[(4,6),(11,12)], vissued=[(11,7)], e4pub=[(None,8)],
            woissued=[(0,9)], e4seen=[(0,10)], probe=[(3,11)], atdone=[(None,13)], lndone=[(0,14)]),
  "V": dict(start=[(0,0)], e4pub=[(None,1)], woissued=[(0,2)], e4seen=[(0,3),(1,4),(2,5),(3,6)], e5pub=[(None,7)], atdone=[(None,8)], end=[(None,9)], mfmadone=[(8,10),(9,11),(10,12),(11,13)], stats=[(2,14)]),
  "P": dict(start=[(0,0)], e4pub=[(None,1)], woissued=[(0,2)], vissued=[(4,3),(5,4),(6,5),(7,6),(8,8),(11,9)], e5pub=[(None,7)], v4=[(8,10),(9,11),(10,12),(11,13)], wol=[(1,14)]),
  "S": dict(start=[(0,0),(4,1)], karg=[(0,2),(3,3),(4,4),(11,5)], h1issued=[(0,6),(2,7),(3,8)], barrier=[(0,9),(4,10)], k3issued=[(4,11)], lndone=[(0,12)], e1pub=[(0,13)], kissued=[(4,14)]),
}
def build(out, **kw):
    import hazard, os
    ref = "cdna_kernels/" + NAME + ".s.ref"
    hdr = open(ref).read().split("; Override launch")[0] if os.path.exists(ref) else ""
    if kw.get("stamps"): kw["stamps"] = SETS[kw["stamps"]]
    t = gen(**kw)
    for x in hazard.check(t)[:30]: print("HAZARD", x)
    open(out, "w").write(hdr + t)
if __name__ == "__main__":
    import ast
    kw = {}
    for a in sys.argv[2:]:
        k, v = a.split("=", 1)
        try: kw[k] = ast.literal_eval(v)
        except Exception: kw[k] = v
    build(sys.argv[1], **kw)
```
